```python
import torch

def _softmax(x, axis=-1):
    return torch.softmax(x, dim=axis)
def _gelu(x):
    return torch.nn.functional.gelu(x, approximate="tanh")
def _silu(x):
    return torch.nn.functional.silu(x)
def _sigmoid(x):
    return torch.sigmoid(x)
def _layernorm(x, axis=-1, eps=1e-5):
    m = x.mean(dim=axis, keepdim=True)
    v = x.var(dim=axis, keepdim=True, unbiased=False)
    return (x - m) / torch.sqrt(v + eps)
def _scatter_add(tgt, idx, src, axis=0):
    return tgt.clone().index_add_(axis, idx, src)
def _segment_sum(src, seg, n):
    out = torch.zeros((n,) + src.shape[1:], dtype=src.dtype)
    return out.index_add_(0, seg, src)
def _pad(x, pw):
    flat = tuple(v for pair in reversed(pw) for v in pair)
    return torch.nn.functional.pad(x, flat)

kernel_name = 'parallel_sum__grouped_kv_mqa__glu_gated_bilinear__prompt'

def setup_inputs():

    _w = (lambda a: (lambda t: t.to(torch.bfloat16) if t.is_floating_point() else t)(torch.as_tensor(a)))
    def _A_setup():
        B, S, D, H = 1, 2048, 640, 32
        Dh = D // H
        return {
            "x": _w((lambda *s: torch.randn(*s, dtype=torch.bfloat16) * 0.05)(B, S, D)),
            "wq": _w((lambda *s: torch.randn(*s, dtype=torch.bfloat16) * 0.05)(D, H * Dh)),
            "wk": _w((lambda *s: torch.randn(*s, dtype=torch.bfloat16) * 0.05)(D, Dh)),
            "wv": _w((lambda *s: torch.randn(*s, dtype=torch.bfloat16) * 0.05)(D, Dh)),
            "wo": _w((lambda *s: torch.randn(*s, dtype=torch.bfloat16) * 0.05)(H * Dh, D)),
        }
    _A_in = _A_setup()

    def _B_setup():
        B, S, D, F = 1, 2048, 640, 1536
        return {
            "x": _w((lambda *s: torch.randn(*s, dtype=torch.bfloat16) * 0.05)(B, S, D)),
            "w_gate": _w((lambda *s: torch.randn(*s, dtype=torch.bfloat16) * 0.8)(D, F) * (D ** -0.5)),
            "w_up": _w((lambda *s: torch.randn(*s, dtype=torch.bfloat16) * 0.8)(D, F) * (D ** -0.5)),
            "w_down": _w((lambda *s: torch.randn(*s, dtype=torch.bfloat16) * 0.8)(F, D) * (F ** -0.5)),
        }
    _B_in = _B_setup()

    return {
        "A_x": _A_in["x"],
        "A_wq": _A_in["wq"],
        "A_wk": _A_in["wk"],
        "A_wv": _A_in["wv"],
        "A_wo": _A_in["wo"],
        "B_x": _B_in["x"],
        "B_w_gate": _B_in["w_gate"],
        "B_w_up": _B_in["w_up"],
        "B_w_down": _B_in["w_down"],
    }

def reference(A_x, A_wq, A_wk, A_wv, A_wo, B_x, B_w_gate, B_w_up, B_w_down):
    def _A_ref(x, wq, wk, wv, wo):
        B, S, D = x.shape
        H = 32
        Dh = D // H
        q = (lambda x, *d: x.permute(*d))((x @ wq).reshape(B, S, H, Dh), 0, 2, 1, 3)
        k = x @ wk
        v = x @ wv
        scores = torch.einsum("bhqd,bkd->bhqk", q, k) * (Dh ** -0.5)
        p = _softmax(scores, axis=-1)
        o = torch.einsum("bhqk,bkd->bhqd", p, v)
        return (lambda x, *d: x.permute(*d))(o, 0, 2, 1, 3).reshape(B, S, H * Dh) @ wo

    def _B_ref(x, w_gate, w_up, w_down):
        g = torch.einsum("bsd,df->bsf", x, w_gate)
        u = torch.einsum("bsd,df->bsf", x, w_up)
        h = g * u
        return torch.einsum("bsf,fd->bsd", h, w_down)

    x = A_x
    xn = _layernorm(x, axis=-1)
    return x + _A_ref(xn, A_wq, A_wk, A_wv, A_wo) + _B_ref(xn, B_w_gate, B_w_up, B_w_down)
```

```python
NAME = "parallel_sum__grouped_kv_mqa__glu_gated_bilinear__prompt"

QF_OFF  = 0x000000
KVF_OFF = 0x280000
HF_OFF  = 0x300000
OF_OFF  = 0x900000
RF_OFF  = 0xC00000
WS_SIZE = 0x1100000

class Asm:
    def __init__(self):
        self.lines = []
    def __call__(self, s):
        for l in s.strip("\n").split("\n"):
            l = l.strip()
            if not l:
                continue
            if l.endswith(":"):
                self.lines.append(l)
            else:
                self.lines.append("    " + l)
    def raw(self, s):
        self.lines.append(s)
    def text(self):
        return "\n".join(self.lines) + "\n"

def vr(b, n=1):
    return f"v{b}" if n == 1 else f"v[{b}:{b+n-1}]"
def sr(b, n=1):
    return f"s{b}" if n == 1 else f"s[{b}:{b+n-1}]"

def kernel_begin(a, name):
    a.raw(f".globl {name}")
    a.raw(".p2align 8")
    a.raw(f".type {name},@function")
    a.raw(f"{name}:")

def kernel_desc(name, vgpr, sgpr=102, accum=None):
    accum = accum or ((vgpr + 3) // 4 * 4)
    return f""".p2align 6
.amdhsa_kernel {name}
  .amdhsa_next_free_vgpr {vgpr}
  .amdhsa_next_free_sgpr {sgpr}
  .amdhsa_accum_offset {accum}
  .amdhsa_group_segment_fixed_size 0
  .amdhsa_kernarg_size 96
  .amdhsa_user_sgpr_count 2
  .amdhsa_user_sgpr_kernarg_segment_ptr 1
  .amdhsa_system_sgpr_workgroup_id_x 1
.end_amdhsa_kernel
"""

P_X, P_WQ, P_WK, P_WV, P_WO, P_BX, P_WG, P_WU, P_WD, P_OUT, P_DBG, P_WS = [16 + 2*i for i in range(12)]

def load_kernargs(a):
    stamp(a, 0); stamp_rt(a, 0)
    if STAMPS:
        for i in range(1, 5): a(f"s_mov_b64 s[{4+2*i}:{5+2*i}], 0")
    a("s_load_dwordx16 s[16:31], s[0:1], 0")
    a("s_load_dwordx8 s[32:39], s[0:1], 64")

def make_srd(a, d, ptr, size):
    a(f"s_mov_b32 s{d}, s{ptr}")
    a(f"s_mov_b32 s{d+1}, s{ptr+1}")
    a(f"s_mov_b32 s{d+2}, {size}" if not isinstance(size, str) else f"s_mov_b32 s{d+2}, {size}")
    a(f"s_mov_b32 s{d+3}, 0x00020000")

def f32bits(x):
    import struct
    return "0x%08x" % struct.unpack("<I", struct.pack("<f", x))[0]

import os
STAMPS = os.environ.get("STAMPS", "0") == "1"
STAMP_OFF = 0x1000000 + 0x80000
def stamp(a, i):
    if STAMPS:
        a(f"s_memtime s[{4+2*i}:{5+2*i}]")
def stamp_rt(a, i):
    if STAMPS:
        a(f"s_memrealtime s[{94+2*i}:{95+2*i}]")
def endpgm(a, kidx):
    if STAMPS:
        stamp(a, 5); stamp_rt(a, 1)
        a("s_waitcnt lgkmcnt(0)")
        a("s_mov_b32 s98, s38"); a("s_mov_b32 s99, s39")
        a("s_wqm_b64 exec, exec")
        a(f"s_lshl_b32 s100, s2, 3")
        a(f"s_add_u32 s100, s100, s3")
        a(f"s_lshl_b32 s100, s100, 5")
        a(f"s_add_u32 s100, s100, {0x2000000 + kidx*0x10000}")
        a("s_add_u32 s98, s98, s100"); a("s_addc_u32 s99, s99, 0")
        for j, sreg in enumerate([4, 6, 8, 10, 12, 14, 94, 96]):
            a(f"v_mov_b32 v{2+j}, s{sreg}")
        a("v_mov_b32 v1, 0")
        a("global_store_dwordx4 v1, v[2:5], s[98:99]")
        a("global_store_dwordx4 v1, v[6:9], s[98:99] offset:16")
    a("s_endpgm")
```

```python
from common import *
import math, sys

STF_OFF = 0x2F0000
KVFL_OFF, QFL_OFF, HFL_OFF = 0x2D0000, 0x2D1000, 0x2D2000
MBX_OFF = 0x2D0000
EPOCH_OFF = 0x2FF000
OFL_OFF = 0x2F8000
STG = 49408
RING = 6
RSZ = RING * 5120
CB_OFF = 4 * RSZ
CS_OFF = CB_OFF
ST_OFF = 3 * STG
VT_OFF = CB_OFF + 8192
FL_OFF = CB_OFF + 32768
LDS_BYTES = FL_OFF + 128
G_OFF, U_REL = 32768, 8256
QSCALE = math.log2(math.e) / math.sqrt(20.0)
SPIN_MAX = 1 << 18
ABL = os.environ.get("ABL", "")
SB = "B" in ABL
SP = "P" in ABL

S_W = 3
SX, SWS, SDBG, SA, SB2, SC, SD = 40, 44, 48, 52, 56, 60, 88
S_TH, S_CG, S_IDX, S_WQ, S_ISH, S_TB, S_G, S_TOK = 64, 65, 66, 67, 68, 69, 70, 71
T0, T1, T2, T3, T4, T5 = 72, 73, 74, 75, 76, 77
S_I, S_DB, S_RB, S_OX, S_OW, S_O2, S_O3, S_ST2 = 78, 79, 80, 81, 82, 83, 84, 85
S_EARLY, S_COL = 86, 87
S_UP = 92
S_MBX, S_ROT, S_MH, S_DL = 99, 100, 101, 98
S_NON = 79
S_OO = 56
S_OFL, S_KV, S_H0, S_K2 = 52, 53, 54, 55
VL, VT, VH, VL16, VL8, VF, VFL = 250, 251, 252, 253, 254, 249, 248
VZ = 244
FBASE = [32, 48, 128, 144]
CSA = 26

def gen(name, force_fallback=False):
    a = Asm()
    kernel_begin(a, name)
    uid = [0]
    def lab(s):
        uid[0] += 1
        return f"L{uid[0]}_{s}"
    def emit(ch):
        for c in ch:
            for l in c: a(l)
    def lds_set(idx):
        a(f"v_mov_b32 v2, {FL_OFF + 4*idx}")
        a(f"v_mov_b32 v3, 1")
        a(f"ds_write_b32 v2, v3")
    def lds_wait(idx, n=1, sleep=1):
        L = lab("lw")
        a(f"v_mov_b32 v2, {FL_OFF + 4*idx}")
        a(f"{L}:")
        if n == 1:
            a("ds_read_b32 v4, v2")
            a("s_waitcnt lgkmcnt(0)")
        else:
            a("ds_read_b128 v[4:7], v2")
            if n == 8: a("ds_read_b128 v[8:11], v2 offset:16")
            a("s_waitcnt lgkmcnt(0)")
            a("v_bitop3_b32 v4, v4, v5, v6 bitop3:0x80")
            if n == 8:
                a("v_bitop3_b32 v8, v8, v9, v10 bitop3:0x80")
                a("v_bitop3_b32 v4, v4, v8, v11 bitop3:0x80")
            a("v_and_b32 v4, v4, v7")
            a("s_nop 0")
        a(f"v_readfirstlane_b32 s{T4}, v4")
        a("s_nop 0")
        a(f"s_cmp_eq_u32 s{T4}, 1")
        a(f"s_cbranch_scc1 {L}_d")
        a(f"s_sleep {sleep}")
        a(f"s_branch {L}")
        a(f"{L}_d:")
    def mbx_load(line):
        if line == 0:
            a(f"s_and_b32 s{T0}, s2, 7")
            a(f"s_lshl_b32 s{T0}, s{T0}, 7")
            a(f"s_lshr_b32 s{T1}, s{S_TB}, 2")
            a(f"s_lshl_b32 s{T1}, s{T1}, 7")
            a(f"s_add_u32 s{T1}, s{T1}, {QFL_OFF - KVFL_OFF}")
            a(f"v_and_b32 v2, 3, v{VL}")
            a(f"v_lshl_add_u32 v2, v2, 2, s{T1}")
            a(f"v_cmp_gt_u32 vcc, 16, v{VL}")
            a(f"v_lshl_add_u32 v3, v{VL}, 2, s{T0}")
            a(f"s_mov_b32 s{T0}, {KVFL_OFF}")
            a(f"v_cndmask_b32 v2, v2, v3, vcc")
        else:
            a(f"s_and_b32 s{T0}, s2, 7")
            a(f"s_lshl_b32 s{T0}, s{T0}, 7")
            a(f"s_add_u32 s{T0}, s{T0}, {HFL_OFF}")
            a(f"s_lshl_b32 s{T1}, s{S_TB}, 7")
            a(f"s_add_u32 s{T1}, s{T1}, {OFL_OFF}")
            a(f"s_sub_u32 s{T1}, s{T1}, s{T0}")
            a(f"v_and_b32 v2, 15, v{VL}")
            a(f"v_lshl_add_u32 v2, v2, 2, s{T1}")
            a(f"v_cmp_gt_u32 vcc, 24, v{VL}")
            a(f"v_lshlrev_b32 v3, 2, v{VL}")
            a("s_nop 0")
            a(f"v_cndmask_b32 v2, v2, v3, vcc")
        a(f"buffer_load_dword v{VF}, v2, s[{SWS}:{SWS+3}], s{T0} offen sc1")
    def mbx_test():
        a(f"v_cmp_ne_u32 vcc, s{S_NON}, v{VF}")
        a("s_cmp_eq_u64 vcc, 0")
    def mbx_wait(line, sleep):
        L, D = lab("spin"), lab("done")
        a(f"s_mov_b32 s{T5}, 0")
        mbx_load(line)
        a(f"{L}:")
        a(f"s_add_u32 s{T5}, s{T5}, 1")
        a("s_waitcnt vmcnt(0)")
        mbx_test()
        a(f"s_cbranch_scc1 {D}")
        a(f"s_sleep {sleep}")
        a(f"buffer_load_dword v{VF}, v2, s[{SWS}:{SWS+3}], s{T0} offen sc1")
        a(f"s_cmp_lt_u32 s{T5}, {SPIN_MAX}")
        a(f"s_cbranch_scc1 {L}")
        a(f"{D}:")
    def zero_mfma(dst, z):
        a(f"v_mfma_f32_32x32x16_bf16 {vr(dst,16)}, {vr(z,4)}, {vr(z,4)}, 0")

    O = lambda q: [32, 48, 128, 144][q]
    S = lambda p: 64 + 16*p
    P0, P1 = 96, 100
    Q1 = lambda q: 168 + 4*q
    Q2 = lambda q: 184 + 2*q
    KVB = lambda r: 192 + 14*r
    K1 = lambda r: KVB(r); V1 = lambda r: KVB(r)+4; V2 = lambda r: KVB(r)+8; K2 = lambda r: KVB(r)+12
    VCW, VCR, VCW4, VCR4, VFR = 22, 23, 24, 25, 255
    VD = [168, 169, 170, 171, 172]
    VAR, VAR2, VR0, VR1, VXO, VRW = 173, 174, 175, 176, 177, 178
    VX = [22, 23]; VW, VW2 = 24, 25

    a("s_cmp_ge_u32 s2, 256")
    a("s_cbranch_scc1 L_end")
    load_kernargs(a)
    a(f"s_getpc_b64 s[{T0}:{T1}]")
    a("L_pc:")
    a(f"v_lshlrev_b32 v1, 7, v0")
    a(f"v_min_u32 v1, L_end-L_pc, v1")
    a(f"global_load_dword v{VF}, v1, s[{T0}:{T1}]")
    a("v_lshrrev_b32 v1, 6, v0")
    a(f"v_and_b32 v{VL}, 63, v0")
    a(f"v_readfirstlane_b32 s{S_W}, v1")
    a(f"s_and_b32 s{T0}, s2, 7")
    a(f"s_lshr_b32 s{S_IDX}, s2, 3")
    a(f"s_and_b32 s{S_TH}, s{T0}, 1")
    a(f"s_lshr_b32 s{S_CG}, s{T0}, 1")
    a(f"s_and_b32 s{S_WQ}, s{S_W}, 3")
    a(f"s_lshr_b32 s{S_ISH}, s{S_W}, 2")
    a(f"s_lshl_b32 s{S_TOK}, s{S_TH}, 2")
    a(f"s_and_b32 s{T1}, s{S_IDX}, 3")
    a(f"s_add_u32 s{S_TOK}, s{S_TOK}, s{T1}")
    a(f"s_lshl_b32 s{S_TOK}, s{S_TOK}, 8")
    a(f"s_mul_i32 s{S_COL}, s{S_CG}, 6")
    a(f"s_lshr_b32 s{T1}, s{S_IDX}, 2")
    a(f"s_add_u32 s{S_COL}, s{S_COL}, s{T1}")
    a(f"s_lshl_b32 s{T1}, s{S_TH}, 3")
    a(f"s_add_u32 s{T1}, s{T1}, s{S_IDX}")
    a(f"s_sub_u32 s{T1}, s{T1}, 24")
    a(f"s_lshl_b32 s{T1}, s{T1}, 7")
    a(f"s_cmp_lt_u32 s{S_IDX}, 24")
    a(f"s_cselect_b32 s{S_TOK}, s{S_TOK}, s{T1}")
    a(f"s_cselect_b32 s{S_COL}, s{S_COL}, s{S_CG}")
    a(f"s_cselect_b32 s{T1}, 6, 5")
    a(f"v_and_b32 v{VT}, 31, v0")
    a(f"v_bfe_u32 v{VH}, v0, 5, 1")
    a(f"s_cmp_lg_u32 s{S_ISH}, 0")
    a(f"s_cbranch_scc1 L_p0_h")
    a(f"v_lshrrev_b32 v1, 3, v{VL}")
    a(f"v_lshrrev_b32 v2, 4, v{VL}")
    a(f"v_and_b32 v4, 7, v{VL}")
    a(f"v_xor_b32 v3, v2, v4")
    a(f"s_lshl_b32 s{T2}, s{S_WQ}, s{T1}")
    a(f"s_add_u32 s{T2}, s{T2}, s{S_TOK}")
    a(f"v_add_u32 v5, s{T2}, v1")
    a(f"v_mul_u32_u24 v5, 1280, v5")
    a(f"v_lshl_add_u32 v{VX[0]}, v3, 4, v5")
    a(f"v_xor_b32 v3, 4, v3")
    a(f"v_lshl_add_u32 v{VX[1]}, v3, 4, v5")
    S_MX, S_MW = S_OX, S_RB
    a(f"s_cmp_lt_u32 s{S_IDX}, 24")
    a(f"s_cbranch_scc0 L_q_l")
    a(f"v_and_b32 v2, 1, v2")
    a(f"v_lshlrev_b32 v2, 1, v2")
    a(f"v_xor_b32 v4, v4, v2")
    a(f"s_lshl_b32 s{T2}, s{S_WQ}, 4")
    a(f"v_add_u32 v1, s{T2}, v1")
    a(f"v_mul_u32_u24 v1, 3072, v1")
    a(f"v_lshl_add_u32 v1, v4, 4, v1")
    a(f"s_lshl_b32 s{T2}, s{S_COL}, 7")
    a(f"v_add_u32 v{VW}, s{T2}, v1")
    a(f"s_lshl_b32 s{S_MX}, s{S_WQ}, 13")
    a(f"s_lshl_b32 s{S_MW}, s{S_WQ}, 11")
    a("s_waitcnt lgkmcnt(0)")
    make_srd(a, SX, P_X, 2048*1280)
    make_srd(a, SA, P_WG, 640*3072)
    make_srd(a, SB2, P_WU, 640*3072)
    def dma_gu(st):
        db = (st % 3) * STG
        ch = []
        for j in (0, 1, 2, 3, 8, 9, 4, 5, 6, 7, 10, 11):
            c = []
            if j < 8:
                if j in (0, 4):
                    c += [f"s_add_u32 m0, s{S_MX}, {db + 4096*(j>>2)}"]
                c += [f"s_mov_b32 s{T3}, {st*128 + j*10240 - 1024*(j&3)}",
                      f"buffer_load_dwordx4 v{VX[j&1]}, s[{SX}:{SX+3}], s{T3} offen offset:{1024*(j&3)} lds"]
            else:
                srd = SA if j < 10 else SB2
                if j in (8, 10):
                    c += [f"s_add_u32 m0, s{S_MW}, {db + G_OFF + (U_REL if j == 10 else 0)}"]
                c += [f"s_mov_b32 s{T3}, {st*64*3072 + (j&1)*(8*3072-1024)}",
                      f"buffer_load_dwordx4 v{VW}, s[{srd}:{srd+3}], s{T3} offen offset:{1024*(j&1)} lds"]
            ch.append(c)
        return ch
    if SP: stamp(a, 1)
    emit(dma_gu(0))
    if SP: stamp(a, 2)
    a("s_branch L_common")
    a("L_q_l:")
    a(f"s_cmp_eq_u32 s{S_COL}, 3")
    a(f"s_cselect_b32 s{T0}, 40, 1280")
    a(f"s_lshl_b32 s{S_ST2}, s{T0}, 6")
    a(f"s_mul_i32 s{S_OW}, s{S_COL}, 384")
    a(f"s_add_u32 s{S_O2}, s{S_OW}, 128")
    a(f"s_add_u32 s{S_O3}, s{S_OW}, 192")
    a(f"v_lshrrev_b32 v1, 2, v{VL}")
    a(f"s_lshl_b32 s{T1}, s{S_WQ}, 4")
    a(f"v_add_u32 v1, s{T1}, v1")
    a(f"v_and_b32 v2, 3, v{VL}")
    a(f"v_lshlrev_b32 v2, 4, v2")
    a(f"v_mul_u32_u24 v3, 1280, v1")
    a(f"v_add_u32 v{VW}, v3, v2")
    a(f"v_add_u32 v{VW}, s{S_OW}, v{VW}")
    a(f"v_mul_u32_u24 v3, s{T0}, v1")
    a(f"v_add_u32 v{VW2}, v3, v2")
    a(f"s_lshl_b32 s{S_MX}, s{S_WQ}, 12")
    a(f"s_lshl_b32 s{S_MW}, s{S_WQ}, 10")
    a("s_waitcnt lgkmcnt(0)")
    make_srd(a, SX, P_X, 2048*1280)
    make_srd(a, SA, P_WQ, 640*1280)
    a(f"s_cmp_eq_u32 s{S_COL}, 3")
    a(f"s_cselect_b32 s{S_O2}, 0, s{S_O2}")
    a(f"s_cselect_b32 s{S_O3}, 0, s{S_O3}")
    a(f"s_cselect_b64 s[{SB2}:{SB2+1}], s[{P_WK}:{P_WK+1}], s[{P_WQ}:{P_WQ+1}]")
    a(f"s_cselect_b64 s[{SC}:{SC+1}], s[{P_WV}:{P_WV+1}], s[{P_WQ}:{P_WQ+1}]")
    a(f"s_mov_b64 s[{SD}:{SD+1}], s[{P_WQ}:{P_WQ+1}]")
    a(f"s_cselect_b32 s{SB2+2}, {640*40}, s{SA+2}")
    a(f"s_mov_b32 s{SC+2}, s{SB2+2}")
    a(f"s_cselect_b32 s{SD+2}, 0, s{SA+2}")
    for r in (SB2, SC, SD):
        a(f"s_mov_b32 s{r+3}, 0x00020000")
    def dma_q(st):
        db = (st % 3) * STG
        ch = []
        for j in range(4):
            c = []
            if j == 0:
                c += [f"s_add_u32 m0, s{S_MX}, {db}"]
            c += [f"s_mov_b32 s{T3}, {st*128 + j*(10240-1024)}",
                  f"buffer_load_dwordx4 v{VX[j&1]}, s[{SX}:{SX+3}], s{T3} offen offset:{1024*j} lds"]
            ch.append(c)
        for j, (srd, vo, so, add) in enumerate([(SA, VW, None, 0), (SA, VW, None, 64), (SB2, VW2, S_O2, 0), (SC, VW2, S_O3, 0), (SD, VW, None, 256), (SD, VW, None, 320)]):
            c = [f"s_add_u32 m0, s{S_MW}, {db + 16384+4096*j}"]
            if so is None:
                c += [f"s_mov_b32 s{T3}, {st*64*1280 + add}", f"buffer_load_dwordx4 v{vo}, s[{srd}:{srd+3}], s{T3} offen lds"]
            else:
                c += ["s_nop 0", f"buffer_load_dwordx4 v{vo}, s[{srd}:{srd+3}], s{so} offen lds", f"s_add_u32 s{so}, s{so}, s{S_ST2}"]
            ch.append(c)
        return ch
    if SP: stamp(a, 1)
    emit(dma_q(0))
    if SP: stamp(a, 2)
    a("s_branch L_common")

    a("L_p0_h:")
    a(f"s_lshl_b32 s{T0}, s2, 3")
    a(f"s_lshl_b32 s{T1}, s{S_WQ}, 1")
    a(f"s_add_u32 s{T0}, s{T0}, s{T1}")
    a(f"v_add_u32 v4, s{T0}, v{VH}")
    a(f"v_mul_u32_u24 v5, 1280, v4")
    a(f"v_lshl_add_u32 v5, v{VT}, 3, v5")
    a(f"v_lshlrev_b32 v255, 3, v4")
    a(f"v_mov_b32 v242, 0")
    a(f"s_mov_b32 s{T1}, {EPOCH_OFF}")
    a("s_waitcnt lgkmcnt(0)")
    make_srd(a, SX, P_X, 2048*1280)
    make_srd(a, SWS, P_WS, WS_SIZE)
    a(f"s_cmp_lg_u32 s{T0}, 0")
    a(f"s_cbranch_scc1 L_p0_h1")
    a(f"buffer_load_dword v240, v242, s[{SWS}:{SWS+3}], s{T1} offen sc1")
    make_srd(a, SDBG, P_DBG, 256)
    a("s_waitcnt vmcnt(0)")
    a("v_add_u32 v240, 1, v240")
    a("v_or_b32 v240, 0x80000000, v240")
    a("s_mov_b64 exec, 1")
    a(f"buffer_store_dword v240, v242, s[{SDBG}:{SDBG+3}], 0 offen sc1")
    a(f"buffer_store_dword v240, v242, s[{SWS}:{SWS+3}], s{T1} offen sc1")
    a("s_mov_b64 exec, -1")
    a("L_p0_h1:")
    for j in range(5):
        a(f"buffer_load_dwordx2 {vr(192+2*j,2)}, v5, s[{SX}:{SX+3}], 0 offen offset:{256*j}")

    a("L_common:")
    make_srd(a, SWS, P_WS, WS_SIZE)
    make_srd(a, SDBG, P_DBG, 256)
    a(f"s_and_b32 s{S_MH}, s{S_W}, 1")
    a(f"s_lshr_b32 s{S_ROT}, s{S_W}, 1")
    a(f"s_mov_b32 s{S_UP}, 0")
    a(f"s_mov_b32 s{S_UP+1}, -1")
    a(f"v_lshlrev_b32 v{VL16}, 4, v{VL}")
    a(f"v_bfe_u32 v1, v{VT}, 1, 3")
    a(f"v_xor_b32 v1, v1, v{VH}")
    a(f"s_lshl_b32 s{T1}, s{S_ROT}, 1")
    a(f"v_xor_b32 v1, s{T1}, v1")
    a(f"v_lshlrev_b32 v2, 7, v{VT}")
    a(f"s_cmp_lt_u32 s{S_IDX}, 24")
    a(f"s_cselect_b32 s{T0}, 13, 12")
    a(f"s_lshl_b32 s{T0}, s{S_ROT}, s{T0}")
    a(f"v_add_u32 v2, s{T0}, v2")
    VB = lambda sg: 18 + sg
    for sg in range(4):
        a(f"v_xor_b32 v3, {2*sg}, v1")
        a(f"v_lshl_add_u32 v{VB(sg)}, v3, 4, v2")
    for r in range(CSA, CSA+6):
        a(f"v_mov_b32 v{r}, 0")
    a(f"s_and_b32 s{T0}, s2, 7")
    a(f"s_lshl_b32 s{S_TB}, s{T0}, 3")
    a(f"s_and_b32 s{T1}, s{S_IDX}, 7")
    a(f"s_add_u32 s{S_TB}, s{S_TB}, s{T1}")
    a(f"s_lshr_b32 s{S_G}, s{S_IDX}, 3")
    a(f"s_mov_b32 s{S_EARLY}, 0")
    a(f"s_mov_b32 s{S_DL}, {STG}")
    a(f"s_mov_b32 s{S_I}, {-2*STG & 0xffffffff}")
    a(f"v_bfe_u32 v1, v{VL}, 2, 2")
    a(f"v_lshl_add_u32 v2, v{VH}, 3, v1")
    a(f"v_bfe_u32 v3, v{VL}, 4, 1")
    a(f"s_cmp_lt_u32 s{S_IDX}, 24")
    a(f"s_cbranch_scc0 L_q_rd")
    VAg = lambda sg, aa: 10 + 2*sg + aa
    a(f"v_lshlrev_b32 v2, 7, v2")
    a(f"v_mul_u32_u24 v3, {U_REL}, v3")
    a(f"v_add_u32 v2, v2, v3")
    a(f"v_and_b32 v1, 2, v1")
    a(f"v_bfe_u32 v3, v{VL}, 1, 1")
    a(f"v_add_u32 v1, v1, v3")
    a(f"v_lshl_add_u32 v2, v1, 4, v2")
    a(f"v_and_b32 v3, 1, v{VL}")
    a(f"v_lshl_add_u32 v2, v3, 3, v2")
    a(f"s_lshl_b32 s{T0}, s{S_MH}, 6")
    a(f"s_add_u32 s{T0}, s{T0}, {G_OFF}")
    for sg in range(4):
        a(f"s_xor_b32 s{T1}, s{S_ROT}, {sg}")
        a(f"s_lshl_b32 s{T1}, s{T1}, 11")
        a(f"s_add_u32 s{T1}, s{T1}, s{T0}")
        a(f"v_add_u32 v{VAg(sg,0)}, s{T1}, v2")
        a(f"v_xor_b32 v{VAg(sg,1)}, 32, v{VAg(sg,0)}")

    def one(lst): return [[x] for x in lst]
    def bg_common():
        o = [f"v_lshlrev_b32 v{VL8}, 3, v{VL}", f"s_lshl_b32 s{T0}, s{S_W}, 2", f"s_add_u32 s{T0}, s{T0}, {FL_OFF}", f"v_mov_b32 v{VFL}, s{T0}"]
        o += [f"v_mov_b32 v{r}, 0" for r in (243, 244, 245)]
        return one(o)
    def bg_L():
        o = [f"v_mov_b32 v246, 0", f"v_mov_b32 v247, 0", f"s_mul_i32 s{T0}, s{S_G}, 320"]
        for j in range(5):
            o += [f"v_add_u32 v6, {64*j}, v{VL}", f"v_mul_u32_u24 v4, 3277, v6", f"v_lshrrev_b32 v4, 16, v4", f"v_mul_u32_u24 v5, 20, v4",
                  f"v_sub_u32 v5, v6, v5", f"v_mul_u32_u24 v4, 1280, v4", f"v_lshl_add_u32 v4, v5, 4, v4", f"v_add_u32 v{VD[j]}, s{T0}, v4"]
            if 0 < j < 4: o += [f"v_subrev_u32 v{VD[j]}, {1024*j}, v{VD[j]}"]
        o += [f"s_lshl_b32 s{T1}, s{S_TB}, 5", f"v_add_u32 v6, s{T1}, v{VT}", f"v_mul_u32_u24 v6, 1280, v6", f"v_lshl_add_u32 v6, v{VH}, 3, v6",
              f"s_lshl_b32 s{T1}, s{S_WQ}, 4", f"s_add_u32 s{T0}, s{T0}, s{T1}", f"v_add_u32 v{VXO}, s{T0}, v6",
              f"s_mul_i32 s{T0}, s{S_WQ}, {RSZ}", f"v_bfe_u32 v6, v{VL}, 2, 2", f"v_bfe_u32 v4, v{VL}, 4, 1", f"v_and_b32 v5, 3, v{VL}",
              f"v_lshl_add_u32 v4, v4, 2, v5", f"s_lshl_b32 s{T1}, s{S_WQ}, 1", f"v_xor_b32 v4, s{T1}, v4", f"v_lshl_add_u32 v4, v4, 3, s{T0}",
              f"v_lshl_add_u32 v5, v{VH}, 2, v6", f"v_mul_u32_u24 v5, 320, v5", f"v_add_u32 v{VAR}, v4, v5",
              f"v_lshl_add_u32 v5, v{VH}, 3, v6", f"v_mul_u32_u24 v5, 320, v5", f"v_add_u32 v{VAR2}, v4, v5", f"v_add_u32 v{VRW}, s{T0}, v{VL16}"]
        for i, vv in ((1, VR0), (2, VR1), (3, VRW+1)):
            o += [f"s_xor_b32 s{T1}, s{S_WQ}, {i}", f"s_mul_i32 s{T1}, s{T1}, {RSZ}", f"v_add_u32 v{vv}, s{T1}, v{VL16}"]
        return one(o)
    VRD = {1: VR0, 2: VR1, 3: VRW+1}
    def touches():
        a(f"s_lshl_b32 s{T0}, s{S_TH}, 10")
        a(f"s_lshl_b32 s{T1}, s{S_IDX}, 5")
        a(f"s_add_u32 s{T0}, s{T0}, s{T1}")
        a(f"v_add_u32 v1, s{T0}, v{VT}")
        a(f"v_mul_u32_u24 v1, 1280, v1")
        a(f"v_mov_b32 v2, 128")
        a(f"v_mov_b32 v3, s{P_X}")
        a(f"v_mov_b32 v4, s{P_X+1}")
        a(f"v_min_u32 v5, 29, v{VT}")
        a(f"v_cmp_le_u32 vcc, 15, v5")
        a(f"s_lshl_b32 s{T0}, s{S_IDX}, 1")
        a(f"v_mov_b32 v6, s{T0}")
        a(f"v_subrev_u32 v7, 15, v5")
        a(f"v_addc_co_u32 v6, s[{T2}:{T3}], 0, v6, vcc")
        a(f"v_cndmask_b32 v5, v5, v7, vcc")
        a(f"v_cmp_le_u32 vcc, 6, v5")
        a(f"v_subrev_u32 v7, 6, v5")
        a(f"v_mov_b32 v8, s{P_WG}")
        a(f"v_cndmask_b32 v7, v5, v7, vcc")
        a(f"v_mov_b32 v9, s{P_WU}")
        a(f"v_cndmask_b32 v8, v8, v9, vcc")
        a(f"v_mov_b32 v9, s{P_WG+1}")
        a(f"v_mov_b32 v32, s{P_WU+1}")
        a(f"v_cndmask_b32 v9, v9, v32, vcc")
        a(f"s_mul_i32 s{T0}, s{S_CG}, 768")
        a(f"v_mul_u32_u24 v32, 3072, v6")
        a(f"v_lshl_add_u32 v32, v7, 7, v32")
        a(f"v_add_u32 v32, s{T0}, v32")
        a(f"v_mov_b32 v33, {64*3072}")
        a(f"v_cmp_le_u32 vcc, 12, v5")
        a(f"s_mul_i32 s{T0}, s{S_CG}, 384")
        a(f"s_sub_u32 s{T0}, s{T0}, {12*128}")
        a(f"v_lshl_add_u32 v7, v5, 7, s{T0}")
        a(f"v_min_u32 v7, 1152, v7")
        a(f"v_mul_u32_u24 v6, 1280, v6")
        a(f"v_add_u32 v7, v7, v6")
        a(f"v_cndmask_b32 v32, v32, v7, vcc")
        a(f"v_mov_b32 v7, {64*1280}")
        a(f"v_cndmask_b32 v33, v33, v7, vcc")
        a(f"v_mov_b32 v7, s{P_WQ}")
        a(f"v_cndmask_b32 v8, v8, v7, vcc")
        a(f"v_mov_b32 v7, s{P_WQ+1}")
        a(f"v_cndmask_b32 v9, v9, v7, vcc")
        for d, s_ in ((1, 32), (2, 33), (3, 8), (4, 9)):
            a(f"v_cndmask_b32 v{d}, v{d}, v{s_}, s[{S_UP}:{S_UP+1}]")
        a(f"s_add_u32 s{T0}, s{S_WQ}, 3")
        a(f"v_mul_lo_u32 v5, v2, s{T0}")
        a(f"v_add_u32 v1, v1, v5")
        a(f"v_add_co_u32 v6, vcc, v3, v1")
        a(f"s_cmp_eq_u32 s{S_WQ}, 3")
        a(f"s_cselect_b32 s{T0}, 3, 4")
        a(f"v_addc_co_u32 v7, vcc, 0, v4, vcc")
        a(f"global_load_dword v246, v[6:7], off")
        a(f"v_mul_lo_u32 v2, v2, s{T0}")
        a(f"v_add_co_u32 v8, vcc, v6, v2")
        a(f"s_nop 1")
        a(f"v_addc_co_u32 v9, vcc, 0, v7, vcc")
        a(f"global_load_dword v247, v[8:9], off")
    NT_ = 2 if "T" in ABL else 0
    def bg_H():
        d = {i: [] for i in range(10)}
        d[0].append([f"s_waitcnt vmcnt({NT_})"])
        st = ["v_mov_b32 v8, 0", "v_mov_b32 v9, 0"]
        for j in range(10):
            st += [f"v_lshlrev_b32 v4, 16, v{192+j}", f"v_and_b32 v5, 0xffff0000, v{192+j}", "v_add_f32 v8, v8, v4", "v_fmac_f32 v9, v4, v4",
                   "v_add_f32 v8, v8, v5", "v_fmac_f32 v9, v5, v5"]
        for rr in (8, 4, 2, 1):
            st += ["s_nop 0", f"v_add_f32_dpp v8, v8, v8 row_ror:{rr} row_mask:0xf bank_mask:0xf", f"v_add_f32_dpp v9, v9, v9 row_ror:{rr} row_mask:0xf bank_mask:0xf"]
        st += ["v_mov_b32 v4, v8", "v_mov_b32 v5, v9", "s_nop 1", "v_permlane16_swap_b32 v4, v8", "v_permlane16_swap_b32 v5, v9", "s_nop 1",
               "v_add_f32 v4, v4, v8", "v_add_f32 v5, v5, v9", f"v_mul_f32 v4, {f32bits(-1.0/640)}, v4", f"v_mul_f32 v5, {f32bits(1.0/640)}, v5",
               "v_fma_f32 v5, -v4, v4, v5", "v_max_f32 v5, 0, v5", "v_cvt_pk_bf16_f32 v5, v5, v5", "v_lshlrev_b32 v5, 16, v5",
               f"v_add_f32 v5, {f32bits(1e-5)}, v5", "v_cvt_pk_bf16_f32 v5, v5, v5", "v_lshlrev_b32 v5, 16, v5", "v_sqrt_f32 v5, v5", "s_nop 0",
               "v_cvt_pk_bf16_f32 v202, v4, v5"]
        h = len(st)//2
        d[0] += one(st[:24]); d[1] += one(st[24:])
        L1 = lab("n1")
        d[2].insert(0, [f"s_cmp_lg_u32 s{S_W}, 4", f"s_cbranch_scc1 {L1}", f"buffer_load_dword v{VF}, v242, s[{SDBG}:{SDBG+3}], 0 offen sc1", f"{L1}:"])
        L2, L2s, L2d = lab("n2"), lab("n2s"), lab("n2d")
        d[3].append([f"s_cmp_lg_u32 s{S_W}, 4", f"s_cbranch_scc1 {L2}", f"s_mov_b32 s{T5}, 0", f"{L2s}:", "s_waitcnt vmcnt(0)", f"v_readfirstlane_b32 s{T0}, v{VF}",
                     f"s_add_u32 s{T5}, s{T5}, 1", f"s_cmp_lg_u32 s{T0}, 0", f"s_cbranch_scc1 {L2d}", "s_sleep 8",
                     f"buffer_load_dword v{VF}, v242, s[{SDBG}:{SDBG+3}], 0 offen sc1", f"s_cmp_lt_u32 s{T5}, {SPIN_MAX}", f"s_cbranch_scc1 {L2s}",
                     f"{L2d}:", f"v_mov_b32 v4, {FL_OFF + 96}", f"ds_write_b32 v4, v{VF}", f"{L2}:"])
        o = [f"s_lshl_b32 s{T0}, s{S_TB}, 5", f"s_lshl_b32 s{T1}, s{S_G}, 2", f"s_add_u32 s{T0}, s{T0}, s{T1}", f"s_add_u32 s{T0}, s{T0}, s{S_WQ}",
             f"s_lshl_b32 s{T0}, s{T0}, 2", f"s_add_u32 s{S_OFL}, s{T0}, {OFL_OFF}",
             f"s_and_b32 s{S_K2}, s{S_WQ}, 2", f"s_mul_i32 s{S_KV}, s{S_K2}, {16*3584}", f"s_add_u32 s{S_KV}, s{S_KV}, {KVF_OFF}",
             f"s_lshl_b32 s{S_H0}, s{S_G}, 3", f"s_and_b32 s{T0}, s{S_WQ}, 1", f"s_lshl_b32 s{T0}, s{T0}, 2", f"s_add_u32 s{S_H0}, s{S_H0}, s{T0}",
             f"v_lshlrev_b32 v7, 4, v{VT}", f"v_mov_b32 v8, 0x80000000"]
        for q in range(4):
            o += [f"s_xor_b32 s{T0}, s{S_K2}, {q}", f"s_add_u32 s{T0}, s{T0}, s{S_H0}", f"s_mul_i32 s{T0}, s{T0}, 5"]
            for j, dst in enumerate((Q1(q), Q1(q)+2, Q2(q))):
                o += [f"v_add_u32 v4, s{T0}, v{VH}"]
                if j: o += [f"v_add_u32 v4, {2*j}, v4"]
                o += [f"v_lshrrev_b32 v5, 2, v4", f"v_lshl_add_u32 v5, v5, 10, v7", f"v_and_b32 v6, 1, v4", f"v_lshl_add_u32 v5, v6, 9, v5",
                      f"v_and_b32 v6, 2, v4", f"v_lshl_add_u32 v{dst}, v6, 2, v5"]
                if j == 2: o += [f"v_cndmask_b32 v{dst}, v{dst}, v8, s[{S_UP}:{S_UP+1}]"]
        o += [f"s_lshl_b32 s{T0}, s{S_WQ}, 13", f"s_add_u32 s{T0}, s{T0}, {CB_OFF}", f"s_xor_b32 s{T1}, s{S_WQ}, 2", f"s_lshl_b32 s{T1}, s{T1}, 13",
              f"s_add_u32 s{T1}, s{T1}, {CB_OFF}", f"v_add_u32 v{VCW}, s{T0}, v{VL16}", f"v_add_u32 v{VCR}, s{T1}, v{VL16}",
              f"v_lshl_add_u32 v{VCW4}, v{VL}, 2, s{T0}", f"v_lshl_add_u32 v{VCR4}, v{VL}, 2, s{T1}"]
        n3 = (len(o) + 2)//3
        d[5] += one(o[:n3]); d[6] += one(o[n3:2*n3]); d[7] += one(o[2*n3:])
        d[6].insert(0, [f"s_add_u32 s{T1}, s{S_H0}, s{S_K2}", f"s_mul_i32 s{T1}, s{T1}, 5", f"s_mul_i32 s{S_OO}, s{S_TB}, 160", f"s_add_u32 s{S_OO}, s{S_OO}, s{T1}",
                        f"s_lshl_b32 s{S_OO}, s{S_OO}, 8", f"s_add_u32 s{S_OO}, s{S_OO}, {OF_OFF}"] + [f"v_mov_b32 v{r}, -1" for r in range(204, 208)] +
                       [f"buffer_store_dwordx4 v[204:207], v{VL16}, s[{SWS}:{SWS+3}], s{S_OO} offen sc1",
                        f"buffer_store_dwordx4 v[204:207], v{VL16}, s[{SWS}:{SWS+3}], s{S_OO} offen offset:1024 sc1",
                        f"buffer_store_dwordx4 v[204:207], v{VL16}, s[{SWS}:{SWS+3}], s{S_OO} offen offset:1536 sc1"])
        d[2] += bg_common()
        return d

    def p1_phase(tag, nA, nB, ND, dma, reads, FA, FB, ACC, addr_regs, early):
        nR = 2*nA + nB
        nm = nA*nB
        dw = [(aa, i) for aa in range(nA) for i in range(4)]
        hd = len(dw)//2; qd = hd//2
        def cs_ops(p, lst):
            o = []
            for aa, i in lst:
                o += [f"v_lshlrev_b32 v2, 16, v{FA(p,aa)+i}", f"v_and_b32 v3, 0xffff0000, v{FA(p,aa)+i}",
                      f"v_add_f32 v{CSA+2*aa}, v{CSA+2*aa}, v2", f"v_add_f32 v{CSA+2*aa+1}, v{CSA+2*aa+1}, v3"]
            return o
        def group(p, rd_sg, extra=(), dma_ch=(), bg=(), first=False, skip=False):
            extra = list(extra); bg = list(bg)
            rd = reads(rd_sg) if (rd_sg is not None and "r" not in ABL) else []
            per = (len(extra) + nm - 1)//nm
            bper = (len(bg) + nm - 1)//nm
            rper = (len(rd) + 1)//2
            dch = list(dma_ch)
            k = 0
            for aa in range(nA):
                for b in range(nB):
                    if "m" not in ABL and not skip:
                        a(f"v_mfma_f32_32x32x16_bf16 {vr(ACC(aa,b),16)}, {vr(FA(p,aa),4)}, {vr(FB(p,b),4)}, {'0' if first else vr(ACC(aa,b),16)}")
                    for e in rd[rper*k:rper*(k+1)]: a(e)
                    ndc = (len(dch) + (nm - k) - 1)//(nm - k)
                    emit(dch[:ndc]); dch = dch[ndc:]
                    for e in extra[per*k:per*(k+1)]: a(e)
                    emit(bg[bper*k:bper*(k+1)])
                    k += 1
        def upd(sg, st):
            sreg = S_I if st % 3 == 2 else S_DL
            return [f"v_add_u32 v{r}, s{sreg}, v{r}" for r in addr_regs(sg)] if st < 9 else []
        def run(role):
            bgd = bg_H() if role == "H" else {i: [] for i in range(10)}
            if role == "L":
                o = bg_common() + bg_L(); n = (len(o) + 4)//5
                for i in range(5): bgd[1+i] = o[n*i:n*(i+1)]
            for it in range(10):
                if role == "L":
                    if it == 0: emit(dma(1))
                    a(f"s_waitcnt vmcnt({ND if it < 9 else 0})")
                if SP and it == 0: stamp(a, 3)
                a("s_barrier")
                if SP and it == 0: stamp(a, 4)
                if "I" in ABL:
                    a(f"v_writelane_b32 v241, s12, {it}"); a("s_memtime s[12:13]")
                pre = []
                if role == "H":
                    if it == 4:
                        a(f"v_mov_b32 v4, {FL_OFF + 96}"); a("ds_read_b32 v203, v4")
                        pre = [["s_mov_b32 exec_lo, 1", "s_mov_b32 exec_hi, 1", f"s_mov_b32 s{T0}, {STF_OFF}",
                                f"buffer_store_dwordx2 v[202:203], v255, s[{SWS}:{SWS+3}], s{T0} offen sc1", "s_mov_b64 exec, -1"],
                               [f"v_readfirstlane_b32 s{S_NON}, v203"], [f"v_xor_b32 v{VFR}, 8, v{VFL}"]]
                    if it == 8:
                        a("s_waitcnt vmcnt(0)")
                        a("s_mov_b64 exec, 1")
                        a(f"buffer_store_dword v203, v242, s[{SWS}:{SWS+3}], s{S_OFL} offen sc1")
                        a("s_mov_b64 exec, -1")
                    if it == 8 or it == 9:
                        Lx = lab("hk")
                        a(f"s_cmp_lg_u32 s{S_W}, 4")
                        a(f"s_cbranch_scc1 {Lx}")
                        if it == 8:
                            a(f"s_lshl_b32 s{T0}, s{S_TOK}, 3")
                            a(f"s_add_u32 s{S_O2}, s{T0}, {STF_OFF}")
                            a(f"buffer_load_dwordx4 v[160:163], v{VL16}, s[{SWS}:{SWS+3}], s{S_O2} offen sc1")
                            a(f"buffer_load_dwordx4 v[164:167], v{VL16}, s[{SWS}:{SWS+3}], s{S_O2} offen offset:{1024 if nB == 2 else 0} sc1")
                        if it == 9:
                            a(f"s_call_b64 s[{T4}:{T5}], L_stats")
                            if early: mbx_load(0)
                        a(f"{Lx}:")
                elif it == 9:
                    a(f"v_mov_b32 v4, {FL_OFF + 96}"); a("ds_read_b32 v5, v4")
                    pre = [[f"v_readfirstlane_b32 s{S_NON}, v5"]]
                xl = 1 if ((role == "H" and it == 3) or (role == "L" and it == 9)) else 0
                ch = dma(it + 2) if (role == "L" and it < 8 and "g" not in ABL) else []
                q = (len(ch) + 3)//4
                bg = bgd[it]; bq = (len(bg) + 3)//4
                if it == 0: bq = (len(bg) + 1)//2; b0, b1, b2, b3 = [], [], bg[:bq], bg[bq:]
                else: b0, b1, b2, b3 = bg[:bq], bg[bq:2*bq], bg[2*bq:3*bq], bg[3*bq:]
                group(2, 0, extra=(upd(3, it-1) + cs_ops(2, dw[hd:hd+qd])) if it else [], dma_ch=ch[0:q], bg=b0, skip=(it == 0))
                group(3, 1, extra=upd(0, it) + (cs_ops(2, dw[hd+qd:]) if it else []), dma_ch=ch[q:2*q], bg=b1, skip=(it == 0))
                a(f"s_waitcnt lgkmcnt({nR})")
                group(0, 2, extra=upd(1, it) + cs_ops(0, dw[:qd]), dma_ch=ch[2*q:3*q], bg=pre + b2, first=(it == 0))
                a(f"s_waitcnt lgkmcnt({nR})")
                group(1, 3, extra=upd(2, it) + cs_ops(0, dw[qd:hd]), dma_ch=ch[3*q:], bg=b3)
                a("s_waitcnt lgkmcnt(0)")
        if not SP: stamp(a, 1)
        a(f"s_cmp_lg_u32 s{S_ISH}, 0")
        a(f"s_cbranch_scc1 L_{tag}_h")
        run("L")
        a(f"s_branch L_{tag}_fin")
        a(f"L_{tag}_h:")
        if "T" in ABL: touches()
        a(f"v_lshlrev_b32 v1, 2, v{VT}")
        a(f"v_add_u32 v1, {FL_OFF}, v1")
        a(f"ds_write_b32 v1, v242")
        run("H")
        a(f"L_{tag}_fin:")
        group(2, None, extra=cs_ops(2, dw[hd:]))
        group(3, None)
        if not SP: stamp(a, 2)
        if "I" in ABL:
            a(f"v_writelane_b32 v241, s12, 10")
            a("s_waitcnt lgkmcnt(0)")
            a(f"v_writelane_b32 v241, s4, 0")
            a(f"v_writelane_b32 v241, s8, 11")
            a(f"s_lshl_b32 s{T0}, s2, 3"); a(f"s_add_u32 s{T0}, s{T0}, s3"); a(f"s_lshl_b32 s{T0}, s{T0}, 8"); a(f"s_add_u32 s{T0}, s{T0}, 0x1000000")
            a(f"v_lshlrev_b32 v2, 2, v{VL}")
            a(f"buffer_store_dword v241, v2, s[{SWS}:{SWS+3}], s{T0} offen")
        if "X" in ABL: endpgm(a, 0)
        a(f"s_mul_i32 s{T2}, s{S_MH}, {nA}")
        a(f"s_lshl_b32 s{T0}, s{T2}, 10")
        a(f"s_add_u32 s{T0}, s{T0}, {CS_OFF}")
        a(f"v_add_u32 v1, s{T0}, v{VL16}")
        a(f"s_lshl_b32 s{T1}, s{S_ROT}, 2")
        a(f"v_add_u32 v9, s{T1}, v1")
        for aa in range(nA):
            a(f"v_add_f32 v{2+aa}, v{CSA+2*aa}, v{CSA+2*aa+1}")
        for aa in range(nA):
            a(f"v_cvt_pk_bf16_f32 v{5+aa}, v{2+aa}, v{2+aa}")
        for aa in range(nA):
            a(f"v_lshlrev_b32 v{5+aa}, 16, v{5+aa}")
        for aa in range(nA):
            a(f"v_sub_f32 v{5+aa}, v{2+aa}, v{5+aa}")
        for aa in range(nA):
            a(f"v_cvt_pk_bf16_f32 v{5+aa}, v{2+aa}, v{5+aa}")
            a(f"ds_write_b32 v9, v{5+aa} offset:{1024*aa}")
        if early:
            Lx = lab("nost")
            a(f"s_cmp_lg_u32 s{S_W}, 4")
            a(f"s_cbranch_scc1 {Lx}")
            a("s_waitcnt vmcnt(0)")
            mbx_test()
            a(f"s_cbranch_scc0 {Lx}")
            lds_set(16)
            a(f"{Lx}:")
        a(f"s_lshl_b32 s{T1}, s{S_ROT}, {8 + (nB-1)}")
        a(f"s_add_u32 s{T1}, s{T1}, {ST_OFF}")
        a(f"v_lshl_add_u32 v5, v{VT}, 3, s{T1}")
        a(f"v_mov_b32 v6, {FL_OFF + 64}")
        a("s_waitcnt lgkmcnt(0)")
        a("s_barrier")
        for b in range(nB):
            a(f"ds_read_b64 {vr(160+4*b,2)}, v5 offset:{256*b}")
        for aa in range(nA):
            a(f"ds_read_b128 {vr(10+4*aa,4)}, v1 offset:{1024*aa}")
        if early:
            a("ds_read_b32 v4, v6")
        a(f"s_cmp_eq_u32 s{S_ISH}, 0")
        a(f"s_cbranch_scc1 L_{tag}_np")
        a("s_setprio 2")
        a(f"L_{tag}_np:")
        a(f"s_waitcnt lgkmcnt({nA + (1 if early else 0)})")
        for b in range(nB):
            a(f"v_mov_b32 v{26+b}, v{161+4*b}")
            for j in (1, 2, 3):
                a(f"v_mov_b32 v{160+4*b+j}, v{160+4*b}")
        a("s_waitcnt lgkmcnt(0)")
        a("s_nop 0")
        for b in range(nB):
            for aa in range(nA):
                a(f"v_mfma_f32_32x32x16_bf16 {vr(ACC(aa,b),16)}, {vr(10+4*aa,4)}, {vr(160+4*b,4)}, {vr(ACC(aa,b),16)}")

    FA = lambda p, aa: FBASE[p] + 4*aa
    FB = lambda p, b: FBASE[p] + 8 + 4*b
    ACC = lambda aa, b: 64 + 16*(2*aa + b)
    def reads_gu(sg):
        o = []
        for aa in range(2):
            for n in range(2):
                o.append(f"ds_read_b64_tr_b16 {vr(FA(sg,aa)+2*n,2)}, v{VAg(sg,aa)} offset:{512*n}")
            o.append(f"ds_read_b128 {vr(FB(sg,aa),4)}, v{VB(sg)} offset:{4096*aa}")
        return o
    p1_phase("gu", 2, 2, 12, dma_gu, reads_gu, FA, FB, ACC, lambda sg: [VAg(sg,0), VAg(sg,1), VB(sg)], True)
    a(f"v_readfirstlane_b32 s{S_EARLY}, v4")
    a(f"v_mul_f32 v26, v26, v26")
    a(f"v_mul_f32 v28, v27, v27")
    a(f"s_and_b32 s{S_EARLY}, s{S_EARLY}, s{S_ISH}")
    a(f"s_cmp_eq_u32 s{S_EARLY}, 1")
    a(f"s_cbranch_scc0 L_gu_ne")
    a(f"s_call_b64 s[{T4}:{T5}], L_attn_loads")
    a("L_gu_ne:")
    a(f"s_lshr_b32 s{T0}, s{S_TOK}, 5")
    a(f"s_lshl_b32 s{T1}, s{S_ROT}, 1")
    a(f"s_add_u32 s{T0}, s{T0}, s{T1}")
    a(f"s_mul_i32 s{T0}, s{T0}, 96")
    a(f"s_lshl_b32 s{T1}, s{S_COL}, 2")
    a(f"s_add_u32 s{T0}, s{T0}, s{T1}")
    a(f"s_add_u32 s{T0}, s{T0}, s{T2}")
    a(f"s_lshl_b32 s{T0}, s{T0}, 10")
    a(f"s_add_u32 s{T0}, s{T0}, {HF_OFF}")
    a(f"s_add_u32 s{T1}, s{T0}, {96*1024}")
    a("s_nop 1")
    for b in range(2):
        for aa in range(2):
            A = ACC(aa, b)
            for j in range(0, 8, 2):
                a(f"v_pk_mul_f32 {vr(A+j,2)}, {vr(A+j,2)}, {vr(26+2*b,2)} op_sel_hi:[1,0]")
            for j in range(0, 8, 2):
                a(f"v_pk_mul_f32 {vr(A+j,2)}, {vr(A+j,2)}, {vr(A+8+j,2)}")
            for q in range(4):
                a(f"v_cvt_pk_bf16_f32 v{A+q}, v{A+2*q}, v{A+2*q+1}")
            a(f"buffer_store_dwordx4 {vr(A,4)}, v{VL16}, s[{SWS}:{SWS+3}], s{T0 if b == 0 else T1} offen offset:{1024*aa} sc1")
    a("s_branch L_p2")

    a("L_stats:")
    a(f"s_mov_b32 s{T1}, 0")
    a("L_stats_l:")
    a("s_waitcnt vmcnt(0)")
    a(f"v_xor_b32 v4, s{S_NON}, v161")
    a(f"v_xor_b32 v5, s{S_NON}, v163")
    a(f"v_xor_b32 v6, s{S_NON}, v165")
    a(f"v_xor_b32 v7, s{S_NON}, v167")
    a("v_or3_b32 v4, v4, v5, v6")
    a("v_or_b32 v4, v4, v7")
    a("v_cmp_ne_u32 vcc, 0, v4")
    a(f"s_add_u32 s{T1}, s{T1}, 1")
    a("s_cmp_eq_u64 vcc, 0")
    a("s_cbranch_scc1 L_stats_d")
    a("s_sleep 8")
    a(f"s_cmp_lt_u32 s{S_IDX}, 24")
    a(f"s_cselect_b32 s{T0}, 1024, 0")
    a(f"s_add_u32 s{T0}, s{T0}, s{S_O2}")
    a(f"buffer_load_dwordx4 v[160:163], v{VL16}, s[{SWS}:{SWS+3}], s{S_O2} offen sc1")
    a(f"buffer_load_dwordx4 v[164:167], v{VL16}, s[{SWS}:{SWS+3}], s{T0} offen sc1")
    a(f"s_cmp_lt_u32 s{T1}, {SPIN_MAX}")
    a("s_cbranch_scc1 L_stats_l")
    a("L_stats_d:")
    a(f"s_mov_b32 s{T0}, 0x01000100")
    for r in (160, 162, 164, 166):
        a(f"v_and_b32 v{r+1}, 0xffff0000, v{r}")
        a(f"v_rcp_f32 v{r+1}, v{r+1}")
        a(f"v_perm_b32 v{r}, v{r}, v{r}, s{T0}")
    a(f"v_add_u32 v4, {ST_OFF}, v{VL16}")
    a(f"ds_write_b128 v4, v[160:163]")
    a(f"ds_write_b128 v4, v[164:167] offset:1024")
    a(f"s_setpc_b64 s[{T4}:{T5}]")

    a("L_q_rd:")
    VAq = lambda sg: 10 + sg
    a(f"v_lshlrev_b32 v2, 6, v2")
    a(f"v_lshl_add_u32 v2, v3, 5, v2")
    a(f"v_and_b32 v3, 3, v{VL}")
    a(f"v_lshl_add_u32 v2, v3, 3, v2")
    a(f"s_mul_i32 s{T0}, s{S_MH}, {3*4096}")
    a(f"s_add_u32 s{T0}, s{T0}, 16384")
    for sg in range(4):
        a(f"s_xor_b32 s{T1}, s{S_ROT}, {sg}")
        a(f"s_lshl_b32 s{T1}, s{T1}, 10")
        a(f"s_add_u32 s{T1}, s{T1}, s{T0}")
        a(f"v_add_u32 v{VAq(sg)}, s{T1}, v2")
    FA = lambda p, aa: FBASE[p] + 4*aa
    FB = lambda p, b: FBASE[p] + 12
    ACC = lambda aa, b: 64 + 16*aa
    def reads_q(sg):
        o = [f"ds_read_b128 {vr(FB(sg,0),4)}, v{VB(sg)}"]
        for aa in range(3):
            for n in range(2):
                o.append(f"ds_read_b64_tr_b16 {vr(FA(sg,aa)+2*n,2)}, v{VAq(sg)} offset:{4096*aa+256*n}")
        return o
    p1_phase("q", 3, 1, 10, dma_q, reads_q, FA, FB, ACC, lambda sg: [VAq(sg), VB(sg)], False)
    a(f"s_lshr_b32 s{T0}, s{S_TOK}, 5")
    a(f"s_add_u32 s{T0}, s{T0}, s{S_ROT}")
    a(f"s_mul_i32 s{T1}, s{T0}, 3584")
    a(f"s_add_u32 s{T1}, s{T1}, {KVF_OFF}")
    a(f"s_mul_i32 s{T0}, s{T0}, 40960")
    a(f"s_mul_i32 s{T3}, s{S_COL}, 6")
    a(f"s_add_u32 s{T2}, s{T2}, s{T3}")
    a(f"s_lshl_b32 s{T3}, s{T2}, 11")
    a(f"s_add_u32 s{T0}, s{T0}, s{T3}")
    a(f"v_mul_f32 v28, {f32bits(QSCALE)}, v26")
    a("s_nop 1")
    for aa in range(3):
        A = ACC(aa, 0)
        Lk, Ld = lab("kv"), lab("sd")
        a(f"s_cmp_lt_u32 s{T2}, {20-aa}")
        a(f"s_cbranch_scc0 {Lk}")
        for j in range(0, 16, 2):
            a(f"v_pk_mul_f32 {vr(A+j,2)}, {vr(A+j,2)}, v[28:29] op_sel_hi:[1,0]")
        for q in range(8):
            a(f"v_cvt_pk_bf16_f32 v{A+q}, v{A+2*q}, v{A+2*q+1}")
        for i in range(2):
            a(f"buffer_store_dwordx4 {vr(A+4*i,4)}, v{VL16}, s[{SWS}:{SWS+3}], s{T0} offen offset:{(2048*aa+1024*i) & 4095} sc1")
        if aa == 1:
            a(f"s_add_u32 s{T0}, s{T0}, 4096")
        a(f"s_branch {Ld}")
        a(f"{Lk}:")
        if aa == 2:
            a(f"s_cmp_eq_u32 s{T2}, 18")
            a(f"s_cbranch_scc0 {Ld}")
            for j in range(0, 12, 2):
                a(f"v_pk_mul_f32 {vr(A+j,2)}, {vr(A+j,2)}, v[26:27] op_sel_hi:[1,0]")
            for q in range(6):
                a(f"v_cvt_pk_bf16_f32 v{A+q}, v{A+2*q}, v{A+2*q+1}")
            a(f"v_mov_b32 v2, 0x3f803f80")
            a(f"v_cndmask_b32 v{A+5}, v{A+5}, 0, s[{S_UP}:{S_UP+1}]")
            a(f"v_cndmask_b32 v{A+4}, v{A+4}, v2, s[{S_UP}:{S_UP+1}]")
            a(f"buffer_store_dwordx4 {vr(A,4)}, v{VL16}, s[{SWS}:{SWS+3}], s{T1} offen sc1")
            a(f"buffer_store_dwordx2 {vr(A+4,2)}, v{VL8}, s[{SWS}:{SWS+3}], s{T1} offen offset:1024 sc1")
        elif aa == 0:
            for j in range(0, 12, 2):
                a(f"v_pk_mul_f32 {vr(A+j,2)}, {vr(A+j,2)}, v[26:27] op_sel_hi:[1,0]")
            a(f"s_mul_i32 s{T3}, s{S_ROT}, 2304")
            a(f"s_add_u32 s{T3}, s{T3}, {VT_OFF}")
            a(f"v_mul_u32_u24 v1, {4*72}, v{VH}")
            a(f"v_lshl_add_u32 v1, v{VT}, 1, v1")
            a(f"v_add_u32 v1, s{T3}, v1")
            a(f"v_mul_u32_u24 v2, 72, v{VT}")
            a(f"v_lshl_add_u32 v2, v{VH}, 3, v2")
            a(f"v_add_u32 v2, s{T3}, v2")
            a(f"v_cndmask_b32 v{A+8}, v{A+8}, 1.0, s[{S_UP}:{S_UP+1}]")
            for j in (9, 10, 11):
                a(f"v_cndmask_b32 v{A+j}, v{A+j}, 0, s[{S_UP}:{S_UP+1}]")
            a(f"v_cndmask_b32 v{A+12}, 1.0, 0, s[{S_UP}:{S_UP+1}]")
            for j in (13, 14, 15):
                a(f"v_mov_b32 v{A+j}, 0")
            for q in range(8):
                a(f"v_cvt_pk_bf16_f32 v{A+q}, v{A+2*q}, v{A+2*q+1}")
            for j in range(16):
                row = 8*(j >> 2) + (j & 3)
                op = "ds_write_b16_d16_hi" if j & 1 else "ds_write_b16"
                a(f"{op} v1, v{A+(j>>1)} offset:{row*72}")
            for f in range(2):
                a(f"ds_read2_b64 {vr(A+8+4*f,4)}, v2 offset0:{4*f} offset1:{4*f+2}")
            a("s_waitcnt lgkmcnt(0)")
            for f in range(2):
                a(f"buffer_store_dwordx4 {vr(A+8+4*f,4)}, v{VL16}, s[{SWS}:{SWS+3}], s{T1} offen offset:{1536+1024*f} sc1")
        a(f"{Ld}:")

    a("L_p2:")
    if not SP: stamp(a, 3)
    a(f"v_mov_b32 v15, 1")
    a(f"v_mov_b32 v14, s{S_NON}")
    a(f"s_cmp_lg_u32 s{S_ISH}, 0")
    a(f"s_cbranch_scc1 L_attn")
    KQ = S_WQ
    S_OA, S_OB, S_M, S_IT = 78, 82, 80, 81
    VXR = 180
    ACC = lambda m: 64 + 16*m
    FA0 = 144
    FB = lambda s: 192 + 4*s
    make_srd(a, SA, P_WD, 1536*1280)
    make_srd(a, SB2, P_WS, WS_SIZE)
    make_srd(a, SC, P_OUT, 2048*1280)
    a(f"s_mul_i32 s{S_OA}, s{KQ}, {24*16*1280}")
    a(f"s_mul_i32 s{S_M}, s{KQ}, {RSZ}")
    a(f"s_mul_i32 s{S_OB}, s{S_TB}, 96")
    a(f"s_mul_i32 s{T0}, s{KQ}, 24")
    a(f"s_add_u32 s{S_OB}, s{S_OB}, s{T0}")
    a(f"s_lshl_b32 s{S_OB}, s{S_OB}, 10")
    a(f"s_add_u32 s{S_OB}, s{S_OB}, {HF_OFF}")
    def dma_a(slot):
        a(f"s_add_u32 m0, s{S_M}, {slot*5120}")
        a(f"s_add_u32 s{T2}, s{S_M}, {slot*5120+4096}")
        for j in range(4):
            a(f"buffer_load_dwordx4 v{VD[j]}, s[{SA}:{SA+3}], s{S_OA} offen offset:{1024*j} lds")
        a(f"s_mov_b32 m0, s{T2}")
        a("s_nop 0")
        a(f"buffer_load_dwordx4 v{VD[4]}, s[{SA}:{SA+3}], s{S_OA} offen lds")
        a(f"s_add_u32 s{S_OA}, s{S_OA}, {16*1280}")
    def load_b(reg):
        a(f"buffer_load_dwordx4 {vr(reg,4)}, v{VL16}, s[{SB2}:{SB2+3}], s{S_OB} offen sc1")
        a(f"s_add_u32 s{S_OB}, s{S_OB}, 1024")
    a("s_waitcnt vmcnt(0)")
    a(f"ds_write_b32 v{VFL}, v15")
    if SB: stamp(a, 1)
    for m in range(5):
        zero_mfma(ACC(m), VZ)
    a(f"s_cmp_lg_u32 s{S_W}, 0")
    a(f"s_cbranch_scc1 L_l_ring")
    lds_wait(0, 8, sleep=1)
    if SB: stamp(a, 2)
    a(f"s_lshr_b32 s{T0}, s{S_TOK}, 1")
    a(f"s_add_u32 s{T0}, s{T0}, {HFL_OFF}")
    a(f"s_add_u32 s{T1}, s{S_TOK}, {QFL_OFF}")
    a(f"s_cmp_lt_u32 s{S_IDX}, 24")
    a(f"s_cselect_b32 s{T0}, s{T0}, s{T1}")
    a(f"s_lshl_b32 s{T1}, s{S_COL}, 2")
    a(f"s_add_u32 s{T0}, s{T0}, s{T1}")
    a(f"s_lshr_b32 s{T1}, s{S_TOK}, 5")
    a(f"s_add_u32 s{T1}, s{T1}, {KVFL_OFF - 128}")
    a(f"v_lshl_add_u32 v3, v{VL}, 7, s{T1}")
    a(f"v_writelane_b32 v3, s{T0}, 0")
    a(f"s_cmp_eq_u32 s{S_W}, 0")
    a(f"s_lshr_b32 s{T1}, s2, 1")
    a(f"s_cmp_ge_u32 s{S_IDX}, 24")
    a(f"s_cselect_b32 s{T1}, s{S_COL}, 0")
    a(f"s_cmp_eq_u32 s{T1}, 3")
    a(f"s_cselect_b32 exec_lo, 0x1ff, 1")
    a("s_mov_b32 exec_hi, 0")
    a(f"buffer_store_dword v14, v3, s[{SWS}:{SWS+3}], 0 offen sc1")
    a("s_mov_b64 exec, -1")
    a("L_l_ring:")
    for s in range(RING):
        dma_a(s)
    for m in range(5):
        a(f"buffer_load_dwordx2 {vr(VXR+2*m,2)}, v{VXO}, s[{SX}:{SX+3}], 0 offen offset:{64*m}")
    a(f"s_cmp_lg_u32 s{S_W}, 0")
    a(f"s_cbranch_scc1 L_l_pub")
    mbx_wait(1, 10)
    lds_set(18)
    a("L_l_pub:")
    lds_wait(18, sleep=8)
    for s in range(RING):
        load_b(FB(s))
    a(f"s_mov_b32 s{S_IT}, 0")
    a("s_waitcnt vmcnt(0)")
    if not SP: stamp(a, 4)
    a(".p2align 6")
    a("L_gloop:")
    a(f"s_cmp_lt_u32 s{S_IT}, 3")
    a(f"s_cbranch_scc1 L_gl1")
    a(f"s_mov_b64 s[{SA}:{SA+1}], s[{P_WO}:{P_WO+1}]")
    a(f"s_mov_b32 s{SA+2}, {640*1280}")
    a(f"s_mov_b32 s{SB2+2}, 0")
    a(f"s_mul_i32 s{S_OA}, s{KQ}, {160*1280}")
    a("L_gl1:")
    def rd_a(dst, slot, va, nrow):
        for m in range(5):
            for n in range(2):
                a(f"ds_read_b64_tr_b16 {vr(dst+4*m+2*n,2)}, v{va} offset:{slot*5120 + n*nrow + m*64}")
    def mm(fa, fb):
        for m in range(5):
            a(f"v_mfma_f32_32x32x16_bf16 {vr(ACC(m),16)}, {vr(fa+4*m,4)}, {vr(fb,4)}, {vr(ACC(m),16)}")
    for s in range(RING):
        a(f"s_waitcnt vmcnt({6*(RING-1)})")
        rd_a(FA0, s, VAR, 2560)
        a("s_waitcnt lgkmcnt(0)")
        dma_a(s)
        mm(FA0, FB(s))
        load_b(FB(s))
    a(f"s_add_u32 s{S_IT}, s{S_IT}, 1")
    a(f"s_cmp_lt_u32 s{S_IT}, 4")
    a(f"s_cbranch_scc1 L_gloop")
    PRE = [144, 2, 22, 42]
    OB = lambda k: 192 + 4*k
    a(f"s_mov_b32 s{SB2+2}, {WS_SIZE}")
    a(f"s_mul_i32 s{S_OB}, s{S_TB}, 40")
    a(f"s_mul_i32 s{T0}, s{KQ}, 10")
    a(f"s_add_u32 s{S_OB}, s{S_OB}, s{T0}")
    a(f"s_lshl_b32 s{S_OB}, s{S_OB}, 10")
    a(f"s_add_u32 s{S_OB}, s{S_OB}, {OF_OFF}")
    a(f"s_add_u32 s{T0}, s{S_OB}, 4096")
    a(f"s_add_u32 s{T1}, s{S_OB}, 8192")
    a("s_waitcnt vmcnt(12)")
    for k in range(4):
        rd_a(PRE[k], k, VAR2, 1280)
    a("s_waitcnt lgkmcnt(0)")
    for k in range(4):
        dma_a(k)
    for m in range(5):
        for q in range(2):
            a(f"v_lshlrev_b32 v{232+0}, 16, v{VXR+2*m+q}")
            a(f"v_and_b32 v{233}, 0xffff0000, v{VXR+2*m+q}")
            a(f"v_add_f32 v{ACC(m)+2*q}, v{ACC(m)+2*q}, v232")
            a(f"v_add_f32 v{ACC(m)+2*q+1}, v{ACC(m)+2*q+1}, v233")
    a(f"v_mov_b32 v232, {FL_OFF + 80}")
    a("L_ow:")
    a("ds_read_b128 v[236:239], v232")
    a("s_waitcnt lgkmcnt(0)")
    a("v_bitop3_b32 v236, v236, v237, v238 bitop3:0xfe")
    a("v_or_b32 v236, v236, v239")
    a("s_nop 0")
    a(f"v_readfirstlane_b32 s{T4}, v236")
    a("s_nop 0")
    a(f"s_cmp_eq_u32 s{T4}, 1")
    a(f"s_cbranch_scc1 L_owd")
    a("s_sleep 6")
    a(f"s_branch L_ow")
    a("L_owd:")
    a(f"s_mov_b32 s{T5}, 0")
    def ld_o(k):
        a(f"buffer_load_dwordx4 {vr(OB(k),4)}, v{VL16}, s[{SB2}:{SB2+3}], s{[S_OB, T0, T1][k >> 2]} offen offset:{1024*(k & 3)} sc1")
    for k in range(10):
        ld_o(k)
    for k in range(10):
        a(f"s_waitcnt vmcnt({9-k})")
        a(f"L_oc{k}:")
        a(f"v_max3_u32 v232, v{OB(k)}, v{OB(k)+1}, v{OB(k)+2}")
        a(f"v_max_u32 v232, v232, v{OB(k)+3}")
        a(f"v_cmp_eq_u32 vcc, -1, v232")
        if k >= 4:
            a(f"s_waitcnt lgkmcnt({min(15, 10*min(3, 9-k))})")
        a("s_cmp_lg_u64 vcc, 0")
        a(f"s_cbranch_scc1 L_or{k}")
        a(f"L_og{k}:")
        if k == 0 and STAMPS and not SB and not SP: a("s_memtime s[6:7]")
        mm(PRE[k & 3], OB(k))
        if k + 4 < 10:
            kk = k + 4
            rd_a(PRE[k & 3], kk if kk < 6 else kk - 6, VAR2, 1280)
    if STAMPS and not SB and not SP: a("s_memtime s[8:9]")
    a(f"v_mov_b32 v15, 1")
    a(f"v_mov_b32 v12, {FL_OFF+48}")
    a("s_nop 5")
    for m in range(5):
        for i in range(1, 4):
            a(f"ds_write_b128 v{VRW}, {vr(ACC(m)+4*i,4)} offset:{((i-1)*5+m)*1024}")
    a("s_waitcnt lgkmcnt(0)")
    a(f"ds_write_b32 v{VFL}, v15 offset:48")
    a("L_gpoll:")
    a(f"ds_read_b128 v[4:7], v12")
    a("s_waitcnt lgkmcnt(0)")
    a("v_bitop3_b32 v4, v4, v5, v6 bitop3:0x80")
    a("v_and_b32 v4, v4, v7")
    a("s_nop 0")
    a(f"v_readfirstlane_b32 s{T0}, v4")
    a("s_nop 0")
    a(f"s_cmp_eq_u32 s{T0}, 1")
    a(f"s_cbranch_scc0 L_gpoll")
    for m in range(5):
        for i in range(1, 4):
            a(f"ds_read_b128 {vr(ACC(m)+4*i,4)}, v{VRD[i]} offset:{((i-1)*5+m)*1024}")
    for m in range(5):
        A = ACC(m)
        a(f"s_waitcnt lgkmcnt({12-3*m})")
        for h2 in range(2):
            a(f"v_pk_add_f32 {vr(A+2*h2,2)}, {vr(A+2*h2,2)}, {vr(A+4+2*h2,2)}")
            a(f"v_pk_add_f32 {vr(A+8+2*h2,2)}, {vr(A+8+2*h2,2)}, {vr(A+12+2*h2,2)}")
        for h2 in range(2):
            a(f"v_pk_add_f32 {vr(A+2*h2,2)}, {vr(A+2*h2,2)}, {vr(A+8+2*h2,2)}")
        a(f"v_cvt_pk_bf16_f32 v{A}, v{A}, v{A+1}")
        a(f"v_cvt_pk_bf16_f32 v{A+1}, v{A+2}, v{A+3}")
        a(f"buffer_store_dwordx2 {vr(A,2)}, v{VXO}, s[{SC}:{SC+3}], 0 offen offset:{64*m}")
    endpgm(a, 0)

    for k in range(10):
        a(f"L_or{k}:")
        a("s_waitcnt vmcnt(0)")
        for j in range(k, 10): ld_o(j)
        a(f"s_add_u32 s{T5}, s{T5}, 1")
        a(f"s_cmp_lt_u32 s{T5}, {SPIN_MAX}")
        a(f"s_waitcnt vmcnt({9-k})")
        a(f"s_cbranch_scc1 L_oc{k}")
        a(f"s_branch L_og{k}")

    S_IT = 78
    def load_kv(r):
        a(f"buffer_load_dwordx4 {vr(K1(r),4)}, v{VL16}, s[{SWS}:{SWS+3}], s{S_KV} offen sc1")
        a(f"buffer_load_dwordx2 {vr(K2(r),2)}, v{VL8}, s[{SWS}:{SWS+3}], s{S_KV} offen offset:1024 sc1")
        a(f"buffer_load_dwordx4 {vr(V1(r),4)}, v{VL16}, s[{SWS}:{SWS+3}], s{S_KV} offen offset:1536 sc1")
        a(f"buffer_load_dwordx4 {vr(V2(r),4)}, v{VL16}, s[{SWS}:{SWS+3}], s{S_KV} offen offset:2560 sc1")
        a(f"s_add_u32 s{S_KV}, s{S_KV}, 3584")
    a("L_attn_loads:")
    a(f"s_mul_i32 s{T0}, s{S_TB}, 40960")
    for d in (Q1(0), Q1(0)+2, Q2(0)):
        a(f"buffer_load_dwordx2 {vr(d,2)}, v{d}, s[{SWS}:{SWS+3}], s{T0} offen sc1")
    load_kv(0)
    for q in range(1, 4):
        for d in (Q1(q), Q1(q)+2, Q2(q)):
            a(f"buffer_load_dwordx2 {vr(d,2)}, v{d}, s[{SWS}:{SWS+3}], s{T0} offen sc1")
    for r in range(1, 3):
        load_kv(r)
    a(f"s_setpc_b64 s[{T4}:{T5}]")

    a("L_attn:")
    for q in range(4):
        zero_mfma(O(q), V2(3))
    a(f"s_cmp_eq_u32 s{S_EARLY}, 1")
    a(f"s_cbranch_scc1 L_attn_go")
    a("s_waitcnt vmcnt(0)")
    a(f"ds_write_b32 v{VFL}, v15")
    if SB: stamp(a, 1)
    a(f"s_cmp_lg_u32 s{S_W}, 4")
    a(f"s_cbranch_scc1 L_attn_w")
    mbx_wait(0, 4)
    lds_set(17)
    a("L_attn_w:")
    lds_wait(17, sleep=1)
    if SB: stamp(a, 2)
    a(f"s_call_b64 s[{T4}:{T5}], L_attn_loads")
    a("L_attn_go:")
    for r in range(P1, P1+4):
        a(f"v_mov_b32 v{r}, 0")
    a(f"s_mov_b32 s{S_IT}, 0")
    a("s_waitcnt vmcnt(8)")
    if not SP: stamp(a, 4)
    def qk1(buf, r, q): a(f"v_mfma_f32_32x32x16_bf16 {vr(S(buf),16)}, {vr(K1(r),4)}, {vr(Q1(q),4)}, 0")
    def qk2(buf, r, q): a(f"v_mfma_f32_32x32x8_bf16 {vr(S(buf),16)}, {vr(K2(r),2)}, {vr(Q2(q),2)}, {vr(S(buf),16)}")
    def pv(q, vreg, preg): a(f"v_mfma_f32_32x32x16_bf16 {vr(O(q),16)}, {vr(vreg,4)}, {vr(preg,4)}, {vr(O(q),16)}")
    def E(buf, i0):
        for i in range(i0, i0+4): a(f"v_exp_f32 v{S(buf)+i}, v{S(buf)+i}")
    def C(dst, buf, i): a(f"v_cvt_pk_bf16_f32 v{dst}, v{S(buf)+i}, v{S(buf)+i+1}")
    qk1(0, 0, 0); qk2(0, 0, 0)
    a("s_nop 10")
    a(".p2align 6")
    a("L_aloop:")
    for r in range(4):
        for q in range(4):
            buf = q & 1; nb = buf ^ 1
            nr, nq = (r, q+1) if q < 3 else ((r+1) & 3, 0)
            pr, pq = (r, q-1) if q > 0 else ((r-1) & 3, 3)
            if q == 3:
                a("s_waitcnt vmcnt(8)")
                if r == 1:
                    a(f"ds_write_b32 v{VFL}, v15")
            qk1(nb, nr, nq); E(buf, 0)
            pv(pq, V2(pr), P1); C(P0, buf, 0); C(P0+1, buf, 2)
            if q == 0:
                load_kv((r+3) & 3)
            E(buf, 4)
            qk2(nb, nr, nq); C(P0+2, buf, 4); C(P0+3, buf, 6); E(buf, 8)
            pv(q, V1(r), P0); C(P1, buf, 8); C(P1+1, buf, 10); E(buf, 12); C(P1+2, buf, 12); C(P1+3, buf, 14)
    a(f"s_add_u32 s{S_IT}, s{S_IT}, 1")
    a(f"s_cmp_lt_u32 s{S_IT}, 8")
    a(f"s_cbranch_scc1 L_aloop")
    a(f"ds_write_b32 v{VFL}, v15 offset:64")
    pv(3, V2(3), P1)
    if STAMPS and not SB and not SP: a("s_memtime s[6:7]")
    for i in range(3):
        a(f"ds_write_b128 v{VCW}, {vr(O(2)+4*i,4)} offset:{1024*i}")
    a(f"ds_write_b32 v{VCW4}, v{O(2)+12} offset:3072")
    a("s_nop 8")
    for i in range(3):
        a(f"ds_write_b128 v{VCW}, {vr(O(3)+4*i,4)} offset:{4096+1024*i}")
    a(f"ds_write_b32 v{VCW4}, v{O(3)+12} offset:{4096+3072}")
    a("s_waitcnt lgkmcnt(0)")
    a(f"ds_write_b32 v{VFL}, v15 offset:16")
    a("L_apoll:")
    a(f"ds_read_b32 v2, v{VFR} offset:16")
    a("s_waitcnt lgkmcnt(0)")
    a(f"v_readfirstlane_b32 s{T0}, v2")
    a("s_nop 0")
    a(f"s_cmp_eq_u32 s{T0}, 1")
    a(f"s_cbranch_scc0 L_apoll")
    for q in range(2):
        for i in range(3):
            a(f"ds_read_b128 {vr(O(2+q)+4*i,4)}, v{VCR} offset:{4096*q+1024*i}")
        a(f"ds_read_b32 v{O(2+q)+12}, v{VCR4} offset:{4096*q+3072}")
    for q in range(2):
        a(f"s_waitcnt lgkmcnt({4-4*q})")
        for j in range(0, 12, 2):
            a(f"v_pk_add_f32 {vr(O(q)+j,2)}, {vr(O(q)+j,2)}, {vr(O(2+q)+j,2)}")
        a(f"v_add_f32 v{O(q)+12}, v{O(q)+12}, v{O(2+q)+12}")
    for q in range(2):
        a(f"v_cndmask_b32 v{4+2*q}, v{O(q)+12}, v{O(q)+8}, s[{S_UP}:{S_UP+1}]")
    a(f"v_mov_b32 v2, 0")
    a(f"v_mov_b32 v3, 0")
    a(f"v_mov_b32 v8, 0")
    for q in range(2):
        for j in range(0, 12, 2):
            a(f"v_pk_fma_f32 v[2:3], {vr(O(q)+j,2)}, v[8:9], v[2:3] op_sel_hi:[1,0,1]")
    a(f"v_min_f32 v10, v4, v6")
    a(f"v_max_f32 v11, v4, v6")
    a(f"v_fmac_f32 v2, 0, v4")
    a(f"v_fmac_f32 v3, 0, v6")
    a(f"v_cmp_le_f32 vcc, 0x1f800000, v10")
    a(f"s_mov_b64 s[{T0}:{T1}], vcc")
    a(f"v_cmp_ge_f32 vcc, 0x5f800000, v11")
    a(f"s_and_b64 s[{T0}:{T1}], s[{T0}:{T1}], vcc")
    a(f"v_cmp_o_f32 vcc, v2, v3")
    a(f"s_and_b64 s[{T0}:{T1}], s[{T0}:{T1}], vcc")
    a(f"s_cmp_eq_u64 s[{T0}:{T1}], exec")
    a("s_branch L_fb" if force_fallback else "s_cbranch_scc0 L_fb")
    a("L_norm:")
    for q in range(2):
        a(f"v_rcp_f32 v{4+2*q}, v{4+2*q}")
    a("s_nop 0")
    for q in range(2):
        for j in range(0, 12, 2):
            a(f"v_pk_mul_f32 {vr(O(q)+j,2)}, {vr(O(q)+j,2)}, {vr(4+2*q,2)} op_sel_hi:[1,0]")
    A_, B_ = O(0), O(1)
    def cvs(d, x):
        a(f"v_cvt_pk_bf16_f32 v{d}, v{x}, v{x+1}")
    for k in range(4): cvs(A_+k, A_+2*k)
    for k in range(4): a(f"v_min_u32 v{A_+k}, -2, v{A_+k}")
    for k in (4, 5): cvs(A_+k, A_+2*k)
    a(f"v_permlane32_swap_b32 v{A_}, v{A_+2}")
    a(f"v_permlane32_swap_b32 v{A_+1}, v{A_+3}")
    cvs(A_+6, B_); cvs(A_+7, B_+2)
    a(f"buffer_store_dwordx4 {vr(A_,4)}, v{VL16}, s[{SWS}:{SWS+3}], s{S_OO} offen sc1")
    cvs(B_, B_+4); cvs(B_+1, B_+6); cvs(B_+4, B_+8); cvs(B_+5, B_+10)
    for r in (A_+4, A_+5, A_+6, A_+7, B_, B_+1, B_+4, B_+5):
        a(f"v_min_u32 v{r}, -2, v{r}")
    a(f"v_cndmask_b32 v{A_+4}, v{A_+4}, v{A_+6}, s[{S_UP}:{S_UP+1}]")
    a(f"v_cndmask_b32 v{A_+5}, v{A_+5}, v{A_+7}, s[{S_UP}:{S_UP+1}]")
    a(f"v_permlane32_swap_b32 v{A_+6}, v{B_}")
    a(f"v_permlane32_swap_b32 v{A_+7}, v{B_+1}")
    a(f"v_permlane32_swap_b32 v{B_+2}, v{B_+4}")
    a(f"v_permlane32_swap_b32 v{B_+3}, v{B_+5}")
    a(f"buffer_store_dwordx4 {vr(A_+4,4)}, v{VL16}, s[{SWS}:{SWS+3}], s{S_OO} offen offset:1024 sc1")
    a("s_mov_b32 exec_lo, 0")
    a(f"buffer_store_dwordx4 {vr(B_,4)}, v{VL16}, s[{SWS}:{SWS+3}], s{S_OO} offen offset:1536 sc1")
    a("s_mov_b64 exec, -1")
    endpgm(a, 0)
    a("L_fb:")
    a("s_waitcnt vmcnt(0)")
    a(f"v_mov_b32 v4, 0xff800000")
    a(f"v_mov_b32 v5, 0xff800000")
    a(f"s_mov_b32 s{S_KV}, {KVF_OFF}")
    a(f"s_mov_b32 s{S_IT}, 0")
    a("L_fb1:")
    load_kv(0)
    a("s_waitcnt vmcnt(0)")
    for q in range(2):
        qk1(q, 0, q); qk2(q, 0, q)
    a("s_nop 15")
    for q in range(2):
        for j in range(0, 16, 2):
            a(f"v_max3_f32 v{4+q}, v{S(q)+j}, v{S(q)+j+1}, v{4+q}")
    a(f"s_add_u32 s{S_IT}, s{S_IT}, 1")
    a(f"s_cmp_lt_u32 s{S_IT}, 64")
    a(f"s_cbranch_scc1 L_fb1")
    for q in range(2):
        a(f"v_mov_b32 v6, v{4+q}")
        a("s_nop 1")
        a(f"v_permlane32_swap_b32 v6, v{4+q}")
        a("s_nop 1")
        a(f"v_max_f32 v6, v6, v{4+q}")
        a(f"v_sub_f32 v6, 0, v6")
        a(f"v_cvt_pk_bf16_f32 v7, v6, v6")
        a(f"v_lshlrev_b32 v7, 16, v7")
        a(f"v_sub_f32 v8, v6, v7")
        a(f"v_cvt_pk_bf16_f32 v7, v7, v8")
        a(f"v_cndmask_b32 v{Q2(q)}, v{Q2(q)}, v7, s[{S_UP}:{S_UP+1}]")
        for j in range(16):
            a(f"v_mov_b32 v{O(q)+j}, 0")
    a(f"s_mov_b32 s{S_KV}, {KVF_OFF}")
    a(f"s_mov_b32 s{S_IT}, 0")
    a("L_fb2:")
    load_kv(0)
    a("s_waitcnt vmcnt(0)")
    for q in range(2):
        qk1(q, 0, q); qk2(q, 0, q)
    a("s_nop 15")
    for q in range(2):
        for i0 in range(0, 16, 4): E(q, i0)
        a("s_nop 0")
        for k in range(4): C(P0+k, q, 2*k)
        for k in range(4): C(P1+k, q, 8+2*k)
        a("s_nop 1")
        pv(q, V1(0), P0); pv(q, V2(0), P1)
    a(f"s_add_u32 s{S_IT}, s{S_IT}, 1")
    a(f"s_cmp_lt_u32 s{S_IT}, 64")
    a(f"s_cbranch_scc1 L_fb2")
    a("s_nop 15")
    for q in range(2):
        a(f"v_cndmask_b32 v{4+2*q}, v{O(q)+12}, v{O(q)+8}, s[{S_UP}:{S_UP+1}]")
    a("s_branch L_norm")
    a("L_end:")
    a("s_endpgm")
    return a, kernel_desc(name, 256)

def build(force_fallback=False):
    hdr = open("cdna_kernels/%s.s.ref" % NAME).read().split("\n")
    hdr = [l for l in hdr if l.startswith(";") and "@launch" not in l and "Override" not in l and "grid=ceil" not in l]
    body, desc = gen(NAME + "_kernel", force_fallback)
    out = "\n".join(hdr) + "\n"
    out += f"; @launch grid=(256,1,1) block=(512,1,1) lds={LDS_BYTES}\n"
    out += '.amdgcn_target "amdgcn-amd-amdhsa--gfx950"\n.text\n'
    out += body.text()
    out += '.section .rodata,"a"\n' + desc
    return out

if __name__ == "__main__":
    out = sys.argv[1] if len(sys.argv) > 1 else "cdna_kernels/%s.s" % NAME
    open(out, "w").write(build("fb" in sys.argv[2:]))
    print("wrote", out)
```

```python
from common import *
import math, sys

STF_OFF = 0x2F0000
QFL_OFF, HFL_OFF = 0x2D0000, 0x2D4000
MBX_OFF = 0x2D0000
EPOCH_OFF = 0x2FF000
OFL_OFF = 0x2F8000
STG = 49408
RING = 6
RSZ = RING * 5120
CB_OFF = 4 * RSZ
CS_OFF = CB_OFF
ST_OFF = 3 * STG
VT_OFF = CB_OFF + 8192
FL_OFF = CB_OFF + 32768
LDS_BYTES = FL_OFF + 192
G_OFF, U_REL = 32768, 8256
QSCALE = math.log2(math.e) / math.sqrt(20.0)
SPIN_MAX = 1 << 18
ABL = os.environ.get("ABL", "")
SB = "B" in ABL
SP = "P" in ABL

S_W = 3
SX, SWS, SDBG, SA, SB2, SC, SD = 40, 44, 48, 52, 56, 60, 88
S_TH, S_CG, S_IDX, S_WQ, S_ISH, S_TB, S_G, S_TOK = 64, 65, 66, 67, 68, 69, 70, 71
T0, T1, T2, T3, T4, T5 = 72, 73, 74, 75, 76, 77
S_I, S_DB, S_RB, S_OX, S_OW, S_O2, S_O3, S_ST2 = 78, 79, 80, 81, 82, 83, 84, 85
S_EARLY, S_COL = 86, 87
S_UP = 92
S_MBX, S_ROT, S_MH, S_DL = 99, 100, 101, 98
S_NON = 79
S_OO = 56
S_OFL, S_KV, S_H0, S_K2 = 52, 53, 54, 55
VL, VT, VH, VL16, VL8, VF, VFL = 250, 251, 252, 253, 254, 249, 248
VZ = 244
FBASE = [32, 48, 128, 144]
CSA = 26

def gen(name, force_fallback=False):
    a = Asm()
    kernel_begin(a, name)
    uid = [0]
    def lab(s):
        uid[0] += 1
        return f"L{uid[0]}_{s}"
    def emit(ch):
        for c in ch:
            for l in c: a(l)
    def lds_set(idx):
        a(f"v_mov_b32 v2, {FL_OFF + 4*idx}")
        a(f"v_mov_b32 v3, 1")
        a(f"ds_write_b32 v2, v3")
    def lds_wait(idx, n=1, sleep=1):
        L = lab("lw")
        a(f"v_mov_b32 v2, {FL_OFF + 4*idx}")
        a(f"{L}:")
        if n == 1:
            a("ds_read_b32 v4, v2")
            a("s_waitcnt lgkmcnt(0)")
        else:
            a("ds_read_b128 v[4:7], v2")
            if n == 8: a("ds_read_b128 v[8:11], v2 offset:16")
            a("s_waitcnt lgkmcnt(0)")
            a("v_bitop3_b32 v4, v4, v5, v6 bitop3:0x80")
            if n == 8:
                a("v_bitop3_b32 v8, v8, v9, v10 bitop3:0x80")
                a("v_bitop3_b32 v4, v4, v8, v11 bitop3:0x80")
            a("v_and_b32 v4, v4, v7")
            a("s_nop 0")
        a(f"v_readfirstlane_b32 s{T4}, v4")
        a("s_nop 0")
        a(f"s_cmp_eq_u32 s{T4}, 1")
        a(f"s_cbranch_scc1 {L}_d")
        a(f"s_sleep {sleep}")
        a(f"s_branch {L}")
        a(f"{L}_d:")
    def mbx_load(line):
        if line == 0:
            a(f"s_lshr_b32 s{T1}, s{S_TB}, 2")
            a(f"s_lshl_b32 s{T1}, s{T1}, 9")
            a(f"v_and_b32 v2, 3, v{VL}")
            a(f"v_lshl_add_u32 v2, v2, 7, s{T1}")
            a(f"v_and_b32 v3, 15, v{VL}")
            a(f"v_lshlrev_b32 v3, 9, v3")
            a(f"v_add_u32 v3, 384, v3")
            a(f"s_mov_b32 s{T0}, {QFL_OFF}")
            a(f"v_cndmask_b32 v2, v3, v2, s[{S_UP}:{S_UP+1}]")
        else:
            a(f"s_and_b32 s{T0}, s2, 7")
            a(f"s_lshl_b32 s{T0}, s{T0}, 12")
            a(f"s_add_u32 s{T0}, s{T0}, {HFL_OFF}")
            a(f"s_lshl_b32 s{T1}, s{S_TB}, 7")
            a(f"s_add_u32 s{T1}, s{T1}, {OFL_OFF}")
            a(f"s_sub_u32 s{T1}, s{T1}, s{T0}")
            a(f"v_and_b32 v2, 15, v{VL}")
            a(f"v_lshl_add_u32 v2, v2, 2, s{T1}")
            a(f"v_min_u32 v3, 23, v{VL}")
            a(f"v_lshlrev_b32 v3, 7, v3")
            a(f"v_cndmask_b32 v2, v3, v2, s[{S_UP}:{S_UP+1}]")
        a(f"buffer_load_dword v{VF}, v2, s[{SWS}:{SWS+3}], s{T0} offen sc1")
    def mbx_test():
        a(f"v_cmp_ne_u32 vcc, s{S_NON}, v{VF}")
        a("s_cmp_eq_u64 vcc, 0")
    def mbx_wait(line, sleep):
        L, D = lab("spin"), lab("done")
        a(f"s_mov_b32 s{T5}, 0")
        mbx_load(line)
        a(f"{L}:")
        a(f"s_add_u32 s{T5}, s{T5}, 1")
        a("s_waitcnt vmcnt(0)")
        mbx_test()
        a(f"s_cbranch_scc1 {D}")
        a(f"s_sleep {sleep}")
        a(f"buffer_load_dword v{VF}, v2, s[{SWS}:{SWS+3}], s{T0} offen sc1")
        a(f"s_cmp_lt_u32 s{T5}, {SPIN_MAX}")
        a(f"s_cbranch_scc1 {L}")
        a(f"{D}:")
    def zero_mfma(dst, z):
        a(f"v_mfma_f32_32x32x16_bf16 {vr(dst,16)}, {vr(z,4)}, {vr(z,4)}, 0")

    O = lambda q: [32, 48, 128, 144][q]
    S = lambda p: 64 + 16*p
    P0, P1 = 96, 100
    Q1 = lambda q: 168 + 4*q
    Q2 = lambda q: 184 + 2*q
    KVB = lambda r: 192 + 14*r
    K1 = lambda r: KVB(r); V1 = lambda r: KVB(r)+4; V2 = lambda r: KVB(r)+8; K2 = lambda r: KVB(r)+12
    VCW, VCR, VCW4, VCR4, VFR = 22, 23, 24, 25, 255
    VD = [168, 169, 170, 171, 172]
    VAR, VAR2, VR0, VR1, VXO, VRW = 173, 174, 175, 176, 177, 178
    VX = [22, 23]; VW, VW2 = 24, 25

    a("s_cmp_ge_u32 s2, 256")
    a("s_cbranch_scc1 L_end")
    load_kernargs(a)
    a(f"s_getpc_b64 s[{T0}:{T1}]")
    a("L_pc:")
    a(f"v_lshlrev_b32 v1, 7, v0")
    a(f"v_min_u32 v1, L_end-L_pc, v1")
    a(f"global_load_dword v{VF}, v1, s[{T0}:{T1}]")
    a("v_lshrrev_b32 v1, 6, v0")
    a(f"v_and_b32 v{VL}, 63, v0")
    a(f"v_readfirstlane_b32 s{S_W}, v1")
    a(f"s_and_b32 s{T0}, s2, 7")
    a(f"s_lshr_b32 s{S_IDX}, s2, 3")
    a(f"s_and_b32 s{S_TH}, s{T0}, 1")
    a(f"s_lshr_b32 s{S_CG}, s{T0}, 1")
    a(f"s_and_b32 s{S_WQ}, s{S_W}, 3")
    a(f"s_lshr_b32 s{S_ISH}, s{S_W}, 2")
    a(f"s_lshl_b32 s{S_TOK}, s{S_TH}, 2")
    a(f"s_and_b32 s{T1}, s{S_IDX}, 3")
    a(f"s_add_u32 s{S_TOK}, s{S_TOK}, s{T1}")
    a(f"s_lshl_b32 s{S_TOK}, s{S_TOK}, 8")
    a(f"s_mul_i32 s{S_COL}, s{S_CG}, 6")
    a(f"s_lshr_b32 s{T1}, s{S_IDX}, 2")
    a(f"s_add_u32 s{S_COL}, s{S_COL}, s{T1}")
    a(f"s_lshl_b32 s{T1}, s{S_TH}, 3")
    a(f"s_add_u32 s{T1}, s{T1}, s{S_IDX}")
    a(f"s_sub_u32 s{T1}, s{T1}, 24")
    a(f"s_lshl_b32 s{T1}, s{T1}, 7")
    a(f"s_cmp_lt_u32 s{S_IDX}, 24")
    a(f"s_cselect_b32 s{S_TOK}, s{S_TOK}, s{T1}")
    a(f"s_cselect_b32 s{S_COL}, s{S_COL}, s{S_CG}")
    a(f"s_cselect_b32 s{T1}, 6, 5")
    a(f"v_and_b32 v{VT}, 31, v0")
    a(f"v_bfe_u32 v{VH}, v0, 5, 1")
    a(f"s_cmp_lg_u32 s{S_ISH}, 0")
    a(f"s_cbranch_scc1 L_p0_h")
    a(f"v_lshrrev_b32 v1, 3, v{VL}")
    a(f"v_lshrrev_b32 v2, 4, v{VL}")
    a(f"v_and_b32 v4, 7, v{VL}")
    a(f"v_xor_b32 v3, v2, v4")
    a(f"s_lshl_b32 s{T2}, s{S_WQ}, s{T1}")
    a(f"s_add_u32 s{T2}, s{T2}, s{S_TOK}")
    a(f"v_add_u32 v5, s{T2}, v1")
    a(f"v_mul_u32_u24 v5, 1280, v5")
    a(f"v_lshl_add_u32 v{VX[0]}, v3, 4, v5")
    a(f"v_xor_b32 v3, 4, v3")
    a(f"v_lshl_add_u32 v{VX[1]}, v3, 4, v5")
    S_MX, S_MW = S_OX, S_RB
    S_RX, S_RW = 86, 99
    a(f"s_mul_i32 s{T2}, s{S_IDX}, 3")
    a(f"s_mul_i32 s{T3}, s{T2}, 205")
    a(f"s_lshr_b32 s{T3}, s{T3}, 11")
    a(f"s_mul_i32 s{T3}, s{T3}, 10")
    a(f"s_sub_u32 s{S_RW}, s{T2}, s{T3}")
    if "1" in ABL: a(f"s_mov_b32 s{S_RW}, 0")
    if "2" in ABL:
        a(f"s_lshr_b32 s{T2}, s{S_IDX}, 2")
        a(f"s_xor_b32 s{T2}, s{T2}, s{S_IDX}")
        a(f"s_and_b32 s{T2}, s{T2}, 1")
        a(f"s_mul_i32 s{S_RW}, s{T2}, 5")
    S_RX = 82
    a(f"s_lshl_b32 s{S_RX}, s{S_RW}, 7")
    a(f"s_cmp_lt_u32 s{S_IDX}, 24")
    a(f"s_cbranch_scc0 L_q_l")
    a(f"v_and_b32 v2, 1, v2")
    a(f"v_lshlrev_b32 v2, 1, v2")
    a(f"v_xor_b32 v4, v4, v2")
    a(f"s_lshl_b32 s{T2}, s{S_WQ}, 4")
    a(f"v_add_u32 v1, s{T2}, v1")
    a(f"v_mul_u32_u24 v1, 3072, v1")
    a(f"v_lshl_add_u32 v1, v4, 4, v1")
    a(f"s_lshl_b32 s{T2}, s{S_COL}, 7")
    a(f"v_add_u32 v{VW}, s{T2}, v1")
    a(f"s_lshl_b32 s{S_MX}, s{S_WQ}, 13")
    a(f"s_lshl_b32 s{S_MW}, s{S_WQ}, 11")
    a(f"s_mul_i32 s{S_RW}, s{S_RW}, {64*3072}")
    a("s_waitcnt lgkmcnt(0)")
    make_srd(a, SX, P_X, 2048*1280)
    make_srd(a, SA, P_WG, 640*3072)
    make_srd(a, SB2, P_WU, 640*3072)
    def dma_gu(st):
        db = (st % 3) * STG
        ch = []
        for j in (0, 1, 2, 3, 8, 9, 4, 5, 6, 7, 10, 11):
            c = []
            if j < 8:
                if j in (0, 4):
                    c += [f"s_add_u32 m0, s{S_MX}, {db + 4096*(j>>2)}"]
                c += [f"s_add_u32 s{T3}, s{S_RX}, {j*10240 - 1024*(j&3)}",
                      f"buffer_load_dwordx4 v{VX[j&1]}, s[{SX}:{SX+3}], s{T3} offen offset:{1024*(j&3)} lds"]
            else:
                srd = SA if j < 10 else SB2
                if j in (8, 10):
                    c += [f"s_add_u32 m0, s{S_MW}, {db + G_OFF + (U_REL if j == 10 else 0)}"]
                c += [f"s_add_u32 s{T3}, s{S_RW}, {(j&1)*(8*3072-1024)}",
                      f"buffer_load_dwordx4 v{VW}, s[{srd}:{srd+3}], s{T3} offen offset:{1024*(j&1)} lds"]
                if j == 11:
                    c += [f"s_add_u32 s{S_RX}, s{S_RX}, 128", f"s_add_u32 s{S_RW}, s{S_RW}, {64*3072}", f"s_cmp_eq_u32 s{S_RX}, 1280",
                          f"s_cselect_b32 s{S_RX}, 0, s{S_RX}", f"s_cselect_b32 s{S_RW}, 0, s{S_RW}"]
            ch.append(c)
        return ch
    if SP: stamp(a, 1)
    emit(dma_gu(0))
    if SP: stamp(a, 2)
    a("s_branch L_common")
    a("L_q_l:")
    a(f"s_cmp_eq_u32 s{S_COL}, 3")
    a(f"s_cselect_b32 s{T0}, 40, 1280")
    a(f"s_lshl_b32 s{S_ST2}, s{T0}, 6")
    a(f"s_mul_i32 s{T2}, s{S_COL}, 384")
    a(f"s_add_u32 s{S_O2}, s{T2}, 128")
    a(f"s_add_u32 s{S_O3}, s{T2}, 192")
    a(f"v_lshrrev_b32 v1, 2, v{VL}")
    a(f"s_lshl_b32 s{T1}, s{S_WQ}, 4")
    a(f"v_add_u32 v1, s{T1}, v1")
    a(f"v_and_b32 v2, 3, v{VL}")
    a(f"v_lshlrev_b32 v2, 4, v2")
    a(f"v_mul_u32_u24 v3, 1280, v1")
    a(f"v_add_u32 v{VW}, v3, v2")
    a(f"v_add_u32 v{VW}, s{T2}, v{VW}")
    a(f"v_mul_u32_u24 v3, s{T0}, v1")
    a(f"v_add_u32 v{VW2}, v3, v2")
    a(f"s_lshl_b32 s{S_MX}, s{S_WQ}, 12")
    a(f"s_lshl_b32 s{S_MW}, s{S_WQ}, 10")
    a("s_waitcnt lgkmcnt(0)")
    make_srd(a, SX, P_X, 2048*1280)
    make_srd(a, SA, P_WQ, 640*1280)
    a(f"s_cmp_eq_u32 s{S_COL}, 3")
    a(f"s_cselect_b32 s{S_O2}, 0, s{S_O2}")
    a(f"s_cselect_b32 s{S_O3}, 0, s{S_O3}")
    a(f"s_cselect_b64 s[{SB2}:{SB2+1}], s[{P_WK}:{P_WK+1}], s[{P_WQ}:{P_WQ+1}]")
    a(f"s_cselect_b64 s[{SC}:{SC+1}], s[{P_WV}:{P_WV+1}], s[{P_WQ}:{P_WQ+1}]")
    a(f"s_mov_b64 s[{SD}:{SD+1}], s[{P_WQ}:{P_WQ+1}]")
    a(f"s_cselect_b32 s{SB2+2}, {640*40}, s{SA+2}")
    a(f"s_mov_b32 s{SC+2}, s{SB2+2}")
    a(f"s_cselect_b32 s{SD+2}, 0, s{SA+2}")
    a(f"s_mul_i32 s{T2}, s{S_RW}, s{S_ST2}")
    a(f"s_add_u32 s{S_O2}, s{S_O2}, s{T2}")
    a(f"s_add_u32 s{S_O3}, s{S_O3}, s{T2}")
    a(f"s_mul_i32 s{S_RW}, s{S_RW}, {64*1280}")
    for r in (SB2, SC, SD):
        a(f"s_mov_b32 s{r+3}, 0x00020000")
    def dma_q(st):
        db = (st % 3) * STG
        ch = []
        for j in range(4):
            c = []
            if j == 0:
                c += [f"s_add_u32 m0, s{S_MX}, {db}"]
            c += [f"s_add_u32 s{T3}, s{S_RX}, {j*(10240-1024)}",
                  f"buffer_load_dwordx4 v{VX[j&1]}, s[{SX}:{SX+3}], s{T3} offen offset:{1024*j} lds"]
            ch.append(c)
        for j, (srd, vo, so, add) in enumerate([(SA, VW, None, 0), (SA, VW, None, 64), (SB2, VW2, S_O2, 0), (SC, VW2, S_O3, 0), (SD, VW, None, 256), (SD, VW, None, 320)]):
            c = [f"s_add_u32 m0, s{S_MW}, {db + 16384+4096*j}"]
            if so is None:
                c += [f"s_add_u32 s{T3}, s{S_RW}, {add}", f"buffer_load_dwordx4 v{vo}, s[{srd}:{srd+3}], s{T3} offen lds"]
                if j == 5:
                    c += [f"s_add_u32 s{S_RX}, s{S_RX}, 128", f"s_add_u32 s{S_RW}, s{S_RW}, {64*1280}", f"s_cmp_eq_u32 s{S_RX}, 1280",
                          f"s_cselect_b32 s{S_RX}, 0, s{S_RX}", f"s_cselect_b32 s{S_RW}, 0, s{S_RW}", f"s_cselect_b32 s{T3}, 10, 0",
                          f"s_mul_i32 s{T3}, s{T3}, s{S_ST2}", f"s_sub_u32 s{S_O2}, s{S_O2}, s{T3}", f"s_sub_u32 s{S_O3}, s{S_O3}, s{T3}"]
            else:
                c += ["s_nop 0", f"buffer_load_dwordx4 v{vo}, s[{srd}:{srd+3}], s{so} offen lds", f"s_add_u32 s{so}, s{so}, s{S_ST2}"]
            ch.append(c)
        return ch
    if SP: stamp(a, 1)
    emit(dma_q(0))
    if SP: stamp(a, 2)
    a("s_branch L_common")

    a("L_p0_h:")
    a(f"s_lshl_b32 s{T0}, s2, 3")
    a(f"s_lshl_b32 s{T1}, s{S_WQ}, 1")
    a(f"s_add_u32 s{T0}, s{T0}, s{T1}")
    a(f"v_add_u32 v4, s{T0}, v{VH}")
    a(f"v_mul_u32_u24 v5, 1280, v4")
    a(f"v_lshl_add_u32 v5, v{VT}, 3, v5")
    a(f"v_lshlrev_b32 v255, 3, v4")
    a(f"v_mov_b32 v242, 0")
    a(f"s_mov_b32 s{T1}, {EPOCH_OFF}")
    a("s_waitcnt lgkmcnt(0)")
    make_srd(a, SX, P_X, 2048*1280)
    make_srd(a, SWS, P_WS, WS_SIZE)
    a(f"buffer_load_dword v203, v242, s[{SWS}:{SWS+3}], s{T1} offen sc1")
    for j in range(5):
        a(f"buffer_load_dwordx2 {vr(192+2*j,2)}, v5, s[{SX}:{SX+3}], 0 offen offset:{256*j}")

    a("L_common:")
    make_srd(a, SWS, P_WS, WS_SIZE)
    make_srd(a, SDBG, P_DBG, 256)
    a(f"s_and_b32 s{S_MH}, s{S_W}, 1")
    a(f"s_lshr_b32 s{S_ROT}, s{S_W}, 1")
    a(f"s_mov_b32 s{S_UP}, 0")
    a(f"s_mov_b32 s{S_UP+1}, -1")
    a(f"v_lshlrev_b32 v{VL16}, 4, v{VL}")
    a(f"v_bfe_u32 v1, v{VT}, 1, 3")
    a(f"v_xor_b32 v1, v1, v{VH}")
    a(f"s_lshl_b32 s{T1}, s{S_ROT}, 1")
    a(f"v_xor_b32 v1, s{T1}, v1")
    a(f"v_lshlrev_b32 v2, 7, v{VT}")
    a(f"s_cmp_lt_u32 s{S_IDX}, 24")
    a(f"s_cselect_b32 s{T0}, 13, 12")
    a(f"s_lshl_b32 s{T0}, s{S_ROT}, s{T0}")
    a(f"v_add_u32 v2, s{T0}, v2")
    VB = lambda sg: 18 + sg
    for sg in range(4):
        a(f"v_xor_b32 v3, {2*sg}, v1")
        a(f"v_lshl_add_u32 v{VB(sg)}, v3, 4, v2")
    for r in range(CSA, CSA+6):
        a(f"v_mov_b32 v{r}, 0")
    a(f"s_and_b32 s{T0}, s2, 7")
    a(f"s_lshl_b32 s{S_TB}, s{T0}, 3")
    a(f"s_and_b32 s{T1}, s{S_IDX}, 7")
    a(f"s_add_u32 s{S_TB}, s{S_TB}, s{T1}")
    a(f"s_lshr_b32 s{S_G}, s{S_IDX}, 3")
    a(f"s_mov_b32 s{S_EARLY}, 0")
    a(f"s_mov_b32 s{S_DL}, {STG}")
    a(f"s_mov_b32 s{S_I}, {-2*STG & 0xffffffff}")
    a(f"v_bfe_u32 v1, v{VL}, 2, 2")
    a(f"v_lshl_add_u32 v2, v{VH}, 3, v1")
    a(f"v_bfe_u32 v3, v{VL}, 4, 1")
    a(f"s_cmp_lt_u32 s{S_IDX}, 24")
    a(f"s_cbranch_scc0 L_q_rd")
    VAg = lambda sg, aa: 10 + 2*sg + aa
    a(f"v_lshlrev_b32 v2, 7, v2")
    a(f"v_mul_u32_u24 v3, {U_REL}, v3")
    a(f"v_add_u32 v2, v2, v3")
    a(f"v_and_b32 v1, 2, v1")
    a(f"v_bfe_u32 v3, v{VL}, 1, 1")
    a(f"v_add_u32 v1, v1, v3")
    a(f"v_lshl_add_u32 v2, v1, 4, v2")
    a(f"v_and_b32 v3, 1, v{VL}")
    a(f"v_lshl_add_u32 v2, v3, 3, v2")
    a(f"s_lshl_b32 s{T0}, s{S_MH}, 6")
    a(f"s_add_u32 s{T0}, s{T0}, {G_OFF}")
    for sg in range(4):
        a(f"s_xor_b32 s{T1}, s{S_ROT}, {sg}")
        a(f"s_lshl_b32 s{T1}, s{T1}, 11")
        a(f"s_add_u32 s{T1}, s{T1}, s{T0}")
        a(f"v_add_u32 v{VAg(sg,0)}, s{T1}, v2")
        a(f"v_xor_b32 v{VAg(sg,1)}, 32, v{VAg(sg,0)}")

    def one(lst): return [[x] for x in lst]
    def bg_common():
        o = [f"v_lshlrev_b32 v{VL8}, 3, v{VL}", f"s_lshl_b32 s{T0}, s{S_W}, 2", f"s_add_u32 s{T0}, s{T0}, {FL_OFF}", f"v_mov_b32 v{VFL}, s{T0}"]
        o += [f"v_mov_b32 v{r}, 0" for r in (243, 244, 245)]
        return one(o)
    def bg_L():
        o = [f"v_mov_b32 v246, 0", f"v_mov_b32 v247, 0", f"s_mul_i32 s{T0}, s{S_G}, 320"]
        for j in range(5):
            o += [f"v_add_u32 v6, {64*j}, v{VL}", f"v_mul_u32_u24 v4, 3277, v6", f"v_lshrrev_b32 v4, 16, v4", f"v_mul_u32_u24 v5, 20, v4",
                  f"v_sub_u32 v5, v6, v5", f"v_mul_u32_u24 v4, 1280, v4", f"v_lshl_add_u32 v4, v5, 4, v4", f"v_add_u32 v{VD[j]}, s{T0}, v4"]
            if 0 < j < 4: o += [f"v_subrev_u32 v{VD[j]}, {1024*j}, v{VD[j]}"]
        o += [f"s_lshl_b32 s{T1}, s{S_TB}, 5", f"v_add_u32 v6, s{T1}, v{VT}", f"v_mul_u32_u24 v6, 1280, v6", f"v_lshl_add_u32 v6, v{VH}, 3, v6",
              f"s_lshl_b32 s{T1}, s{S_WQ}, 4", f"s_add_u32 s{T0}, s{T0}, s{T1}", f"v_add_u32 v{VXO}, s{T0}, v6",
              f"s_mul_i32 s{T0}, s{S_WQ}, {RSZ}", f"v_bfe_u32 v6, v{VL}, 2, 2", f"v_bfe_u32 v4, v{VL}, 4, 1", f"v_and_b32 v5, 3, v{VL}",
              f"v_lshl_add_u32 v4, v4, 2, v5", f"s_lshl_b32 s{T1}, s{S_WQ}, 1", f"v_xor_b32 v4, s{T1}, v4", f"v_lshl_add_u32 v4, v4, 3, s{T0}",
              f"v_lshl_add_u32 v5, v{VH}, 2, v6", f"v_mul_u32_u24 v5, 320, v5", f"v_add_u32 v{VAR}, v4, v5",
              f"v_lshl_add_u32 v5, v{VH}, 3, v6", f"v_mul_u32_u24 v5, 320, v5", f"v_add_u32 v{VAR2}, v4, v5", f"v_add_u32 v{VRW}, s{T0}, v{VL16}"]
        for i, vv in ((1, VR0), (2, VR1), (3, VRW+1)):
            o += [f"s_xor_b32 s{T1}, s{S_WQ}, {i}", f"s_mul_i32 s{T1}, s{T1}, {RSZ}", f"v_add_u32 v{vv}, s{T1}, v{VL16}"]
        return one(o)
    VRD = {1: VR0, 2: VR1, 3: VRW+1}
    def touches():
        a(f"s_lshl_b32 s{T0}, s{S_TH}, 10")
        a(f"s_lshl_b32 s{T1}, s{S_IDX}, 5")
        a(f"s_add_u32 s{T0}, s{T0}, s{T1}")
        a(f"v_add_u32 v1, s{T0}, v{VT}")
        a(f"v_mul_u32_u24 v1, 1280, v1")
        a(f"v_mov_b32 v2, 128")
        a(f"v_mov_b32 v3, s{P_X}")
        a(f"v_mov_b32 v4, s{P_X+1}")
        a(f"v_min_u32 v5, 29, v{VT}")
        a(f"v_cmp_le_u32 vcc, 15, v5")
        a(f"s_lshl_b32 s{T0}, s{S_IDX}, 1")
        a(f"v_mov_b32 v6, s{T0}")
        a(f"v_subrev_u32 v7, 15, v5")
        a(f"v_addc_co_u32 v6, s[{T2}:{T3}], 0, v6, vcc")
        a(f"v_cndmask_b32 v5, v5, v7, vcc")
        a(f"v_cmp_le_u32 vcc, 6, v5")
        a(f"v_subrev_u32 v7, 6, v5")
        a(f"v_mov_b32 v8, s{P_WG}")
        a(f"v_cndmask_b32 v7, v5, v7, vcc")
        a(f"v_mov_b32 v9, s{P_WU}")
        a(f"v_cndmask_b32 v8, v8, v9, vcc")
        a(f"v_mov_b32 v9, s{P_WG+1}")
        a(f"v_mov_b32 v32, s{P_WU+1}")
        a(f"v_cndmask_b32 v9, v9, v32, vcc")
        a(f"s_mul_i32 s{T0}, s{S_CG}, 768")
        a(f"v_mul_u32_u24 v32, 3072, v6")
        a(f"v_lshl_add_u32 v32, v7, 7, v32")
        a(f"v_add_u32 v32, s{T0}, v32")
        a(f"v_mov_b32 v33, {64*3072}")
        a(f"v_cmp_le_u32 vcc, 12, v5")
        a(f"s_mul_i32 s{T0}, s{S_CG}, 384")
        a(f"s_sub_u32 s{T0}, s{T0}, {12*128}")
        a(f"v_lshl_add_u32 v7, v5, 7, s{T0}")
        a(f"v_min_u32 v7, 1152, v7")
        a(f"v_mul_u32_u24 v6, 1280, v6")
        a(f"v_add_u32 v7, v7, v6")
        a(f"v_cndmask_b32 v32, v32, v7, vcc")
        a(f"v_mov_b32 v7, {64*1280}")
        a(f"v_cndmask_b32 v33, v33, v7, vcc")
        a(f"v_mov_b32 v7, s{P_WQ}")
        a(f"v_cndmask_b32 v8, v8, v7, vcc")
        a(f"v_mov_b32 v7, s{P_WQ+1}")
        a(f"v_cndmask_b32 v9, v9, v7, vcc")
        for d, s_ in ((1, 32), (2, 33), (3, 8), (4, 9)):
            a(f"v_cndmask_b32 v{d}, v{d}, v{s_}, s[{S_UP}:{S_UP+1}]")
        a(f"s_add_u32 s{T0}, s{S_WQ}, 3")
        a(f"v_mul_lo_u32 v5, v2, s{T0}")
        a(f"v_add_u32 v1, v1, v5")
        a(f"v_add_co_u32 v6, vcc, v3, v1")
        a(f"s_cmp_eq_u32 s{S_WQ}, 3")
        a(f"s_cselect_b32 s{T0}, 3, 4")
        a(f"v_addc_co_u32 v7, vcc, 0, v4, vcc")
        a(f"global_load_dword v246, v[6:7], off")
        a(f"v_mul_lo_u32 v2, v2, s{T0}")
        a(f"v_add_co_u32 v8, vcc, v6, v2")
        a(f"s_nop 1")
        a(f"v_addc_co_u32 v9, vcc, 0, v7, vcc")
        a(f"global_load_dword v247, v[8:9], off")
    NT_ = 2 if "T" in ABL else 0
    def bg_H(full=True, late=False):
        d = {i: [] for i in range(10)}
        d[0].append([f"s_waitcnt vmcnt({NT_})"])
        st = ["v_mov_b32 v8, 0", "v_mov_b32 v9, 0"]
        for j in range(10):
            st += [f"v_lshlrev_b32 v4, 16, v{192+j}", f"v_and_b32 v5, 0xffff0000, v{192+j}", "v_add_f32 v8, v8, v4", "v_fmac_f32 v9, v4, v4",
                   "v_add_f32 v8, v8, v5", "v_fmac_f32 v9, v5, v5"]
        for rr in (8, 4, 2, 1):
            st += ["s_nop 0", f"v_add_f32_dpp v8, v8, v8 row_ror:{rr} row_mask:0xf bank_mask:0xf", f"v_add_f32_dpp v9, v9, v9 row_ror:{rr} row_mask:0xf bank_mask:0xf"]
        st += ["v_mov_b32 v4, v8", "v_mov_b32 v5, v9", "s_nop 1", "v_permlane16_swap_b32 v4, v8", "v_permlane16_swap_b32 v5, v9", "s_nop 1",
               "v_add_f32 v4, v4, v8", "v_add_f32 v5, v5, v9", f"v_mul_f32 v4, {f32bits(-1.0/640)}, v4", f"v_mul_f32 v5, {f32bits(1.0/640)}, v5",
               "v_fma_f32 v5, -v4, v4, v5", "v_max_f32 v5, 0, v5", "v_cvt_pk_bf16_f32 v5, v5, v5", "v_lshlrev_b32 v5, 16, v5",
               f"v_add_f32 v5, {f32bits(1e-5)}, v5", "v_cvt_pk_bf16_f32 v5, v5, v5", "v_lshlrev_b32 v5, 16, v5", "v_sqrt_f32 v5, v5", "s_nop 0",
               "v_cvt_pk_bf16_f32 v202, v4, v5"]
        h = len(st)//2
        d[0] += one(st[:24]); d[1] += one(st[24:])
        d[0].insert(1, ["v_add_u32 v203, 1, v203"]); d[0].insert(2, ["v_or_b32 v203, 0x80000000, v203"])
        d[0].insert(3, [f"v_mov_b32 v4, {FL_OFF + 128}", "ds_write_b32 v4, v203", f"v_readfirstlane_b32 s{S_NON}, v203"])
        d[1] += [["s_mov_b32 exec_lo, 1", "s_mov_b32 exec_hi, 1", f"s_mov_b32 s{T0}, {STF_OFF}",
                  f"buffer_store_dwordx2 v[202:203], v255, s[{SWS}:{SWS+3}], s{T0} offen sc1", "s_mov_b64 exec, -1"]]
        o = [f"s_lshl_b32 s{T0}, s{S_TB}, 5", f"s_lshl_b32 s{T1}, s{S_G}, 2", f"s_add_u32 s{T0}, s{T0}, s{T1}", f"s_add_u32 s{T0}, s{T0}, s{S_WQ}",
             f"s_lshl_b32 s{T0}, s{T0}, 2", f"s_add_u32 s{S_OFL}, s{T0}, {OFL_OFF}",
             f"s_and_b32 s{S_K2}, s{S_WQ}, 2", f"s_mul_i32 s{S_KV}, s{S_K2}, {16*3584}", f"s_add_u32 s{S_KV}, s{S_KV}, {KVF_OFF}",
             f"s_lshl_b32 s{S_H0}, s{S_G}, 3", f"s_and_b32 s{T0}, s{S_WQ}, 1", f"s_lshl_b32 s{T0}, s{T0}, 2", f"s_add_u32 s{S_H0}, s{S_H0}, s{T0}",
             f"v_lshlrev_b32 v7, 4, v{VT}", f"v_mov_b32 v8, 0x80000000"]
        for q in range(4):
            o += [f"s_xor_b32 s{T0}, s{S_K2}, {q}", f"s_add_u32 s{T0}, s{T0}, s{S_H0}", f"s_mul_i32 s{T0}, s{T0}, 5"]
            for j, dst in enumerate((Q1(q), Q1(q)+2, Q2(q))):
                o += [f"v_add_u32 v4, s{T0}, v{VH}"]
                if j: o += [f"v_add_u32 v4, {2*j}, v4"]
                o += [f"v_lshrrev_b32 v5, 2, v4", f"v_lshl_add_u32 v5, v5, 10, v7", f"v_and_b32 v6, 1, v4", f"v_lshl_add_u32 v5, v6, 9, v5",
                      f"v_and_b32 v6, 2, v4", f"v_lshl_add_u32 v{dst}, v6, 2, v5"]
                if j == 2: o += [f"v_cndmask_b32 v{dst}, v{dst}, v8, s[{S_UP}:{S_UP+1}]"]
        o += [f"s_lshl_b32 s{T0}, s{S_WQ}, 13", f"s_add_u32 s{T0}, s{T0}, {CB_OFF}", f"s_xor_b32 s{T1}, s{S_WQ}, 2", f"s_lshl_b32 s{T1}, s{T1}, 13",
              f"s_add_u32 s{T1}, s{T1}, {CB_OFF}", f"v_add_u32 v{VCW}, s{T0}, v{VL16}", f"v_add_u32 v{VCR}, s{T1}, v{VL16}",
              f"v_lshl_add_u32 v{VCW4}, v{VL}, 2, s{T0}", f"v_lshl_add_u32 v{VCR4}, v{VL}, 2, s{T1}"]
        n3 = (len(o) + 2)//3
        if late: return one(o[13:])
        if full: d[5] += one(o[:n3]); d[6] += one(o[n3:2*n3]); d[7] += one(o[2*n3:])
        else: d[5] += one(o[:13])
        d[6].insert(0, [f"s_add_u32 s{T1}, s{S_H0}, s{S_K2}", f"s_mul_i32 s{T1}, s{T1}, 5", f"s_mul_i32 s{S_OO}, s{S_TB}, 160", f"s_add_u32 s{S_OO}, s{S_OO}, s{T1}",
                        f"s_lshl_b32 s{S_OO}, s{S_OO}, 8", f"s_add_u32 s{S_OO}, s{S_OO}, {OF_OFF}"] + [f"v_mov_b32 v{r}, -1" for r in range(204, 208)] +
                       [f"buffer_store_dwordx4 v[204:207], v{VL16}, s[{SWS}:{SWS+3}], s{S_OO} offen sc1",
                        f"buffer_store_dwordx4 v[204:207], v{VL16}, s[{SWS}:{SWS+3}], s{S_OO} offen offset:1024 sc1",
                        f"buffer_store_dwordx4 v[204:207], v{VL16}, s[{SWS}:{SWS+3}], s{S_OO} offen offset:1536 sc1"])
        d[2] += bg_common()
        return d

    def p1_phase(tag, nA, nB, ND, dma, reads, FA, FB, ACC, addr_regs, early):
        nR = 2*nA + nB
        nm = nA*nB
        dw = [(aa, i) for aa in range(nA) for i in range(4)]
        hd = len(dw)//2; qd = hd//2
        def cs_ops(p, lst):
            o = []
            for aa, i in lst:
                o += [f"v_lshlrev_b32 v2, 16, v{FA(p,aa)+i}", f"v_and_b32 v3, 0xffff0000, v{FA(p,aa)+i}",
                      f"v_add_f32 v{CSA+2*aa}, v{CSA+2*aa}, v2", f"v_add_f32 v{CSA+2*aa+1}, v{CSA+2*aa+1}, v3"]
            return o
        def group(p, rd_sg, extra=(), dma_ch=(), bg=(), first=False, skip=False):
            extra = list(extra); bg = list(bg)
            rd = reads(rd_sg) if (rd_sg is not None and "r" not in ABL) else []
            per = (len(extra) + nm - 1)//nm
            bper = (len(bg) + nm - 1)//nm
            rper = (len(rd) + 1)//2
            dch = list(dma_ch)
            k = 0
            for aa in range(nA):
                for b in range(nB):
                    if "m" not in ABL and not skip:
                        a(f"v_mfma_f32_32x32x16_bf16 {vr(ACC(aa,b),16)}, {vr(FA(p,aa),4)}, {vr(FB(p,b),4)}, {'0' if first else vr(ACC(aa,b),16)}")
                    for e in rd[rper*k:rper*(k+1)]: a(e)
                    ndc = (len(dch) + (nm - k) - 1)//(nm - k)
                    emit(dch[:ndc]); dch = dch[ndc:]
                    for e in extra[per*k:per*(k+1)]: a(e)
                    emit(bg[bper*k:bper*(k+1)])
                    k += 1
        def upd(sg, st):
            sreg = S_I if st % 3 == 2 else S_DL
            return [f"v_add_u32 v{r}, s{sreg}, v{r}" for r in addr_regs(sg)] if st < 9 else []
        def run(role):
            bgd = bg_H(early) if role == "H" else {i: [] for i in range(10)}
            if role == "L":
                o = bg_common() + (bg_L() if early else []); n = (len(o) + 4)//5
                for i in range(5): bgd[1+i] = o[n*i:n*(i+1)]
            for it in range(10):
                if role == "L":
                    if it == 0: emit(dma(1))
                    a(f"s_waitcnt vmcnt({ND if it < 9 else 0})")
                if SP and it == 0: stamp(a, 3)
                a("s_barrier")
                if SP and it == 0: stamp(a, 4)
                if "I" in ABL:
                    a(f"v_writelane_b32 v241, s12, {it}"); a("s_memtime s[12:13]")
                pre = []
                if role == "H":
                    if it == 4:
                        pre = [[f"v_xor_b32 v{VFR}, 8, v{VFL}"]]
                    if it == 8:
                        a("s_waitcnt vmcnt(0)")
                        a("s_mov_b64 exec, 1")
                        a(f"buffer_store_dword v203, v242, s[{SWS}:{SWS+3}], s{S_OFL} offen sc1")
                        a("s_mov_b64 exec, -1")
                    if it == 8 or it == 9:
                        Lx = lab("hk")
                        a(f"s_cmp_lg_u32 s{S_W}, 4")
                        a(f"s_cbranch_scc1 {Lx}")
                        if it == 8:
                            a(f"s_lshl_b32 s{T0}, s{S_TOK}, 3")
                            a(f"s_add_u32 s{S_O2}, s{T0}, {STF_OFF}")
                            a(f"buffer_load_dwordx4 v[160:163], v{VL16}, s[{SWS}:{SWS+3}], s{S_O2} offen sc1")
                            a(f"buffer_load_dwordx4 v[164:167], v{VL16}, s[{SWS}:{SWS+3}], s{S_O2} offen offset:{1024 if nB == 2 else 0} sc1")
                        if it == 9:
                            a(f"s_call_b64 s[{T4}:{T5}], L_stats")
                            if early: mbx_load(0)
                        a(f"{Lx}:")
                elif it == 9:
                    a(f"v_mov_b32 v4, {FL_OFF + 128}"); a("ds_read_b32 v5, v4")
                    pre = [[f"v_readfirstlane_b32 s{S_NON}, v5"]]
                xl = 1 if ((role == "H" and it == 3) or (role == "L" and it == 9)) else 0
                ch = dma(it + 2) if (role == "L" and it < 8 and "g" not in ABL) else []
                q = (len(ch) + 3)//4
                bg = bgd[it]; bq = (len(bg) + 3)//4
                if it == 0: bq = (len(bg) + 1)//2; b0, b1, b2, b3 = [], [], bg[:bq], bg[bq:]
                else: b0, b1, b2, b3 = bg[:bq], bg[bq:2*bq], bg[2*bq:3*bq], bg[3*bq:]
                group(2, 0, extra=(upd(3, it-1) + cs_ops(2, dw[hd:hd+qd])) if it else [], dma_ch=ch[0:q], bg=b0, skip=(it == 0))
                group(3, 1, extra=upd(0, it) + (cs_ops(2, dw[hd+qd:]) if it else []), dma_ch=ch[q:2*q], bg=b1, skip=(it == 0))
                a(f"s_waitcnt lgkmcnt({nR})")
                group(0, 2, extra=upd(1, it) + cs_ops(0, dw[:qd]), dma_ch=ch[2*q:3*q], bg=pre + b2, first=(it == 0))
                a(f"s_waitcnt lgkmcnt({nR})")
                group(1, 3, extra=upd(2, it) + cs_ops(0, dw[qd:hd]), dma_ch=ch[3*q:], bg=b3)
                a("s_waitcnt lgkmcnt(0)")
        if not SP: stamp(a, 1)
        a(f"s_cmp_lg_u32 s{S_ISH}, 0")
        a(f"s_cbranch_scc1 L_{tag}_h")
        run("L")
        a(f"s_branch L_{tag}_fin")
        a(f"L_{tag}_h:")
        if "T" in ABL: touches()
        a(f"v_lshlrev_b32 v1, 2, v{VT}")
        a(f"v_add_u32 v1, {FL_OFF}, v1")
        a(f"ds_write_b32 v1, v242")
        run("H")
        a(f"L_{tag}_fin:")
        group(2, None, extra=cs_ops(2, dw[hd:]))
        group(3, None)
        if not SP: stamp(a, 2)
        if "I" in ABL:
            a(f"v_writelane_b32 v241, s12, 10")
            a("s_waitcnt lgkmcnt(0)")
            a(f"v_writelane_b32 v241, s4, 0")
            a(f"v_writelane_b32 v241, s8, 11")
            a(f"s_lshl_b32 s{T0}, s2, 3"); a(f"s_add_u32 s{T0}, s{T0}, s3"); a(f"s_lshl_b32 s{T0}, s{T0}, 8"); a(f"s_add_u32 s{T0}, s{T0}, 0x1000000")
            a(f"v_lshlrev_b32 v2, 2, v{VL}")
            a(f"buffer_store_dword v241, v2, s[{SWS}:{SWS+3}], s{T0} offen")
        if "X" in ABL: endpgm(a, 0)
        a(f"s_mul_i32 s{T2}, s{S_MH}, {nA}")
        a(f"s_lshl_b32 s{T0}, s{T2}, 10")
        a(f"s_add_u32 s{T0}, s{T0}, {CS_OFF}")
        a(f"v_add_u32 v1, s{T0}, v{VL16}")
        a(f"s_lshl_b32 s{T1}, s{S_ROT}, 2")
        a(f"v_add_u32 v9, s{T1}, v1")
        for aa in range(nA):
            a(f"v_add_f32 v{2+aa}, v{CSA+2*aa}, v{CSA+2*aa+1}")
        for aa in range(nA):
            a(f"v_cvt_pk_bf16_f32 v{5+aa}, v{2+aa}, v{2+aa}")
        for aa in range(nA):
            a(f"v_lshlrev_b32 v{5+aa}, 16, v{5+aa}")
        for aa in range(nA):
            a(f"v_sub_f32 v{5+aa}, v{2+aa}, v{5+aa}")
        for aa in range(nA):
            a(f"v_cvt_pk_bf16_f32 v{5+aa}, v{2+aa}, v{5+aa}")
            a(f"ds_write_b32 v9, v{5+aa} offset:{1024*aa}")
        if early:
            Lx = lab("nost")
            a(f"s_cmp_lg_u32 s{S_W}, 4")
            a(f"s_cbranch_scc1 {Lx}")
            a("s_waitcnt vmcnt(0)")
            mbx_test()
            a(f"s_cbranch_scc0 {Lx}")
            lds_set(16)
            a(f"{Lx}:")
        a(f"s_lshl_b32 s{T1}, s{S_ROT}, {8 + (nB-1)}")
        a(f"s_add_u32 s{T1}, s{T1}, {ST_OFF}")
        a(f"v_lshl_add_u32 v5, v{VT}, 3, s{T1}")
        a(f"v_mov_b32 v6, {FL_OFF + 64}")
        a("s_waitcnt lgkmcnt(0)")
        a("s_barrier")
        for b in range(nB):
            a(f"ds_read_b64 {vr(160+4*b,2)}, v5 offset:{256*b}")
        for aa in range(nA):
            a(f"ds_read_b128 {vr(10+4*aa,4)}, v1 offset:{1024*aa}")
        if early:
            a("ds_read_b32 v4, v6")
        a(f"s_cmp_eq_u32 s{S_ISH}, 0")
        a(f"s_cbranch_scc1 L_{tag}_np")
        a("s_setprio 2")
        a(f"L_{tag}_np:")
        a(f"s_waitcnt lgkmcnt({nA + (1 if early else 0)})")
        for b in range(nB):
            a(f"v_mov_b32 v{26+b}, v{161+4*b}")
            for j in (1, 2, 3):
                a(f"v_mov_b32 v{160+4*b+j}, v{160+4*b}")
        a("s_waitcnt lgkmcnt(0)")
        a("s_nop 0")
        for b in range(nB):
            for aa in range(nA):
                a(f"v_mfma_f32_32x32x16_bf16 {vr(ACC(aa,b),16)}, {vr(10+4*aa,4)}, {vr(160+4*b,4)}, {vr(ACC(aa,b),16)}")

    FA = lambda p, aa: FBASE[p] + 4*aa
    FB = lambda p, b: FBASE[p] + 8 + 4*b
    ACC = lambda aa, b: 64 + 16*(2*aa + b)
    def reads_gu(sg):
        o = []
        for aa in range(2):
            for n in range(2):
                o.append(f"ds_read_b64_tr_b16 {vr(FA(sg,aa)+2*n,2)}, v{VAg(sg,aa)} offset:{512*n}")
            o.append(f"ds_read_b128 {vr(FB(sg,aa),4)}, v{VB(sg)} offset:{4096*aa}")
        return o
    p1_phase("gu", 2, 2, 12, dma_gu, reads_gu, FA, FB, ACC, lambda sg: [VAg(sg,0), VAg(sg,1), VB(sg)], True)
    a(f"v_readfirstlane_b32 s{S_EARLY}, v4")
    a(f"v_mul_f32 v26, v26, v26")
    a(f"v_mul_f32 v28, v27, v27")
    a(f"s_and_b32 s{S_EARLY}, s{S_EARLY}, s{S_ISH}")
    a(f"s_cmp_eq_u32 s{S_EARLY}, 1")
    a(f"s_cbranch_scc0 L_gu_ne")
    a(f"s_call_b64 s[{T4}:{T5}], L_attn_loads")
    a("L_gu_ne:")
    a(f"s_lshr_b32 s{T0}, s{S_TOK}, 5")
    a(f"s_lshl_b32 s{T1}, s{S_ROT}, 1")
    a(f"s_add_u32 s{T0}, s{T0}, s{T1}")
    a(f"s_mul_i32 s{T0}, s{T0}, 96")
    a(f"s_lshl_b32 s{T1}, s{S_COL}, 2")
    a(f"s_add_u32 s{T0}, s{T0}, s{T1}")
    a(f"s_add_u32 s{T0}, s{T0}, s{T2}")
    a(f"s_lshl_b32 s{T0}, s{T0}, 10")
    a(f"s_add_u32 s{T0}, s{T0}, {HF_OFF}")
    a(f"s_add_u32 s{T1}, s{T0}, {96*1024}")
    a("s_nop 1")
    for b in range(2):
        for aa in range(2):
            A = ACC(aa, b)
            for j in range(0, 8, 2):
                a(f"v_pk_mul_f32 {vr(A+j,2)}, {vr(A+j,2)}, {vr(26+2*b,2)} op_sel_hi:[1,0]")
            for j in range(0, 8, 2):
                a(f"v_pk_mul_f32 {vr(A+j,2)}, {vr(A+j,2)}, {vr(A+8+j,2)}")
            for q in range(4):
                a(f"v_cvt_pk_bf16_f32 v{A+q}, v{A+2*q}, v{A+2*q+1}")
            a(f"buffer_store_dwordx4 {vr(A,4)}, v{VL16}, s[{SWS}:{SWS+3}], s{T0 if b == 0 else T1} offen offset:{1024*aa} sc1")
    a("s_branch L_p2")

    a("L_stats:")
    a(f"s_mov_b32 s{T1}, 0")
    a("L_stats_l:")
    a("s_waitcnt vmcnt(0)")
    a(f"v_xor_b32 v4, s{S_NON}, v161")
    a(f"v_xor_b32 v5, s{S_NON}, v163")
    a(f"v_xor_b32 v6, s{S_NON}, v165")
    a(f"v_xor_b32 v7, s{S_NON}, v167")
    a("v_or3_b32 v4, v4, v5, v6")
    a("v_or_b32 v4, v4, v7")
    a("v_cmp_ne_u32 vcc, 0, v4")
    a(f"s_add_u32 s{T1}, s{T1}, 1")
    a("s_cmp_eq_u64 vcc, 0")
    a("s_cbranch_scc1 L_stats_d")
    a("s_sleep 8")
    a(f"s_cmp_lt_u32 s{S_IDX}, 24")
    a(f"s_cselect_b32 s{T0}, 1024, 0")
    a(f"s_add_u32 s{T0}, s{T0}, s{S_O2}")
    a(f"buffer_load_dwordx4 v[160:163], v{VL16}, s[{SWS}:{SWS+3}], s{S_O2} offen sc1")
    a(f"buffer_load_dwordx4 v[164:167], v{VL16}, s[{SWS}:{SWS+3}], s{T0} offen sc1")
    a(f"s_cmp_lt_u32 s{T1}, {SPIN_MAX}")
    a("s_cbranch_scc1 L_stats_l")
    a("L_stats_d:")
    a(f"s_mov_b32 s{T0}, 0x01000100")
    for r in (160, 162, 164, 166):
        a(f"v_and_b32 v{r+1}, 0xffff0000, v{r}")
        a(f"v_rcp_f32 v{r+1}, v{r+1}")
        a(f"v_perm_b32 v{r}, v{r}, v{r}, s{T0}")
    a(f"v_add_u32 v4, {ST_OFF}, v{VL16}")
    a(f"ds_write_b128 v4, v[160:163]")
    a(f"ds_write_b128 v4, v[164:167] offset:1024")
    a(f"s_setpc_b64 s[{T4}:{T5}]")

    a("L_q_rd:")
    VAq = lambda sg: 10 + sg
    a(f"v_lshlrev_b32 v2, 6, v2")
    a(f"v_lshl_add_u32 v2, v3, 5, v2")
    a(f"v_and_b32 v3, 3, v{VL}")
    a(f"v_lshl_add_u32 v2, v3, 3, v2")
    a(f"s_mul_i32 s{T0}, s{S_MH}, {3*4096}")
    a(f"s_add_u32 s{T0}, s{T0}, 16384")
    for sg in range(4):
        a(f"s_xor_b32 s{T1}, s{S_ROT}, {sg}")
        a(f"s_lshl_b32 s{T1}, s{T1}, 10")
        a(f"s_add_u32 s{T1}, s{T1}, s{T0}")
        a(f"v_add_u32 v{VAq(sg)}, s{T1}, v2")
    FA = lambda p, aa: FBASE[p] + 4*aa
    FB = lambda p, b: FBASE[p] + 12
    ACC = lambda aa, b: 64 + 16*aa
    def reads_q(sg):
        o = [f"ds_read_b128 {vr(FB(sg,0),4)}, v{VB(sg)}"]
        for aa in range(3):
            for n in range(2):
                o.append(f"ds_read_b64_tr_b16 {vr(FA(sg,aa)+2*n,2)}, v{VAq(sg)} offset:{4096*aa+256*n}")
        return o
    p1_phase("q", 3, 1, 10, dma_q, reads_q, FA, FB, ACC, lambda sg: [VAq(sg), VB(sg)], False)
    a(f"s_lshr_b32 s{T0}, s{S_TOK}, 5")
    a(f"s_add_u32 s{T0}, s{T0}, s{S_ROT}")
    a(f"s_mul_i32 s{T1}, s{T0}, 3584")
    a(f"s_add_u32 s{T1}, s{T1}, {KVF_OFF}")
    a(f"s_mul_i32 s{T0}, s{T0}, 40960")
    a(f"s_mul_i32 s{T3}, s{S_COL}, 6")
    a(f"s_add_u32 s{T2}, s{T2}, s{T3}")
    a(f"s_lshl_b32 s{T3}, s{T2}, 11")
    a(f"s_add_u32 s{T0}, s{T0}, s{T3}")
    a(f"v_mul_f32 v28, {f32bits(QSCALE)}, v26")
    a("s_nop 1")
    for aa in range(3):
        A = ACC(aa, 0)
        Lk, Ld = lab("kv"), lab("sd")
        a(f"s_cmp_lt_u32 s{T2}, {20-aa}")
        a(f"s_cbranch_scc0 {Lk}")
        for j in range(0, 16, 2):
            a(f"v_pk_mul_f32 {vr(A+j,2)}, {vr(A+j,2)}, v[28:29] op_sel_hi:[1,0]")
        for q in range(8):
            a(f"v_cvt_pk_bf16_f32 v{A+q}, v{A+2*q}, v{A+2*q+1}")
        for i in range(2):
            a(f"buffer_store_dwordx4 {vr(A+4*i,4)}, v{VL16}, s[{SWS}:{SWS+3}], s{T0} offen offset:{(2048*aa+1024*i) & 4095} sc1")
        if aa == 1:
            a(f"s_add_u32 s{T0}, s{T0}, 4096")
        a(f"s_branch {Ld}")
        a(f"{Lk}:")
        if aa == 2:
            a(f"s_cmp_eq_u32 s{T2}, 18")
            a(f"s_cbranch_scc0 {Ld}")
            for j in range(0, 12, 2):
                a(f"v_pk_mul_f32 {vr(A+j,2)}, {vr(A+j,2)}, v[26:27] op_sel_hi:[1,0]")
            for q in range(6):
                a(f"v_cvt_pk_bf16_f32 v{A+q}, v{A+2*q}, v{A+2*q+1}")
            a(f"v_mov_b32 v2, 0x3f803f80")
            a(f"v_cndmask_b32 v{A+5}, v{A+5}, 0, s[{S_UP}:{S_UP+1}]")
            a(f"v_cndmask_b32 v{A+4}, v{A+4}, v2, s[{S_UP}:{S_UP+1}]")
            a(f"buffer_store_dwordx4 {vr(A,4)}, v{VL16}, s[{SWS}:{SWS+3}], s{T1} offen sc1")
            a(f"buffer_store_dwordx2 {vr(A+4,2)}, v{VL8}, s[{SWS}:{SWS+3}], s{T1} offen offset:1024 sc1")
        elif aa == 0:
            for j in range(0, 12, 2):
                a(f"v_pk_mul_f32 {vr(A+j,2)}, {vr(A+j,2)}, v[26:27] op_sel_hi:[1,0]")
            a(f"s_mul_i32 s{T3}, s{S_ROT}, 2304")
            a(f"s_add_u32 s{T3}, s{T3}, {VT_OFF}")
            a(f"v_mul_u32_u24 v1, {4*72}, v{VH}")
            a(f"v_lshl_add_u32 v1, v{VT}, 1, v1")
            a(f"v_add_u32 v1, s{T3}, v1")
            a(f"v_mul_u32_u24 v2, 72, v{VT}")
            a(f"v_lshl_add_u32 v2, v{VH}, 3, v2")
            a(f"v_add_u32 v2, s{T3}, v2")
            a(f"v_cndmask_b32 v{A+8}, v{A+8}, 1.0, s[{S_UP}:{S_UP+1}]")
            for j in (9, 10, 11):
                a(f"v_cndmask_b32 v{A+j}, v{A+j}, 0, s[{S_UP}:{S_UP+1}]")
            a(f"v_cndmask_b32 v{A+12}, 1.0, 0, s[{S_UP}:{S_UP+1}]")
            for j in (13, 14, 15):
                a(f"v_mov_b32 v{A+j}, 0")
            for q in range(8):
                a(f"v_cvt_pk_bf16_f32 v{A+q}, v{A+2*q}, v{A+2*q+1}")
            for j in range(16):
                row = 8*(j >> 2) + (j & 3)
                op = "ds_write_b16_d16_hi" if j & 1 else "ds_write_b16"
                a(f"{op} v1, v{A+(j>>1)} offset:{row*72}")
            for f in range(2):
                a(f"ds_read2_b64 {vr(A+8+4*f,4)}, v2 offset0:{4*f} offset1:{4*f+2}")
            a("s_waitcnt lgkmcnt(0)")
            for f in range(2):
                a(f"buffer_store_dwordx4 {vr(A+8+4*f,4)}, v{VL16}, s[{SWS}:{SWS+3}], s{T1} offen offset:{1536+1024*f} sc1")
        a(f"{Ld}:")

    a(f"s_cmp_lg_u32 s{S_ISH}, 0")
    a(f"s_cbranch_scc1 L_q_lh")
    emit(bg_L())
    a("s_branch L_q_lx")
    a("L_q_lh:")
    emit(bg_H(late=True))
    a("L_q_lx:")
    a("s_waitcnt vmcnt(0)")
    a("s_barrier")
    a(f"s_cmp_lg_u32 s{S_W}, 4")
    a(f"s_cbranch_scc1 L_p2")
    a(f"s_lshl_b32 s{T0}, s{S_TOK}, 2")
    a(f"s_lshl_b32 s{T1}, s{S_COL}, 7")
    a(f"s_add_u32 s{T0}, s{T0}, s{T1}")
    a(f"s_add_u32 s{T0}, s{T0}, {QFL_OFF}")
    a("s_mov_b64 exec, 1")
    a(f"v_mov_b32 v2, s{S_NON}")
    a(f"buffer_store_dword v2, v244, s[{SWS}:{SWS+3}], s{T0} offen sc1")
    a("s_mov_b64 exec, -1")
    a("L_p2:")
    if not SP: stamp(a, 3)
    a(f"v_mov_b32 v15, 1")
    a(f"v_mov_b32 v14, s{S_NON}")
    a(f"s_cmp_lg_u32 s{S_ISH}, 0")
    a(f"s_cbranch_scc1 L_attn")
    KQ = S_WQ
    S_OA, S_OB, S_M, S_IT = 78, 82, 80, 81
    VXR = 180
    ACC = lambda m: 64 + 16*m
    FA0 = 144
    FB = lambda s: 192 + 4*s
    make_srd(a, SA, P_WD, 1536*1280)
    make_srd(a, SB2, P_WS, WS_SIZE)
    make_srd(a, SC, P_OUT, 2048*1280)
    a(f"s_mul_i32 s{S_OA}, s{KQ}, {24*16*1280}")
    a(f"s_mul_i32 s{S_M}, s{KQ}, {RSZ}")
    a(f"s_mul_i32 s{S_OB}, s{S_TB}, 96")
    a(f"s_mul_i32 s{T0}, s{KQ}, 24")
    a(f"s_add_u32 s{S_OB}, s{S_OB}, s{T0}")
    a(f"s_lshl_b32 s{S_OB}, s{S_OB}, 10")
    a(f"s_add_u32 s{S_OB}, s{S_OB}, {HF_OFF}")
    S_RT = 83
    a(f"s_and_b32 s{S_RT}, s{S_TB}, 3")
    a(f"s_mul_i32 s{T0}, s{S_RT}, {6*16*1280}")
    a(f"s_add_u32 s{S_OA}, s{S_OA}, s{T0}")
    a(f"s_mul_i32 s{T0}, s{S_RT}, {6*1024}")
    a(f"s_add_u32 s{S_OB}, s{S_OB}, s{T0}")
    def dma_a(slot):
        a(f"s_add_u32 m0, s{S_M}, {slot*5120}")
        a(f"s_add_u32 s{T2}, s{S_M}, {slot*5120+4096}")
        for j in range(4):
            a(f"buffer_load_dwordx4 v{VD[j]}, s[{SA}:{SA+3}], s{S_OA} offen offset:{1024*j} lds")
        a(f"s_mov_b32 m0, s{T2}")
        a("s_nop 0")
        a(f"buffer_load_dwordx4 v{VD[4]}, s[{SA}:{SA+3}], s{S_OA} offen lds")
        a(f"s_add_u32 s{S_OA}, s{S_OA}, {16*1280}")
    def load_b(reg):
        a(f"buffer_load_dwordx4 {vr(reg,4)}, v{VL16}, s[{SB2}:{SB2+3}], s{S_OB} offen sc1")
        a(f"s_add_u32 s{S_OB}, s{S_OB}, 1024")
    a("s_waitcnt vmcnt(0)")
    a(f"ds_write_b32 v{VFL}, v15")
    if SB: stamp(a, 1)
    for m in range(5):
        zero_mfma(ACC(m), VZ)
    a(f"s_cmp_lg_u32 s{S_W}, 0")
    a(f"s_cbranch_scc1 L_l_ring")
    a(f"s_cmp_ge_u32 s{S_IDX}, 24")
    a(f"s_cbranch_scc1 L_l_ring")
    lds_wait(0, 8, sleep=1)
    if SB: stamp(a, 2)
    a(f"s_lshl_b32 s{T0}, s{S_TOK}, 4")
    a(f"s_lshl_b32 s{T1}, s{S_COL}, 7")
    a(f"s_add_u32 s{T0}, s{T0}, s{T1}")
    a(f"s_add_u32 s{T0}, s{T0}, {HFL_OFF}")
    a("s_mov_b64 exec, 1")
    a(f"buffer_store_dword v14, v{VZ}, s[{SWS}:{SWS+3}], s{T0} offen sc1")
    a("s_mov_b64 exec, -1")
    a("L_l_ring:")
    lds_wait(28, 4, sleep=2)
    for s in range(RING):
        dma_a(s)
    for m in range(5):
        a(f"buffer_load_dwordx2 {vr(VXR+2*m,2)}, v{VXO}, s[{SX}:{SX+3}], 0 offen offset:{64*m}")
    a(f"s_cmp_lg_u32 s{S_W}, 0")
    a(f"s_cbranch_scc1 L_l_pub")
    mbx_wait(1, 10)
    lds_set(18)
    a("L_l_pub:")
    lds_wait(18, sleep=8)
    for s in range(RING):
        load_b(FB(s))
    a(f"s_mov_b32 s{S_IT}, 0")
    a("s_waitcnt vmcnt(0)")
    if not SP: stamp(a, 4)
    a(".p2align 6")
    a("L_gloop:")
    a(f"s_add_u32 s{S_RT}, s{S_RT}, 1")
    a(f"s_cmp_eq_u32 s{S_RT}, 4")
    a(f"s_cselect_b32 s{T0}, {24*16*1280}, 0")
    a(f"s_cselect_b32 s{T1}, {24*1024}, 0")
    a(f"s_sub_u32 s{S_OA}, s{S_OA}, s{T0}")
    a(f"s_sub_u32 s{S_OB}, s{S_OB}, s{T1}")
    a(f"s_cmp_lt_u32 s{S_IT}, 3")
    a(f"s_cbranch_scc1 L_gl1")
    a(f"s_mov_b64 s[{SA}:{SA+1}], s[{P_WO}:{P_WO+1}]")
    a(f"s_mov_b32 s{SA+2}, {640*1280}")
    a(f"s_mov_b32 s{SB2+2}, 0")
    a(f"s_mul_i32 s{S_OA}, s{KQ}, {160*1280}")
    a("L_gl1:")
    def rd_a(dst, slot, va, nrow):
        for m in range(5):
            for n in range(2):
                a(f"ds_read_b64_tr_b16 {vr(dst+4*m+2*n,2)}, v{va} offset:{slot*5120 + n*nrow + m*64}")
    def mm(fa, fb):
        for m in range(5):
            a(f"v_mfma_f32_32x32x16_bf16 {vr(ACC(m),16)}, {vr(fa+4*m,4)}, {vr(fb,4)}, {vr(ACC(m),16)}")
    for s in range(RING):
        a(f"s_waitcnt vmcnt({6*(RING-1)})")
        rd_a(FA0, s, VAR, 2560)
        a("s_waitcnt lgkmcnt(0)")
        dma_a(s)
        mm(FA0, FB(s))
        load_b(FB(s))
    a(f"s_add_u32 s{S_IT}, s{S_IT}, 1")
    a(f"s_cmp_lt_u32 s{S_IT}, 4")
    a(f"s_cbranch_scc1 L_gloop")
    PRE = [144, 2, 22, 42]
    OB = lambda k: 192 + 4*k
    a(f"s_mov_b32 s{SB2+2}, {WS_SIZE}")
    a(f"s_mul_i32 s{S_OB}, s{S_TB}, 40")
    a(f"s_mul_i32 s{T0}, s{KQ}, 10")
    a(f"s_add_u32 s{S_OB}, s{S_OB}, s{T0}")
    a(f"s_lshl_b32 s{S_OB}, s{S_OB}, 10")
    a(f"s_add_u32 s{S_OB}, s{S_OB}, {OF_OFF}")
    a(f"s_add_u32 s{T0}, s{S_OB}, 4096")
    a(f"s_add_u32 s{T1}, s{S_OB}, 8192")
    a("s_waitcnt vmcnt(12)")
    for k in range(4):
        rd_a(PRE[k], k, VAR2, 1280)
    a("s_waitcnt lgkmcnt(0)")
    for k in range(4):
        dma_a(k)
    for m in range(5):
        for q in range(2):
            a(f"v_lshlrev_b32 v{232+0}, 16, v{VXR+2*m+q}")
            a(f"v_and_b32 v{233}, 0xffff0000, v{VXR+2*m+q}")
            a(f"v_add_f32 v{ACC(m)+2*q}, v{ACC(m)+2*q}, v232")
            a(f"v_add_f32 v{ACC(m)+2*q+1}, v{ACC(m)+2*q+1}, v233")
    a(f"v_mov_b32 v232, {FL_OFF + 80}")
    a("L_ow:")
    a("ds_read_b128 v[236:239], v232")
    a("s_waitcnt lgkmcnt(0)")
    a("v_bitop3_b32 v236, v236, v237, v238 bitop3:0xfe")
    a("v_or_b32 v236, v236, v239")
    a("s_nop 0")
    a(f"v_readfirstlane_b32 s{T4}, v236")
    a("s_nop 0")
    a(f"s_cmp_eq_u32 s{T4}, 1")
    a(f"s_cbranch_scc1 L_owd")
    a("s_sleep 6")
    a(f"s_branch L_ow")
    a("L_owd:")
    a(f"s_mov_b32 s{T5}, 0")
    def ld_o(k):
        a(f"buffer_load_dwordx4 {vr(OB(k),4)}, v{VL16}, s[{SB2}:{SB2+3}], s{[S_OB, T0, T1][k >> 2]} offen offset:{1024*(k & 3)} sc1")
    for k in range(10):
        ld_o(k)
    for k in range(10):
        a(f"s_waitcnt vmcnt({9-k})")
        a(f"L_oc{k}:")
        a(f"v_max3_u32 v232, v{OB(k)}, v{OB(k)+1}, v{OB(k)+2}")
        a(f"v_max_u32 v232, v232, v{OB(k)+3}")
        a(f"v_cmp_eq_u32 vcc, -1, v232")
        if k >= 4:
            a(f"s_waitcnt lgkmcnt({min(15, 10*min(3, 9-k))})")
        a("s_cmp_lg_u64 vcc, 0")
        a(f"s_cbranch_scc1 L_or{k}")
        a(f"L_og{k}:")
        if k == 0 and STAMPS and not SB and not SP: a("s_memtime s[6:7]")
        mm(PRE[k & 3], OB(k))
        if k + 4 < 10:
            kk = k + 4
            rd_a(PRE[k & 3], kk if kk < 6 else kk - 6, VAR2, 1280)
    if STAMPS and not SB and not SP: a("s_memtime s[8:9]")
    a(f"v_mov_b32 v15, 1")
    a(f"v_mov_b32 v12, {FL_OFF+48}")
    a("s_nop 5")
    for m in range(5):
        for i in range(1, 4):
            a(f"ds_write_b128 v{VRW}, {vr(ACC(m)+4*i,4)} offset:{((i-1)*5+m)*1024}")
    a("s_waitcnt lgkmcnt(0)")
    a(f"ds_write_b32 v{VFL}, v15 offset:48")
    a("L_gpoll:")
    a(f"ds_read_b128 v[4:7], v12")
    a("s_waitcnt lgkmcnt(0)")
    a("v_bitop3_b32 v4, v4, v5, v6 bitop3:0x80")
    a("v_and_b32 v4, v4, v7")
    a("s_nop 0")
    a(f"v_readfirstlane_b32 s{T0}, v4")
    a("s_nop 0")
    a(f"s_cmp_eq_u32 s{T0}, 1")
    a(f"s_cbranch_scc0 L_gpoll")
    for m in range(5):
        for i in range(1, 4):
            a(f"ds_read_b128 {vr(ACC(m)+4*i,4)}, v{VRD[i]} offset:{((i-1)*5+m)*1024}")
    for m in range(5):
        A = ACC(m)
        a(f"s_waitcnt lgkmcnt({12-3*m})")
        for h2 in range(2):
            a(f"v_pk_add_f32 {vr(A+2*h2,2)}, {vr(A+2*h2,2)}, {vr(A+4+2*h2,2)}")
            a(f"v_pk_add_f32 {vr(A+8+2*h2,2)}, {vr(A+8+2*h2,2)}, {vr(A+12+2*h2,2)}")
        for h2 in range(2):
            a(f"v_pk_add_f32 {vr(A+2*h2,2)}, {vr(A+2*h2,2)}, {vr(A+8+2*h2,2)}")
        a(f"v_cvt_pk_bf16_f32 v{A}, v{A}, v{A+1}")
        a(f"v_cvt_pk_bf16_f32 v{A+1}, v{A+2}, v{A+3}")
        a(f"buffer_store_dwordx2 {vr(A,2)}, v{VXO}, s[{SC}:{SC+3}], 0 offen offset:{64*m}")
    endpgm(a, 0)

    for k in range(10):
        a(f"L_or{k}:")
        a("s_waitcnt vmcnt(0)")
        for j in range(k, 10): ld_o(j)
        a(f"s_add_u32 s{T5}, s{T5}, 1")
        a(f"s_cmp_lt_u32 s{T5}, {SPIN_MAX}")
        a(f"s_waitcnt vmcnt({9-k})")
        a(f"s_cbranch_scc1 L_oc{k}")
        a(f"s_branch L_og{k}")

    S_IT = 78
    def load_kv(r):
        a(f"buffer_load_dwordx4 {vr(K1(r),4)}, v{VL16}, s[{SWS}:{SWS+3}], s{S_KV} offen sc1")
        a(f"buffer_load_dwordx2 {vr(K2(r),2)}, v{VL8}, s[{SWS}:{SWS+3}], s{S_KV} offen offset:1024 sc1")
        a(f"buffer_load_dwordx4 {vr(V1(r),4)}, v{VL16}, s[{SWS}:{SWS+3}], s{S_KV} offen offset:1536 sc1")
        a(f"buffer_load_dwordx4 {vr(V2(r),4)}, v{VL16}, s[{SWS}:{SWS+3}], s{S_KV} offen offset:2560 sc1")
        a(f"s_add_u32 s{S_KV}, s{S_KV}, 3584")
    a("L_attn_loads:")
    a(f"s_mul_i32 s{T0}, s{S_TB}, 40960")
    for d in (Q1(0), Q1(0)+2, Q2(0)):
        a(f"buffer_load_dwordx2 {vr(d,2)}, v{d}, s[{SWS}:{SWS+3}], s{T0} offen sc1")
    load_kv(0)
    for q in range(1, 4):
        for d in (Q1(q), Q1(q)+2, Q2(q)):
            a(f"buffer_load_dwordx2 {vr(d,2)}, v{d}, s[{SWS}:{SWS+3}], s{T0} offen sc1")
    for r in range(1, 3):
        load_kv(r)
    a(f"s_setpc_b64 s[{T4}:{T5}]")

    a("L_attn:")
    for q in range(4):
        zero_mfma(O(q), V2(3))
    a(f"s_cmp_eq_u32 s{S_EARLY}, 1")
    a(f"s_cbranch_scc1 L_attn_go")
    a("s_waitcnt vmcnt(0)")
    a(f"ds_write_b32 v{VFL}, v15")
    if SB: stamp(a, 1)
    a(f"s_cmp_lg_u32 s{S_W}, 4")
    a(f"s_cbranch_scc1 L_attn_w")
    mbx_wait(0, 1)
    lds_set(17)
    a("L_attn_w:")
    lds_wait(17, sleep=1)
    if SB: stamp(a, 2)
    a(f"s_call_b64 s[{T4}:{T5}], L_attn_loads")
    a("L_attn_go:")
    a(f"s_lshl_b32 s{T0}, s2, 3")
    a(f"s_add_u32 s{T0}, s{T0}, s{S_WQ}")
    a(f"s_cmp_lg_u32 s{T0}, 0")
    a(f"s_cbranch_scc1 L_attn_g2")
    a(f"s_mov_b32 s{T0}, {EPOCH_OFF}")
    a("v_mov_b32 v2, 0")
    a("s_mov_b64 exec, 1")
    a(f"buffer_store_dword v14, v2, s[{SWS}:{SWS+3}], s{T0} offen sc1")
    a("s_mov_b64 exec, -1")
    a("L_attn_g2:")
    for r in range(P1, P1+4):
        a(f"v_mov_b32 v{r}, 0")
    a(f"s_mov_b32 s{S_IT}, 0")
    a("s_waitcnt vmcnt(8)")
    a(f"ds_write_b32 v{VFL}, v15 offset:96")
    if not SP: stamp(a, 4)
    def qk1(buf, r, q): a(f"v_mfma_f32_32x32x16_bf16 {vr(S(buf),16)}, {vr(K1(r),4)}, {vr(Q1(q),4)}, 0")
    def qk2(buf, r, q): a(f"v_mfma_f32_32x32x8_bf16 {vr(S(buf),16)}, {vr(K2(r),2)}, {vr(Q2(q),2)}, {vr(S(buf),16)}")
    def pv(q, vreg, preg): a(f"v_mfma_f32_32x32x16_bf16 {vr(O(q),16)}, {vr(vreg,4)}, {vr(preg,4)}, {vr(O(q),16)}")
    def E(buf, i0):
        for i in range(i0, i0+4): a(f"v_exp_f32 v{S(buf)+i}, v{S(buf)+i}")
    def C(dst, buf, i): a(f"v_cvt_pk_bf16_f32 v{dst}, v{S(buf)+i}, v{S(buf)+i+1}")
    qk1(0, 0, 0); qk2(0, 0, 0)
    a("s_nop 10")
    a(".p2align 6")
    a("L_aloop:")
    for r in range(4):
        for q in range(4):
            buf = q & 1; nb = buf ^ 1
            nr, nq = (r, q+1) if q < 3 else ((r+1) & 3, 0)
            pr, pq = (r, q-1) if q > 0 else ((r-1) & 3, 3)
            if q == 3:
                a("s_waitcnt vmcnt(8)")
                if r == 1:
                    a(f"ds_write_b32 v{VFL}, v15")
            qk1(nb, nr, nq); E(buf, 0)
            pv(pq, V2(pr), P1); C(P0, buf, 0); C(P0+1, buf, 2)
            if q == 0:
                load_kv((r+3) & 3)
            E(buf, 4)
            qk2(nb, nr, nq); C(P0+2, buf, 4); C(P0+3, buf, 6); E(buf, 8)
            pv(q, V1(r), P0); C(P1, buf, 8); C(P1+1, buf, 10); E(buf, 12); C(P1+2, buf, 12); C(P1+3, buf, 14)
    a(f"s_add_u32 s{S_IT}, s{S_IT}, 1")
    a(f"s_cmp_lt_u32 s{S_IT}, 8")
    a(f"s_cbranch_scc1 L_aloop")
    a(f"ds_write_b32 v{VFL}, v15 offset:64")
    pv(3, V2(3), P1)
    if STAMPS and not SB and not SP: a("s_memtime s[6:7]")
    for i in range(3):
        a(f"ds_write_b128 v{VCW}, {vr(O(2)+4*i,4)} offset:{1024*i}")
    a(f"ds_write_b32 v{VCW4}, v{O(2)+12} offset:3072")
    a("s_nop 8")
    for i in range(3):
        a(f"ds_write_b128 v{VCW}, {vr(O(3)+4*i,4)} offset:{4096+1024*i}")
    a(f"ds_write_b32 v{VCW4}, v{O(3)+12} offset:{4096+3072}")
    a("s_waitcnt lgkmcnt(0)")
    a(f"ds_write_b32 v{VFL}, v15 offset:16")
    a("L_apoll:")
    a(f"ds_read_b32 v2, v{VFR} offset:16")
    a("s_waitcnt lgkmcnt(0)")
    a(f"v_readfirstlane_b32 s{T0}, v2")
    a("s_nop 0")
    a(f"s_cmp_eq_u32 s{T0}, 1")
    a(f"s_cbranch_scc0 L_apoll")
    for q in range(2):
        for i in range(3):
            a(f"ds_read_b128 {vr(O(2+q)+4*i,4)}, v{VCR} offset:{4096*q+1024*i}")
        a(f"ds_read_b32 v{O(2+q)+12}, v{VCR4} offset:{4096*q+3072}")
    for q in range(2):
        a(f"s_waitcnt lgkmcnt({4-4*q})")
        for j in range(0, 12, 2):
            a(f"v_pk_add_f32 {vr(O(q)+j,2)}, {vr(O(q)+j,2)}, {vr(O(2+q)+j,2)}")
        a(f"v_add_f32 v{O(q)+12}, v{O(q)+12}, v{O(2+q)+12}")
    for q in range(2):
        a(f"v_cndmask_b32 v{4+2*q}, v{O(q)+12}, v{O(q)+8}, s[{S_UP}:{S_UP+1}]")
    a(f"v_mov_b32 v2, 0")
    a(f"v_mov_b32 v3, 0")
    a(f"v_mov_b32 v8, 0")
    for q in range(2):
        for j in range(0, 12, 2):
            a(f"v_pk_fma_f32 v[2:3], {vr(O(q)+j,2)}, v[8:9], v[2:3] op_sel_hi:[1,0,1]")
    a(f"v_min_f32 v10, v4, v6")
    a(f"v_max_f32 v11, v4, v6")
    a(f"v_fmac_f32 v2, 0, v4")
    a(f"v_fmac_f32 v3, 0, v6")
    a(f"v_cmp_le_f32 vcc, 0x1f800000, v10")
    a(f"s_mov_b64 s[{T0}:{T1}], vcc")
    a(f"v_cmp_ge_f32 vcc, 0x5f800000, v11")
    a(f"s_and_b64 s[{T0}:{T1}], s[{T0}:{T1}], vcc")
    a(f"v_cmp_o_f32 vcc, v2, v3")
    a(f"s_and_b64 s[{T0}:{T1}], s[{T0}:{T1}], vcc")
    a(f"s_cmp_eq_u64 s[{T0}:{T1}], exec")
    a("s_branch L_fb" if force_fallback else "s_cbranch_scc0 L_fb")
    a("L_norm:")
    for q in range(2):
        a(f"v_rcp_f32 v{4+2*q}, v{4+2*q}")
    a("s_nop 0")
    for q in range(2):
        for j in range(0, 12, 2):
            a(f"v_pk_mul_f32 {vr(O(q)+j,2)}, {vr(O(q)+j,2)}, {vr(4+2*q,2)} op_sel_hi:[1,0]")
    A_, B_ = O(0), O(1)
    def cvs(d, x):
        a(f"v_cvt_pk_bf16_f32 v{d}, v{x}, v{x+1}")
    for k in range(4): cvs(A_+k, A_+2*k)
    for k in range(4): a(f"v_min_u32 v{A_+k}, -2, v{A_+k}")
    for k in (4, 5): cvs(A_+k, A_+2*k)
    a(f"v_permlane32_swap_b32 v{A_}, v{A_+2}")
    a(f"v_permlane32_swap_b32 v{A_+1}, v{A_+3}")
    cvs(A_+6, B_); cvs(A_+7, B_+2)
    a(f"buffer_store_dwordx4 {vr(A_,4)}, v{VL16}, s[{SWS}:{SWS+3}], s{S_OO} offen sc1")
    cvs(B_, B_+4); cvs(B_+1, B_+6); cvs(B_+4, B_+8); cvs(B_+5, B_+10)
    for r in (A_+4, A_+5, A_+6, A_+7, B_, B_+1, B_+4, B_+5):
        a(f"v_min_u32 v{r}, -2, v{r}")
    a(f"v_cndmask_b32 v{A_+4}, v{A_+4}, v{A_+6}, s[{S_UP}:{S_UP+1}]")
    a(f"v_cndmask_b32 v{A_+5}, v{A_+5}, v{A_+7}, s[{S_UP}:{S_UP+1}]")
    a(f"v_permlane32_swap_b32 v{A_+6}, v{B_}")
    a(f"v_permlane32_swap_b32 v{A_+7}, v{B_+1}")
    a(f"v_permlane32_swap_b32 v{B_+2}, v{B_+4}")
    a(f"v_permlane32_swap_b32 v{B_+3}, v{B_+5}")
    a(f"buffer_store_dwordx4 {vr(A_+4,4)}, v{VL16}, s[{SWS}:{SWS+3}], s{S_OO} offen offset:1024 sc1")
    a("s_mov_b32 exec_lo, 0")
    a(f"buffer_store_dwordx4 {vr(B_,4)}, v{VL16}, s[{SWS}:{SWS+3}], s{S_OO} offen offset:1536 sc1")
    a("s_mov_b64 exec, -1")
    endpgm(a, 0)
    a("L_fb:")
    a("s_waitcnt vmcnt(0)")
    a(f"v_mov_b32 v4, 0xff800000")
    a(f"v_mov_b32 v5, 0xff800000")
    a(f"s_mov_b32 s{S_KV}, {KVF_OFF}")
    a(f"s_mov_b32 s{S_IT}, 0")
    a("L_fb1:")
    load_kv(0)
    a("s_waitcnt vmcnt(0)")
    for q in range(2):
        qk1(q, 0, q); qk2(q, 0, q)
    a("s_nop 15")
    for q in range(2):
        for j in range(0, 16, 2):
            a(f"v_max3_f32 v{4+q}, v{S(q)+j}, v{S(q)+j+1}, v{4+q}")
    a(f"s_add_u32 s{S_IT}, s{S_IT}, 1")
    a(f"s_cmp_lt_u32 s{S_IT}, 64")
    a(f"s_cbranch_scc1 L_fb1")
    for q in range(2):
        a(f"v_mov_b32 v6, v{4+q}")
        a("s_nop 1")
        a(f"v_permlane32_swap_b32 v6, v{4+q}")
        a("s_nop 1")
        a(f"v_max_f32 v6, v6, v{4+q}")
        a(f"v_sub_f32 v6, 0, v6")
        a(f"v_cvt_pk_bf16_f32 v7, v6, v6")
        a(f"v_lshlrev_b32 v7, 16, v7")
        a(f"v_sub_f32 v8, v6, v7")
        a(f"v_cvt_pk_bf16_f32 v7, v7, v8")
        a(f"v_cndmask_b32 v{Q2(q)}, v{Q2(q)}, v7, s[{S_UP}:{S_UP+1}]")
        for j in range(16):
            a(f"v_mov_b32 v{O(q)+j}, 0")
    a(f"s_mov_b32 s{S_KV}, {KVF_OFF}")
    a(f"s_mov_b32 s{S_IT}, 0")
    a("L_fb2:")
    load_kv(0)
    a("s_waitcnt vmcnt(0)")
    for q in range(2):
        qk1(q, 0, q); qk2(q, 0, q)
    a("s_nop 15")
    for q in range(2):
        for i0 in range(0, 16, 4): E(q, i0)
        a("s_nop 0")
        for k in range(4): C(P0+k, q, 2*k)
        for k in range(4): C(P1+k, q, 8+2*k)
        a("s_nop 1")
        pv(q, V1(0), P0); pv(q, V2(0), P1)
    a(f"s_add_u32 s{S_IT}, s{S_IT}, 1")
    a(f"s_cmp_lt_u32 s{S_IT}, 64")
    a(f"s_cbranch_scc1 L_fb2")
    a("s_nop 15")
    for q in range(2):
        a(f"v_cndmask_b32 v{4+2*q}, v{O(q)+12}, v{O(q)+8}, s[{S_UP}:{S_UP+1}]")
    a("s_branch L_norm")
    a("L_end:")
    a("s_endpgm")
    return a, kernel_desc(name, 256)

def build(force_fallback=False):
    hdr = open("cdna_kernels/%s.s.ref" % NAME).read().split("\n")
    hdr = [l for l in hdr if l.startswith(";") and "@launch" not in l and "Override" not in l and "grid=ceil" not in l]
    body, desc = gen(NAME + "_kernel", force_fallback)
    out = "\n".join(hdr) + "\n"
    out += f"; @launch grid=(256,1,1) block=(512,1,1) lds={LDS_BYTES}\n"
    out += '.amdgcn_target "amdgcn-amd-amdhsa--gfx950"\n.text\n'
    out += body.text()
    out += '.section .rodata,"a"\n' + desc
    return out

if __name__ == "__main__":
    out = sys.argv[1] if len(sys.argv) > 1 else "cdna_kernels/%s.s" % NAME
    open(out, "w").write(build("fb" in sys.argv[2:]))
    print("wrote", out)
```

```python
from common import *
import math, sys

STF_OFF = 0x2F0000
QFL_OFF, HFL_OFF = 0x2D0000, 0x2D4000
MBX_OFF = 0x2D0000
EPOCH_OFF = 0x2FF000
OFL_OFF = 0x2F8000
STG = 49408
RING = 6
RSZ = RING * 5120
CB_OFF = 4 * RSZ
CS_OFF = CB_OFF
ST_OFF = 3 * STG
VT_OFF = CB_OFF + 8192
FL_OFF = CB_OFF + 32768
LDS_BYTES = FL_OFF + 192
G_OFF, U_REL = 32768, 8256
KVS = 2688 if os.environ.get("KVC", "1") == "1" else 3584
QSCALE = math.log2(math.e) / math.sqrt(20.0)
SPIN_MAX = 1 << 18
ABL = os.environ.get("ABL", "")
SB = "B" in ABL
SP = "P" in ABL
PACE = int(os.environ.get("PACE", "2"))
PRE0 = int(os.environ.get("PRE0", "0"))
LATEH = int(os.environ.get("LATEH", "1"))
KVC = int(os.environ.get("KVC", "1"))
HINT = int(os.environ.get("HINT", "2"))
RSL = int(os.environ.get("RSL", "4"))

S_W = 3
SX, SWS, SDBG, SA, SB2, SC, SD = 40, 44, 48, 52, 56, 60, 88
S_TH, S_CG, S_IDX, S_WQ, S_ISH, S_TB, S_G, S_TOK = 64, 65, 66, 67, 68, 69, 70, 71
T0, T1, T2, T3, T4, T5 = 72, 73, 74, 75, 76, 77
S_I, S_DB, S_RB, S_OX, S_OW, S_O2, S_O3, S_ST2 = 78, 79, 80, 81, 82, 83, 84, 85
S_EARLY, S_COL = 86, 87
S_UP = 92
S_MBX, S_ROT, S_MH, S_DL = 99, 100, 101, 98
S_NON = 79
S_OO = 56
S_OFL, S_KV, S_H0, S_K2 = 52, 53, 54, 55
VL, VT, VH, VL16, VL8, VF, VFL = 250, 251, 252, 253, 254, 249, 248
VLV = 0
VZ = 244
FBASE = [32, 48, 128, 144]
CSA = 26

def gen(name, force_fallback=False):
    a = Asm()
    kernel_begin(a, name)
    uid = [0]
    def lab(s):
        uid[0] += 1
        return f"L{uid[0]}_{s}"
    def emit(ch):
        for c in ch:
            for l in c: a(l)
    def lds_set(idx):
        a(f"v_mov_b32 v2, {FL_OFF + 4*idx}")
        a(f"v_mov_b32 v3, 1")
        a(f"ds_write_b32 v2, v3")
    def lds_wait(idx, n=1, sleep=1):
        L = lab("lw")
        a(f"v_mov_b32 v2, {FL_OFF + 4*idx}")
        a(f"{L}:")
        if n == 1:
            a("ds_read_b32 v4, v2")
            a("s_waitcnt lgkmcnt(0)")
        else:
            a("ds_read_b128 v[4:7], v2")
            if n == 8: a("ds_read_b128 v[8:11], v2 offset:16")
            a("s_waitcnt lgkmcnt(0)")
            a("v_bitop3_b32 v4, v4, v5, v6 bitop3:0x80")
            if n == 8:
                a("v_bitop3_b32 v8, v8, v9, v10 bitop3:0x80")
                a("v_bitop3_b32 v4, v4, v8, v11 bitop3:0x80")
            a("v_and_b32 v4, v4, v7")
            a("s_nop 0")
        a(f"v_readfirstlane_b32 s{T4}, v4")
        a("s_nop 0")
        a(f"s_cmp_eq_u32 s{T4}, 1")
        a(f"s_cbranch_scc1 {L}_d")
        a(f"s_sleep {sleep}")
        a(f"s_branch {L}")
        a(f"{L}_d:")
    def mbx_load(line):
        if line == 0:
            a(f"s_lshr_b32 s{T1}, s{S_TB}, 2")
            a(f"s_lshl_b32 s{T1}, s{T1}, 9")
            a(f"v_and_b32 v2, 3, v{VL}")
            a(f"v_lshl_add_u32 v2, v2, 7, s{T1}")
            a(f"v_and_b32 v3, 15, v{VL}")
            a(f"v_lshlrev_b32 v3, 9, v3")
            a(f"v_add_u32 v3, 384, v3")
            a(f"s_mov_b32 s{T0}, {QFL_OFF}")
            a(f"v_cndmask_b32 v2, v3, v2, s[{S_UP}:{S_UP+1}]")
        else:
            a(f"s_and_b32 s{T0}, s2, 7")
            a(f"s_lshl_b32 s{T0}, s{T0}, 12")
            a(f"s_add_u32 s{T0}, s{T0}, {HFL_OFF}")
            a(f"s_lshl_b32 s{T1}, s{S_TB}, 7")
            a(f"s_add_u32 s{T1}, s{T1}, {OFL_OFF}")
            a(f"s_sub_u32 s{T1}, s{T1}, s{T0}")
            a(f"v_and_b32 v2, 15, v{VL}")
            a(f"v_lshl_add_u32 v2, v2, 2, s{T1}")
            a(f"v_min_u32 v3, 23, v{VL}")
            a(f"v_lshlrev_b32 v3, 7, v3")
            a(f"v_cndmask_b32 v2, v3, v2, s[{S_UP}:{S_UP+1}]")
        a(f"buffer_load_dword v{VF}, v2, s[{SWS}:{SWS+3}], s{T0} offen sc1")
    def mbx_test():
        a(f"v_cmp_ne_u32 vcc, s{S_NON}, v{VF}")
        a("s_cmp_eq_u64 vcc, 0")
    def mbx_wait(line, sleep):
        L, D = lab("spin"), lab("done")
        a(f"s_mov_b32 s{T5}, 0")
        mbx_load(line)
        a(f"{L}:")
        a(f"s_add_u32 s{T5}, s{T5}, 1")
        a("s_waitcnt vmcnt(0)")
        mbx_test()
        a(f"s_cbranch_scc1 {D}")
        a(f"s_sleep {sleep}")
        a(f"buffer_load_dword v{VF}, v2, s[{SWS}:{SWS+3}], s{T0} offen sc1")
        a(f"s_cmp_lt_u32 s{T5}, {SPIN_MAX}")
        a(f"s_cbranch_scc1 {L}")
        a(f"{D}:")
    def zero_mfma(dst, z):
        a(f"v_mfma_f32_32x32x16_bf16 {vr(dst,16)}, {vr(z,4)}, {vr(z,4)}, 0")

    O = lambda q: [32, 48, 128, 144][q]
    S = lambda p: 64 + 16*p
    P0, P1 = 96, 100
    Q1 = lambda q: 168 + 4*q
    Q2 = lambda q: 184 + 2*q
    KVB = lambda r: 192 + 14*r
    K1 = lambda r: KVB(r); V1 = lambda r: KVB(r)+4; V2 = lambda r: KVB(r)+8; K2 = lambda r: KVB(r)+12
    VCW, VCR, VCW4, VCR4, VFR = 22, 23, 24, 25, 255
    VD = [168, 169, 170, 171, 172]
    VAR, VAR2, VR0, VR1, VXO, VRW = 173, 174, 175, 176, 177, 178
    VX = [22, 23]; VW, VW2, VW3 = 24, 25, 190

    a("s_cmp_ge_u32 s2, 256")
    a("s_cbranch_scc1 L_end")
    load_kernargs(a)
    a(f"s_getpc_b64 s[{T0}:{T1}]")
    a("L_pc:")
    a(f"v_lshlrev_b32 v1, 7, v0")
    a(f"v_min_u32 v1, L_end-L_pc, v1")
    a(f"global_load_dword v{VF}, v1, s[{T0}:{T1}]")
    a("v_lshrrev_b32 v1, 6, v0")
    a(f"v_and_b32 v{VL}, 63, v0")
    a(f"v_readfirstlane_b32 s{S_W}, v1")
    a(f"s_and_b32 s{T0}, s2, 7")
    a(f"s_lshr_b32 s{S_IDX}, s2, 3")
    a(f"s_and_b32 s{S_TH}, s{T0}, 1")
    a(f"s_lshr_b32 s{S_CG}, s{T0}, 1")
    a(f"s_and_b32 s{S_WQ}, s{S_W}, 3")
    a(f"s_lshr_b32 s{S_ISH}, s{S_W}, 2")
    a(f"s_lshl_b32 s{S_TOK}, s{S_TH}, 2")
    a(f"s_and_b32 s{T1}, s{S_IDX}, 3")
    a(f"s_add_u32 s{S_TOK}, s{S_TOK}, s{T1}")
    a(f"s_lshl_b32 s{S_TOK}, s{S_TOK}, 8")
    a(f"s_mul_i32 s{S_COL}, s{S_CG}, 6")
    a(f"s_lshr_b32 s{T1}, s{S_IDX}, 2")
    a(f"s_add_u32 s{S_COL}, s{S_COL}, s{T1}")
    a(f"s_lshl_b32 s{T1}, s{S_TH}, 3")
    a(f"s_add_u32 s{T1}, s{T1}, s{S_IDX}")
    a(f"s_sub_u32 s{T1}, s{T1}, 24")
    a(f"s_lshl_b32 s{T1}, s{T1}, 7")
    a(f"s_cmp_lt_u32 s{S_IDX}, 24")
    a(f"s_cselect_b32 s{S_TOK}, s{S_TOK}, s{T1}")
    a(f"s_cselect_b32 s{S_COL}, s{S_COL}, s{S_CG}")
    a(f"s_cselect_b32 s{T1}, 6, 5")
    a(f"v_and_b32 v{VT}, 31, v0")
    a(f"v_bfe_u32 v{VH}, v0, 5, 1")
    a(f"s_cmp_lg_u32 s{S_ISH}, 0")
    a(f"s_cbranch_scc1 L_p0_h")
    a(f"v_lshrrev_b32 v1, 3, v{VL}")
    a(f"v_lshrrev_b32 v2, 4, v{VL}")
    a(f"v_and_b32 v4, 7, v{VL}")
    a(f"v_xor_b32 v3, v2, v4")
    a(f"s_lshl_b32 s{T2}, s{S_WQ}, s{T1}")
    a(f"s_add_u32 s{T2}, s{T2}, s{S_TOK}")
    a(f"v_add_u32 v5, s{T2}, v1")
    a(f"v_mul_u32_u24 v5, 1280, v5")
    a(f"v_lshl_add_u32 v{VX[0]}, v3, 4, v5")
    a(f"v_xor_b32 v3, 4, v3")
    a(f"v_lshl_add_u32 v{VX[1]}, v3, 4, v5")
    S_MX, S_MW = S_OX, S_RB
    S_RX, S_RW = 86, 99
    a(f"s_mul_i32 s{T2}, s{S_IDX}, 3")
    a(f"s_mul_i32 s{T3}, s{T2}, 205")
    a(f"s_lshr_b32 s{T3}, s{T3}, 11")
    a(f"s_mul_i32 s{T3}, s{T3}, 10")
    a(f"s_sub_u32 s{S_RW}, s{T2}, s{T3}")
    if "0" not in ABL: a(f"s_mov_b32 s{S_RW}, 0")
    if "2" in ABL:
        a(f"s_lshr_b32 s{T2}, s{S_IDX}, 2")
        a(f"s_xor_b32 s{T2}, s{T2}, s{S_IDX}")
        a(f"s_and_b32 s{T2}, s{T2}, 1")
        a(f"s_mul_i32 s{S_RW}, s{T2}, 5")
    S_RX = 82
    a(f"s_lshl_b32 s{S_RX}, s{S_RW}, 7")
    a(f"s_cmp_lt_u32 s{S_IDX}, 24")
    a(f"s_cbranch_scc0 L_q_l")
    a(f"v_and_b32 v2, 1, v2")
    a(f"v_lshlrev_b32 v2, 1, v2")
    a(f"v_xor_b32 v4, v4, v2")
    a(f"s_lshl_b32 s{T2}, s{S_WQ}, 4")
    a(f"v_add_u32 v1, s{T2}, v1")
    a(f"v_mul_u32_u24 v1, 3072, v1")
    a(f"v_lshl_add_u32 v1, v4, 4, v1")
    a(f"s_lshl_b32 s{T2}, s{S_COL}, 7")
    a(f"v_add_u32 v{VW}, s{T2}, v1")
    a(f"s_lshl_b32 s{S_MX}, s{S_WQ}, 13")
    a(f"s_lshl_b32 s{S_MW}, s{S_WQ}, 11")
    a(f"s_mul_i32 s{S_RW}, s{S_RW}, {64*3072}")
    a("s_waitcnt lgkmcnt(0)")
    make_srd(a, SX, P_X, 2048*1280)
    make_srd(a, SA, P_WG, 640*3072)
    make_srd(a, SB2, P_WU, 640*3072)
    def dma_gu(st):
        db = (st % 3) * STG
        ch = []
        for j in (0, 1, 2, 3, 8, 9, 4, 5, 6, 7, 10, 11):
            c = []
            if j < 8:
                if j in (0, 4):
                    c += [f"s_add_u32 m0, s{S_MX}, {db + 4096*(j>>2)}"]
                c += [f"s_add_u32 s{T3}, s{S_RX}, {j*10240 - 1024*(j&3)}",
                      f"buffer_load_dwordx4 v{VX[j&1]}, s[{SX}:{SX+3}], s{T3} offen offset:{1024*(j&3)} lds"]
            else:
                srd = SA if j < 10 else SB2
                if j in (8, 10):
                    c += [f"s_add_u32 m0, s{S_MW}, {db + G_OFF + (U_REL if j == 10 else 0)}"]
                c += [f"s_add_u32 s{T3}, s{S_RW}, {(j&1)*(8*3072-1024)}",
                      f"buffer_load_dwordx4 v{VW}, s[{srd}:{srd+3}], s{T3} offen offset:{1024*(j&1)} lds"]
                if j == 11:
                    c += [f"s_add_u32 s{S_RX}, s{S_RX}, 128", f"s_add_u32 s{S_RW}, s{S_RW}, {64*3072}", f"s_cmp_eq_u32 s{S_RX}, 1280",
                          f"s_cselect_b32 s{S_RX}, 0, s{S_RX}", f"s_cselect_b32 s{S_RW}, 0, s{S_RW}"]
            ch.append(c)
        return ch
    if SP: stamp(a, 1)
    emit(dma_gu(0))
    if SP: stamp(a, 2)
    a("s_branch L_common")
    a("L_q_l:")
    EX1, EX2, S_M2 = 60, 62, 79
    a(f"s_cmp_eq_u32 s{S_COL}, 3")
    a(f"s_cselect_b32 s{T0}, 40, 1280")
    a(f"s_lshl_b32 s{S_ST2}, s{T0}, 6")
    a(f"v_and_b32 v2, 1, v2")
    a(f"v_lshlrev_b32 v2, 2, v2")
    a(f"v_xor_b32 v4, v4, v2")
    a(f"s_lshl_b32 s{T1}, s{S_WQ}, 4")
    a(f"v_add_u32 v1, s{T1}, v1")
    a(f"v_mul_u32_u24 v3, 1280, v1")
    a(f"v_lshl_add_u32 v3, v4, 4, v3")
    a(f"s_mul_i32 s{T2}, s{S_COL}, 384")
    a(f"v_add_u32 v{VW}, s{T2}, v3")
    a(f"v_add_u32 v{VW2}, 128, v{VW}")
    a(f"v_add_u32 v{VW3}, 256, v{VW}")
    a(f"s_lshl_b32 s{S_MX}, s{S_WQ}, 12")
    a(f"s_lshl_b32 s{S_MW}, s{S_WQ}, 11")
    a(f"s_add_u32 s{S_M2}, s{S_MW}, 8192")
    a(f"s_mov_b64 s[{EX1}:{EX1+1}], -1")
    a(f"s_mov_b64 s[{EX2}:{EX2+1}], -1")
    a(f"s_mul_i32 s{S_O2}, s{S_RW}, s{S_ST2}")
    a(f"s_mul_i32 s{S_RW}, s{S_RW}, {64*1280}")
    a(f"s_lshr_b32 s{S_O3}, s{S_ST2}, 3")
    a(f"s_sub_u32 s{S_O3}, s{S_O3}, 1024")
    a("s_waitcnt lgkmcnt(0)")
    make_srd(a, SX, P_X, 2048*1280)
    for r in (SA, SB2, SD):
        make_srd(a, r, P_WQ, 640*1280)
    a(f"s_cmp_eq_u32 s{S_COL}, 3")
    a(f"s_cbranch_scc0 L_q_l1")
    a(f"s_mov_b64 s[{SB2}:{SB2+1}], s[{P_WK}:{P_WK+1}]")
    a(f"s_mov_b64 s[{SD}:{SD+1}], s[{P_WV}:{P_WV+1}]")
    a(f"s_mov_b32 s{SB2+2}, {640*40}")
    a(f"s_mov_b32 s{SD+2}, {640*40}")
    a(f"s_mov_b32 s{S_M2}, s{S_MW}")
    a(f"v_mul_u32_u24 v3, 40, v1")
    a(f"v_and_b32 v2, 3, v4")
    a(f"v_lshl_add_u32 v{VW2}, v2, 4, v3")
    a(f"v_mov_b32 v{VW3}, v{VW2}")
    a(f"v_cmp_gt_u32 s[{EX1}:{EX1+1}], 4, v4")
    a(f"v_cmp_le_u32 s[{EX2}:{EX2+1}], 4, v4")
    a("L_q_l1:")
    def dma_q(st):
        db = (st % 3) * STG
        ch = []
        for j in range(4):
            c = []
            if j == 0:
                c += [f"s_add_u32 m0, s{S_MX}, {db}"]
            c += [f"s_add_u32 s{T3}, s{S_RX}, {j*(10240-1024)}",
                  f"buffer_load_dwordx4 v{VX[j&1]}, s[{SX}:{SX+3}], s{T3} offen offset:{1024*j} lds"]
            ch.append(c)
        ch.append([f"s_add_u32 m0, s{S_MW}, {db + 16384}", f"s_add_u32 s{T3}, s{S_RW}, {8*1280-1024}",
                   f"buffer_load_dwordx4 v{VW}, s[{SA}:{SA+3}], s{S_RW} offen lds"])
        ch.append([f"buffer_load_dwordx4 v{VW}, s[{SA}:{SA+3}], s{T3} offen offset:1024 lds"])
        for sm, srd, vo, ex in ((S_MW, SB2, VW2, EX1), (S_M2, SD, VW3, EX2)):
            ch.append([f"s_add_u32 m0, s{sm}, {db + 16384 + 8192}", f"s_mov_b64 exec, s[{ex}:{ex+1}]",
                       f"buffer_load_dwordx4 v{vo}, s[{srd}:{srd+3}], s{S_O2} offen lds", "s_mov_b64 exec, -1"])
            ch.append([f"s_add_u32 m0, s{sm}, {db + 16384 + 8192 + 1024}", f"s_add_u32 s{T3}, s{S_O2}, s{S_O3}", f"s_add_u32 s{T3}, s{T3}, 1024", f"s_mov_b64 exec, s[{ex}:{ex+1}]",
                       f"buffer_load_dwordx4 v{vo}, s[{srd}:{srd+3}], s{T3} offen lds", "s_mov_b64 exec, -1"])
        ch[-1] += [f"s_add_u32 s{S_RX}, s{S_RX}, 128", f"s_add_u32 s{S_RW}, s{S_RW}, {64*1280}", f"s_add_u32 s{S_O2}, s{S_O2}, s{S_ST2}", f"s_cmp_eq_u32 s{S_RX}, 1280",
                   f"s_cselect_b32 s{S_RX}, 0, s{S_RX}", f"s_cselect_b32 s{S_RW}, 0, s{S_RW}", f"s_cselect_b32 s{S_O2}, 0, s{S_O2}"]
        return ch
    if SP: stamp(a, 1)
    emit(dma_q(0))
    if SP: stamp(a, 2)
    a("s_branch L_common")

    a("L_p0_h:")
    a(f"s_lshl_b32 s{T0}, s2, 3")
    a(f"s_lshl_b32 s{T1}, s{S_WQ}, 1")
    a(f"s_add_u32 s{T0}, s{T0}, s{T1}")
    a(f"v_add_u32 v4, s{T0}, v{VH}")
    a(f"v_mul_u32_u24 v5, 1280, v4")
    a(f"v_lshl_add_u32 v5, v{VT}, 3, v5")
    a(f"v_lshlrev_b32 v255, 3, v4")
    a(f"v_mov_b32 v242, 0")
    a(f"s_mov_b32 s{T1}, {EPOCH_OFF}")
    a("s_waitcnt lgkmcnt(0)")
    make_srd(a, SX, P_X, 2048*1280)
    make_srd(a, SWS, P_WS, WS_SIZE)
    a(f"buffer_load_dword v203, v242, s[{SWS}:{SWS+3}], s{T1} offen sc1")
    for j in range(5):
        a(f"buffer_load_dwordx2 {vr(192+2*j,2)}, v5, s[{SX}:{SX+3}], 0 offen offset:{256*j}")

    a("L_common:")
    make_srd(a, SWS, P_WS, WS_SIZE)
    make_srd(a, SDBG, P_DBG, 256)
    a(f"s_and_b32 s{S_MH}, s{S_W}, 1")
    a(f"s_lshr_b32 s{S_ROT}, s{S_W}, 1")
    a(f"s_mov_b32 s{S_UP}, 0")
    a(f"s_mov_b32 s{S_UP+1}, -1")
    a(f"v_lshlrev_b32 v{VL16}, 4, v{VL}")
    a(f"v_bfe_u32 v1, v{VT}, 1, 3")
    a(f"v_xor_b32 v1, v1, v{VH}")
    a(f"s_lshl_b32 s{T1}, s{S_ROT}, 1")
    a(f"v_xor_b32 v1, s{T1}, v1")
    a(f"v_lshlrev_b32 v2, 7, v{VT}")
    a(f"s_cmp_lt_u32 s{S_IDX}, 24")
    a(f"s_cselect_b32 s{T0}, 13, 12")
    a(f"s_lshl_b32 s{T0}, s{S_ROT}, s{T0}")
    a(f"v_add_u32 v2, s{T0}, v2")
    VB = lambda sg: 18 + sg
    for sg in range(4):
        a(f"v_xor_b32 v3, {2*sg}, v1")
        a(f"v_lshl_add_u32 v{VB(sg)}, v3, 4, v2")
    for r in range(CSA, CSA+6):
        a(f"v_mov_b32 v{r}, 0")
    a(f"s_and_b32 s{T0}, s2, 7")
    a(f"s_lshl_b32 s{S_TB}, s{T0}, 3")
    a(f"s_and_b32 s{T1}, s{S_IDX}, 7")
    a(f"s_add_u32 s{S_TB}, s{S_TB}, s{T1}")
    a(f"s_lshr_b32 s{S_G}, s{S_IDX}, 3")
    a(f"s_mov_b32 s{S_EARLY}, 0")
    a(f"s_mov_b32 s{S_DL}, {STG}")
    a(f"s_mov_b32 s{S_I}, {-2*STG & 0xffffffff}")
    a(f"v_bfe_u32 v1, v{VL}, 2, 2")
    a(f"v_lshl_add_u32 v2, v{VH}, 3, v1")
    a(f"v_bfe_u32 v3, v{VL}, 4, 1")
    a(f"s_cmp_lt_u32 s{S_IDX}, 24")
    a(f"s_cbranch_scc0 L_q_rd")
    VAg = lambda sg, aa: 10 + 2*sg + aa
    a(f"v_lshlrev_b32 v2, 7, v2")
    a(f"v_mul_u32_u24 v3, {U_REL}, v3")
    a(f"v_add_u32 v2, v2, v3")
    a(f"v_and_b32 v1, 2, v1")
    a(f"v_bfe_u32 v3, v{VL}, 1, 1")
    a(f"v_add_u32 v1, v1, v3")
    a(f"v_lshl_add_u32 v2, v1, 4, v2")
    a(f"v_and_b32 v3, 1, v{VL}")
    a(f"v_lshl_add_u32 v2, v3, 3, v2")
    a(f"s_lshl_b32 s{T0}, s{S_MH}, 6")
    a(f"s_add_u32 s{T0}, s{T0}, {G_OFF}")
    for sg in range(4):
        a(f"s_xor_b32 s{T1}, s{S_ROT}, {sg}")
        a(f"s_lshl_b32 s{T1}, s{T1}, 11")
        a(f"s_add_u32 s{T1}, s{T1}, s{T0}")
        a(f"v_add_u32 v{VAg(sg,0)}, s{T1}, v2")
        a(f"v_xor_b32 v{VAg(sg,1)}, 32, v{VAg(sg,0)}")

    def one(lst): return [[x] for x in lst]
    def bg_common():
        o = [f"v_lshlrev_b32 v{VL8}, 3, v{VL}", "v_mov_b32 v4, 0x80000000", f"v_cndmask_b32 v{VL8}, v{VL8}, v4, s[{S_UP}:{S_UP+1}]",
             f"v_mul_u32_u24 v5, 21, v{VH}", f"v_add_lshl_u32 v5, v5, v{VT}, 4", f"v_cmp_gt_u32 vcc, 21, v{VT}", "s_nop 1", f"v_cndmask_b32 v{VLV}, v4, v5, vcc", f"s_lshl_b32 s{T0}, s{S_W}, 2", f"s_add_u32 s{T0}, s{T0}, {FL_OFF}", f"v_mov_b32 v{VFL}, s{T0}"]
        o += [f"v_mov_b32 v{r}, 0" for r in (243, 244, 245)]
        return one(o)
    def bg_L():
        o = [f"v_mov_b32 v246, 0", f"v_mov_b32 v247, 0", f"s_mul_i32 s{T0}, s{S_G}, 320"]
        for j in range(5):
            o += [f"v_add_u32 v6, {64*j}, v{VL}", f"v_mul_u32_u24 v4, 3277, v6", f"v_lshrrev_b32 v4, 16, v4", f"v_mul_u32_u24 v5, 20, v4",
                  f"v_sub_u32 v5, v6, v5", f"v_mul_u32_u24 v4, 1280, v4", f"v_lshl_add_u32 v4, v5, 4, v4", f"v_add_u32 v{VD[j]}, s{T0}, v4"]
            if 0 < j < 4: o += [f"v_subrev_u32 v{VD[j]}, {1024*j}, v{VD[j]}"]
        o += [f"s_lshl_b32 s{T1}, s{S_TB}, 5", f"v_add_u32 v6, s{T1}, v{VT}", f"v_mul_u32_u24 v6, 1280, v6", f"v_lshl_add_u32 v6, v{VH}, 3, v6",
              f"s_lshl_b32 s{T1}, s{S_WQ}, 4", f"s_add_u32 s{T0}, s{T0}, s{T1}", f"v_add_u32 v{VXO}, s{T0}, v6",
              f"s_mul_i32 s{T0}, s{S_WQ}, {RSZ}", f"v_bfe_u32 v6, v{VL}, 2, 2", f"v_bfe_u32 v4, v{VL}, 4, 1", f"v_and_b32 v5, 3, v{VL}",
              f"v_lshl_add_u32 v4, v4, 2, v5", f"s_lshl_b32 s{T1}, s{S_WQ}, 1", f"v_xor_b32 v4, s{T1}, v4", f"v_lshl_add_u32 v4, v4, 3, s{T0}",
              f"v_lshl_add_u32 v5, v{VH}, 2, v6", f"v_mul_u32_u24 v5, 320, v5", f"v_add_u32 v{VAR}, v4, v5",
              f"v_lshl_add_u32 v5, v{VH}, 3, v6", f"v_mul_u32_u24 v5, 320, v5", f"v_add_u32 v{VAR2}, v4, v5", f"v_add_u32 v{VRW}, s{T0}, v{VL16}"]
        for i, vv in ((1, VR0), (2, VR1), (3, VRW+1)):
            o += [f"s_xor_b32 s{T1}, s{S_WQ}, {i}", f"s_mul_i32 s{T1}, s{T1}, {RSZ}", f"v_add_u32 v{vv}, s{T1}, v{VL16}"]
        return one(o)
    VRD = {1: VR0, 2: VR1, 3: VRW+1}
    def touches():
        a(f"s_lshl_b32 s{T0}, s{S_TH}, 10")
        a(f"s_lshl_b32 s{T1}, s{S_IDX}, 5")
        a(f"s_add_u32 s{T0}, s{T0}, s{T1}")
        a(f"v_add_u32 v1, s{T0}, v{VT}")
        a(f"v_mul_u32_u24 v1, 1280, v1")
        a(f"v_mov_b32 v2, 128")
        a(f"v_mov_b32 v3, s{P_X}")
        a(f"v_mov_b32 v4, s{P_X+1}")
        a(f"v_min_u32 v5, 29, v{VT}")
        a(f"v_cmp_le_u32 vcc, 15, v5")
        a(f"s_lshl_b32 s{T0}, s{S_IDX}, 1")
        a(f"v_mov_b32 v6, s{T0}")
        a(f"v_subrev_u32 v7, 15, v5")
        a(f"v_addc_co_u32 v6, s[{T2}:{T3}], 0, v6, vcc")
        a(f"v_cndmask_b32 v5, v5, v7, vcc")
        a(f"v_cmp_le_u32 vcc, 6, v5")
        a(f"v_subrev_u32 v7, 6, v5")
        a(f"v_mov_b32 v8, s{P_WG}")
        a(f"v_cndmask_b32 v7, v5, v7, vcc")
        a(f"v_mov_b32 v9, s{P_WU}")
        a(f"v_cndmask_b32 v8, v8, v9, vcc")
        a(f"v_mov_b32 v9, s{P_WG+1}")
        a(f"v_mov_b32 v32, s{P_WU+1}")
        a(f"v_cndmask_b32 v9, v9, v32, vcc")
        a(f"s_mul_i32 s{T0}, s{S_CG}, 768")
        a(f"v_mul_u32_u24 v32, 3072, v6")
        a(f"v_lshl_add_u32 v32, v7, 7, v32")
        a(f"v_add_u32 v32, s{T0}, v32")
        a(f"v_mov_b32 v33, {64*3072}")
        a(f"v_cmp_le_u32 vcc, 12, v5")
        a(f"s_mul_i32 s{T0}, s{S_CG}, 384")
        a(f"s_sub_u32 s{T0}, s{T0}, {12*128}")
        a(f"v_lshl_add_u32 v7, v5, 7, s{T0}")
        a(f"v_min_u32 v7, 1152, v7")
        a(f"v_mul_u32_u24 v6, 1280, v6")
        a(f"v_add_u32 v7, v7, v6")
        a(f"v_cndmask_b32 v32, v32, v7, vcc")
        a(f"v_mov_b32 v7, {64*1280}")
        a(f"v_cndmask_b32 v33, v33, v7, vcc")
        a(f"v_mov_b32 v7, s{P_WQ}")
        a(f"v_cndmask_b32 v8, v8, v7, vcc")
        a(f"v_mov_b32 v7, s{P_WQ+1}")
        a(f"v_cndmask_b32 v9, v9, v7, vcc")
        for d, s_ in ((1, 32), (2, 33), (3, 8), (4, 9)):
            a(f"v_cndmask_b32 v{d}, v{d}, v{s_}, s[{S_UP}:{S_UP+1}]")
        a(f"s_add_u32 s{T0}, s{S_WQ}, 3")
        a(f"v_mul_lo_u32 v5, v2, s{T0}")
        a(f"v_add_u32 v1, v1, v5")
        a(f"v_add_co_u32 v6, vcc, v3, v1")
        a(f"s_cmp_eq_u32 s{S_WQ}, 3")
        a(f"s_cselect_b32 s{T0}, 3, 4")
        a(f"v_addc_co_u32 v7, vcc, 0, v4, vcc")
        a(f"global_load_dword v246, v[6:7], off")
        a(f"v_mul_lo_u32 v2, v2, s{T0}")
        a(f"v_add_co_u32 v8, vcc, v6, v2")
        a(f"s_nop 1")
        a(f"v_addc_co_u32 v9, vcc, 0, v7, vcc")
        a(f"global_load_dword v247, v[8:9], off")
    NT_ = 2 if "T" in ABL else 0
    def bg_H(full=True, late=False):
        d = {i: [] for i in range(10)}
        d[0].append([f"s_waitcnt vmcnt({NT_})"])
        st = ["v_mov_b32 v8, 0", "v_mov_b32 v9, 0"]
        for j in range(10):
            st += [f"v_lshlrev_b32 v4, 16, v{192+j}", f"v_and_b32 v5, 0xffff0000, v{192+j}", "v_add_f32 v8, v8, v4", "v_fmac_f32 v9, v4, v4",
                   "v_add_f32 v8, v8, v5", "v_fmac_f32 v9, v5, v5"]
        for rr in (8, 4, 2, 1):
            st += ["s_nop 0", f"v_add_f32_dpp v8, v8, v8 row_ror:{rr} row_mask:0xf bank_mask:0xf", f"v_add_f32_dpp v9, v9, v9 row_ror:{rr} row_mask:0xf bank_mask:0xf"]
        st += ["v_mov_b32 v4, v8", "v_mov_b32 v5, v9", "s_nop 1", "v_permlane16_swap_b32 v4, v8", "v_permlane16_swap_b32 v5, v9", "s_nop 1",
               "v_add_f32 v4, v4, v8", "v_add_f32 v5, v5, v9", f"v_mul_f32 v4, {f32bits(-1.0/640)}, v4", f"v_mul_f32 v5, {f32bits(1.0/640)}, v5",
               "v_fma_f32 v5, -v4, v4, v5", "v_max_f32 v5, 0, v5", "v_cvt_pk_bf16_f32 v5, v5, v5", "v_lshlrev_b32 v5, 16, v5",
               f"v_add_f32 v5, {f32bits(1e-5)}, v5", "v_cvt_pk_bf16_f32 v5, v5, v5", "v_lshlrev_b32 v5, 16, v5", "v_sqrt_f32 v5, v5", "s_nop 0",
               "v_cvt_pk_bf16_f32 v202, v4, v5"]
        h = len(st)//2
        d[0] += one(st[:24]); d[1] += one(st[24:])
        d[0].insert(1, ["v_add_u32 v203, 1, v203"]); d[0].insert(2, ["v_or_b32 v203, 0x80000000, v203"])
        d[0].insert(3, [f"v_mov_b32 v4, {FL_OFF + 128}", "ds_write_b32 v4, v203", f"v_readfirstlane_b32 s{S_NON}, v203"])
        d[1] += [["s_mov_b32 exec_lo, 1", "s_mov_b32 exec_hi, 1", f"s_mov_b32 s{T0}, {STF_OFF}",
                  f"buffer_store_dwordx2 v[202:203], v255, s[{SWS}:{SWS+3}], s{T0} offen sc1", "s_mov_b64 exec, -1"]]
        o = [f"s_lshl_b32 s{T0}, s{S_TB}, 5", f"s_lshl_b32 s{T1}, s{S_G}, 2", f"s_add_u32 s{T0}, s{T0}, s{T1}", f"s_add_u32 s{T0}, s{T0}, s{S_WQ}",
             f"s_lshl_b32 s{T0}, s{T0}, 2", f"s_add_u32 s{S_OFL}, s{T0}, {OFL_OFF}",
             f"s_and_b32 s{S_K2}, s{S_WQ}, 2", f"s_mul_i32 s{S_KV}, s{S_K2}, {16*KVS}", f"s_add_u32 s{S_KV}, s{S_KV}, {KVF_OFF}",
             f"s_lshl_b32 s{S_H0}, s{S_G}, 3", f"s_and_b32 s{T0}, s{S_WQ}, 1", f"s_lshl_b32 s{T0}, s{T0}, 2", f"s_add_u32 s{S_H0}, s{S_H0}, s{T0}",
             f"v_lshlrev_b32 v7, 4, v{VT}", f"v_mov_b32 v8, 0x80000000"]
        for q in range(4):
            o += [f"s_xor_b32 s{T0}, s{S_K2}, {q}", f"s_add_u32 s{T0}, s{T0}, s{S_H0}", f"s_mul_i32 s{T0}, s{T0}, 5"]
            for j, dst in enumerate((Q1(q), Q1(q)+2, Q2(q))):
                o += [f"v_add_u32 v4, s{T0}, v{VH}"]
                if j: o += [f"v_add_u32 v4, {2*j}, v4"]
                o += [f"v_lshrrev_b32 v5, 2, v4", f"v_lshl_add_u32 v5, v5, 10, v7", f"v_and_b32 v6, 1, v4", f"v_lshl_add_u32 v5, v6, 9, v5",
                      f"v_and_b32 v6, 2, v4", f"v_lshl_add_u32 v{dst}, v6, 2, v5"]
                if j == 2: o += [f"v_cndmask_b32 v{dst}, v{dst}, v8, s[{S_UP}:{S_UP+1}]"]
        o += [f"s_lshl_b32 s{T0}, s{S_WQ}, 13", f"s_add_u32 s{T0}, s{T0}, {CB_OFF}", f"s_xor_b32 s{T1}, s{S_WQ}, 2", f"s_lshl_b32 s{T1}, s{T1}, 13",
              f"s_add_u32 s{T1}, s{T1}, {CB_OFF}", f"v_add_u32 v{VCW}, s{T0}, v{VL16}", f"v_add_u32 v{VCR}, s{T1}, v{VL16}",
              ]
        n3 = (len(o) + 2)//3
        if late: return one(o[13:])
        if full: d[5] += one(o[:n3]); d[6] += one(o[n3:2*n3]); d[7] += one(o[2*n3:])
        else: d[5] += one(o[:13])
        d[6].insert(0, [f"s_add_u32 s{T1}, s{S_H0}, s{S_K2}", f"s_mul_i32 s{T1}, s{T1}, 5", f"s_mul_i32 s{S_OO}, s{S_TB}, 160", f"s_add_u32 s{S_OO}, s{S_OO}, s{T1}",
                        f"s_lshl_b32 s{S_OO}, s{S_OO}, 8", f"s_add_u32 s{S_OO}, s{S_OO}, {OF_OFF}"] + [f"v_mov_b32 v{r}, -1" for r in range(204, 208)] +
                       [f"buffer_store_dwordx4 v[204:207], v{VL16}, s[{SWS}:{SWS+3}], s{S_OO} offen sc1",
                        f"buffer_store_dwordx4 v[204:207], v{VL16}, s[{SWS}:{SWS+3}], s{S_OO} offen offset:1024 sc1",
                        f"buffer_store_dwordx4 v[204:207], v{VL16}, s[{SWS}:{SWS+3}], s{S_OO} offen offset:1536 sc1"])
        d[2] += bg_common()
        return d

    def p1_phase(tag, nA, nB, ND, dma, reads, FA, FB, ACC, addr_regs, early):
        nR = 2*nA + nB
        nm = nA*nB
        dw = [(aa, i) for aa in range(nA) for i in range(4)]
        hd = len(dw)//2; qd = hd//2
        def cs_ops(p, lst):
            o = []
            for aa, i in lst:
                o += [f"v_lshlrev_b32 v2, 16, v{FA(p,aa)+i}", f"v_and_b32 v3, 0xffff0000, v{FA(p,aa)+i}",
                      f"v_add_f32 v{CSA+2*aa}, v{CSA+2*aa}, v2", f"v_add_f32 v{CSA+2*aa+1}, v{CSA+2*aa+1}, v3"]
            return o
        def group(p, rd_sg, extra=(), dma_ch=(), bg=(), first=False, skip=False):
            extra = list(extra); bg = list(bg)
            rd = reads(rd_sg) if (rd_sg is not None and "r" not in ABL) else []
            per = (len(extra) + nm - 1)//nm
            bper = (len(bg) + nm - 1)//nm
            rper = (len(rd) + 1)//2
            dch = list(dma_ch)
            k = 0
            for aa in range(nA):
                for b in range(nB):
                    if "m" not in ABL and not skip:
                        a(f"v_mfma_f32_32x32x16_bf16 {vr(ACC(aa,b),16)}, {vr(FA(p,aa),4)}, {vr(FB(p,b),4)}, {'0' if first else vr(ACC(aa,b),16)}")
                    for e in rd[rper*k:rper*(k+1)]: a(e)
                    ndc = (len(dch) + (nm - k) - 1)//(nm - k)
                    emit(dch[:ndc]); dch = dch[ndc:]
                    for e in extra[per*k:per*(k+1)]: a(e)
                    emit(bg[bper*k:bper*(k+1)])
                    k += 1
        def upd(sg, st):
            sreg = S_I if st % 3 == 2 else S_DL
            return [f"v_add_u32 v{r}, s{sreg}, v{r}" for r in addr_regs(sg)] if st < 9 else []
        def run(role):
            bgd = bg_H(early) if role == "H" else {i: [] for i in range(10)}
            if role == "L":
                o = bg_common() + (bg_L() if early else []); n = (len(o) + 4)//5
                for i in range(5): bgd[1+i] = o[n*i:n*(i+1)]
            for it in range(10):
                if role == "L":
                    if it == 0: emit(dma(1))
                    a(f"s_waitcnt vmcnt({ND if it < 9 else 0})")
                if SP and it == 0: stamp(a, 3)
                a("s_barrier")
                if SP and it == 0: stamp(a, 4)
                if "I" in ABL:
                    a(f"v_writelane_b32 v241, s12, {it}"); a("s_memtime s[12:13]")
                pre = []
                if role == "H":
                    if it == 4:
                        pre = [[f"v_xor_b32 v{VFR}, 8, v{VFL}"]]
                    if it == 8:
                        a("s_waitcnt vmcnt(0)")
                        a("s_mov_b64 exec, 1")
                        a(f"buffer_store_dword v203, v242, s[{SWS}:{SWS+3}], s{S_OFL} offen sc1")
                        a("s_mov_b64 exec, -1")
                    if it == 8 or it == 9:
                        Lx = lab("hk")
                        a(f"s_cmp_lg_u32 s{S_W}, 4")
                        a(f"s_cbranch_scc1 {Lx}")
                        if it == 8:
                            a(f"s_lshl_b32 s{T0}, s{S_TOK}, 3")
                            a(f"s_add_u32 s{S_O2}, s{T0}, {STF_OFF}")
                            a(f"buffer_load_dwordx4 v[160:163], v{VL16}, s[{SWS}:{SWS+3}], s{S_O2} offen sc1")
                            a(f"buffer_load_dwordx4 v[164:167], v{VL16}, s[{SWS}:{SWS+3}], s{S_O2} offen offset:{1024 if nB == 2 else 0} sc1")
                        if it == 9:
                            a(f"s_call_b64 s[{T4}:{T5}], L_stats")
                            if early: mbx_load(0)
                        a(f"{Lx}:")
                elif it == 9:
                    a(f"v_mov_b32 v4, {FL_OFF + 128}"); a("ds_read_b32 v5, v4")
                    pre = [[f"v_readfirstlane_b32 s{S_NON}, v5"]]
                xl = 1 if ((role == "H" and it == 3) or (role == "L" and it == 9)) else 0
                ch = dma(it + 2) if (role == "L" and it < 8 and "g" not in ABL) else []
                q = (len(ch) + 3)//4
                bg = bgd[it]; bq = (len(bg) + 3)//4
                if it == 0: bq = (len(bg) + 1)//2; b0, b1, b2, b3 = [], [], bg[:bq], bg[bq:]
                else: b0, b1, b2, b3 = bg[:bq], bg[bq:2*bq], bg[2*bq:3*bq], bg[3*bq:]
                group(2, 0, extra=(upd(3, it-1) + cs_ops(2, dw[hd:hd+qd])) if it else [], dma_ch=ch[0:q], bg=b0, skip=(it == 0))
                group(3, 1, extra=upd(0, it) + (cs_ops(2, dw[hd+qd:]) if it else []), dma_ch=ch[q:2*q], bg=b1, skip=(it == 0))
                a(f"s_waitcnt lgkmcnt({nR})")
                group(0, 2, extra=upd(1, it) + cs_ops(0, dw[:qd]), dma_ch=ch[2*q:3*q], bg=pre + b2, first=(it == 0))
                a(f"s_waitcnt lgkmcnt({nR})")
                group(1, 3, extra=upd(2, it) + cs_ops(0, dw[qd:hd]), dma_ch=ch[3*q:], bg=b3)
                a("s_waitcnt lgkmcnt(0)")
        if not SP: stamp(a, 1)
        a(f"s_cmp_lg_u32 s{S_ISH}, 0")
        a(f"s_cbranch_scc1 L_{tag}_h")
        run("L")
        a(f"s_branch L_{tag}_fin")
        a(f"L_{tag}_h:")
        if "T" in ABL: touches()
        a(f"v_lshlrev_b32 v1, 2, v{VT}")
        a(f"v_add_u32 v1, {FL_OFF}, v1")
        a(f"ds_write_b32 v1, v242")
        run("H")
        a(f"L_{tag}_fin:")
        group(2, None, extra=cs_ops(2, dw[hd:]))
        group(3, None)
        if not SP: stamp(a, 2)
        if "I" in ABL:
            a(f"v_writelane_b32 v241, s12, 10")
            a("s_waitcnt lgkmcnt(0)")
            a(f"v_writelane_b32 v241, s4, 0")
            a(f"v_writelane_b32 v241, s8, 11")
            a(f"s_lshl_b32 s{T0}, s2, 3"); a(f"s_add_u32 s{T0}, s{T0}, s3"); a(f"s_lshl_b32 s{T0}, s{T0}, 8"); a(f"s_add_u32 s{T0}, s{T0}, 0x1000000")
            a(f"v_lshlrev_b32 v2, 2, v{VL}")
            a(f"buffer_store_dword v241, v2, s[{SWS}:{SWS+3}], s{T0} offen")
        if "X" in ABL: endpgm(a, 0)
        a(f"s_mul_i32 s{T2}, s{S_MH}, {nA}")
        a(f"s_lshl_b32 s{T0}, s{T2}, 10")
        a(f"s_add_u32 s{T0}, s{T0}, {CS_OFF}")
        a(f"v_add_u32 v1, s{T0}, v{VL16}")
        a(f"s_lshl_b32 s{T1}, s{S_ROT}, 2")
        a(f"v_add_u32 v9, s{T1}, v1")
        for aa in range(nA):
            a(f"v_add_f32 v{2+aa}, v{CSA+2*aa}, v{CSA+2*aa+1}")
        for aa in range(nA):
            a(f"v_cvt_pk_bf16_f32 v{5+aa}, v{2+aa}, v{2+aa}")
        for aa in range(nA):
            a(f"v_lshlrev_b32 v{5+aa}, 16, v{5+aa}")
        for aa in range(nA):
            a(f"v_sub_f32 v{5+aa}, v{2+aa}, v{5+aa}")
        for aa in range(nA):
            a(f"v_cvt_pk_bf16_f32 v{5+aa}, v{2+aa}, v{5+aa}")
            a(f"ds_write_b32 v9, v{5+aa} offset:{1024*aa}")
        if early:
            Lx = lab("nost")
            a(f"s_cmp_lg_u32 s{S_W}, 4")
            a(f"s_cbranch_scc1 {Lx}")
            a("s_waitcnt vmcnt(0)")
            mbx_test()
            a(f"s_cbranch_scc0 {Lx}")
            lds_set(16)
            a(f"{Lx}:")
        a(f"s_lshl_b32 s{T1}, s{S_ROT}, {8 + (nB-1)}")
        a(f"s_add_u32 s{T1}, s{T1}, {ST_OFF}")
        a(f"v_lshl_add_u32 v5, v{VT}, 3, s{T1}")
        a(f"v_mov_b32 v6, {FL_OFF + 64}")
        a("s_waitcnt lgkmcnt(0)")
        a("s_barrier")
        for b in range(nB):
            a(f"ds_read_b64 {vr(160+4*b,2)}, v5 offset:{256*b}")
        for aa in range(nA):
            a(f"ds_read_b128 {vr(10+4*aa,4)}, v1 offset:{1024*aa}")
        if early:
            a("ds_read_b32 v4, v6")
        a(f"s_cmp_eq_u32 s{S_ISH}, 0")
        a(f"s_cbranch_scc1 L_{tag}_np")
        a("s_setprio 2")
        a(f"L_{tag}_np:")
        a(f"s_waitcnt lgkmcnt({nA + (1 if early else 0)})")
        for b in range(nB):
            a(f"v_mov_b32 v{26+b}, v{161+4*b}")
            for j in (1, 2, 3):
                a(f"v_mov_b32 v{160+4*b+j}, v{160+4*b}")
        a("s_waitcnt lgkmcnt(0)")
        a("s_nop 0")
        for b in range(nB):
            for aa in range(nA):
                a(f"v_mfma_f32_32x32x16_bf16 {vr(ACC(aa,b),16)}, {vr(10+4*aa,4)}, {vr(160+4*b,4)}, {vr(ACC(aa,b),16)}")

    FA = lambda p, aa: FBASE[p] + 4*aa
    FB = lambda p, b: FBASE[p] + 8 + 4*b
    ACC = lambda aa, b: 64 + 16*(2*aa + b)
    def reads_gu(sg):
        o = []
        for aa in range(2):
            for n in range(2):
                o.append(f"ds_read_b64_tr_b16 {vr(FA(sg,aa)+2*n,2)}, v{VAg(sg,aa)} offset:{512*n}")
            o.append(f"ds_read_b128 {vr(FB(sg,aa),4)}, v{VB(sg)} offset:{4096*aa}")
        return o
    p1_phase("gu", 2, 2, 12, dma_gu, reads_gu, FA, FB, ACC, lambda sg: [VAg(sg,0), VAg(sg,1), VB(sg)], True)
    a(f"v_readfirstlane_b32 s{S_EARLY}, v4")
    a(f"v_mul_f32 v26, v26, v26")
    a(f"v_mul_f32 v28, v27, v27")
    a(f"s_and_b32 s{S_EARLY}, s{S_EARLY}, s{S_ISH}")
    a(f"s_cmp_eq_u32 s{S_EARLY}, 1")
    a(f"s_cbranch_scc0 L_gu_ne")
    a(f"s_call_b64 s[{T4}:{T5}], L_attn_loads")
    a("L_gu_ne:")
    a(f"s_lshr_b32 s{T0}, s{S_TOK}, 5")
    a(f"s_lshl_b32 s{T1}, s{S_ROT}, 1")
    a(f"s_add_u32 s{T0}, s{T0}, s{T1}")
    a(f"s_mul_i32 s{T0}, s{T0}, 96")
    a(f"s_lshl_b32 s{T1}, s{S_COL}, 2")
    a(f"s_add_u32 s{T0}, s{T0}, s{T1}")
    a(f"s_add_u32 s{T0}, s{T0}, s{T2}")
    a(f"s_lshl_b32 s{T0}, s{T0}, 10")
    a(f"s_add_u32 s{T0}, s{T0}, {HF_OFF}")
    a(f"s_add_u32 s{T1}, s{T0}, {96*1024}")
    a(f"s_mov_b64 s[88:89], s[{T0}:{T1}]")
    a("s_nop 0")
    for b in range(2):
        for aa in range(2):
            A = ACC(aa, b)
            for j in range(0, 8, 2):
                a(f"v_pk_mul_f32 {vr(A+j,2)}, {vr(A+j,2)}, {vr(26+2*b,2)} op_sel_hi:[1,0]")
            for j in range(0, 8, 2):
                a(f"v_pk_mul_f32 {vr(A+j,2)}, {vr(A+j,2)}, {vr(A+8+j,2)}")
            for q in range(4):
                a(f"v_cvt_pk_bf16_f32 v{A+q}, v{A+2*q}, v{A+2*q+1}")
            if not LATEH: a(f"buffer_store_dwordx4 {vr(A,4)}, v{VL16}, s[{SWS}:{SWS+3}], s{T0 if b == 0 else T1} offen offset:{1024*aa} sc1")
    a("s_branch L_p2")

    a("L_stats:")
    a(f"s_mov_b32 s{T1}, 0")
    a("L_stats_l:")
    a("s_waitcnt vmcnt(0)")
    a(f"v_xor_b32 v4, s{S_NON}, v161")
    a(f"v_xor_b32 v5, s{S_NON}, v163")
    a(f"v_xor_b32 v6, s{S_NON}, v165")
    a(f"v_xor_b32 v7, s{S_NON}, v167")
    a("v_or3_b32 v4, v4, v5, v6")
    a("v_or_b32 v4, v4, v7")
    a("v_cmp_ne_u32 vcc, 0, v4")
    a(f"s_add_u32 s{T1}, s{T1}, 1")
    a("s_cmp_eq_u64 vcc, 0")
    a("s_cbranch_scc1 L_stats_d")
    a("s_sleep 8")
    a(f"s_cmp_lt_u32 s{S_IDX}, 24")
    a(f"s_cselect_b32 s{T0}, 1024, 0")
    a(f"s_add_u32 s{T0}, s{T0}, s{S_O2}")
    a(f"buffer_load_dwordx4 v[160:163], v{VL16}, s[{SWS}:{SWS+3}], s{S_O2} offen sc1")
    a(f"buffer_load_dwordx4 v[164:167], v{VL16}, s[{SWS}:{SWS+3}], s{T0} offen sc1")
    a(f"s_cmp_lt_u32 s{T1}, {SPIN_MAX}")
    a("s_cbranch_scc1 L_stats_l")
    a("L_stats_d:")
    a(f"s_mov_b32 s{T0}, 0x01000100")
    for r in (160, 162, 164, 166):
        a(f"v_and_b32 v{r+1}, 0xffff0000, v{r}")
        a(f"v_rcp_f32 v{r+1}, v{r+1}")
        a(f"v_perm_b32 v{r}, v{r}, v{r}, s{T0}")
    a(f"v_add_u32 v4, {ST_OFF}, v{VL16}")
    a(f"ds_write_b128 v4, v[160:163]")
    a(f"ds_write_b128 v4, v[164:167] offset:1024")
    a(f"s_setpc_b64 s[{T4}:{T5}]")

    a("L_q_rd:")
    VAq = lambda sg, par: 10 + 2*sg + par
    a(f"v_lshlrev_b32 v2, 7, v2")
    a(f"v_lshl_add_u32 v2, v3, 5, v2")
    a(f"v_and_b32 v3, 3, v{VL}")
    a(f"v_lshl_add_u32 v2, v3, 3, v2")
    a(f"v_and_b32 v1, 2, v1")
    a(f"v_lshl_add_u32 v2, v1, 5, v2")
    a(f"s_lshl_b32 s{T0}, s{S_MH}, 6")
    a(f"v_xor_b32 v2, s{T0}, v2")
    a(f"s_lshl_b32 s{T0}, s{S_MH}, 13")
    a(f"s_add_u32 s{T2}, s{T0}, 16384")
    for sg in range(4):
        a(f"s_xor_b32 s{T1}, s{S_ROT}, {sg}")
        a(f"s_lshl_b32 s{T1}, s{T1}, 11")
        a(f"s_add_u32 s{T1}, s{T1}, s{T2}")
        a(f"v_add_u32 v{VAq(sg,0)}, s{T1}, v2")
        a(f"v_xor_b32 v{VAq(sg,1)}, 64, v{VAq(sg,0)}")
        a(f"v_add_u32 v{VAq(sg,1)}, s{T0}, v{VAq(sg,1)}")
    FA = lambda p, aa: FBASE[p] + 4*aa
    FB = lambda p, b: FBASE[p] + 12
    ACC = lambda aa, b: 64 + 16*aa
    def reads_q(sg):
        o = [f"ds_read_b128 {vr(FB(sg,0),4)}, v{VB(sg)}"]
        for aa in range(3):
            for n in range(2):
                o.append(f"ds_read_b64_tr_b16 {vr(FA(sg,aa)+2*n,2)}, v{VAq(sg, aa & 1)} offset:{8192*(aa >> 1)+512*n}")
        return o
    p1_phase("q", 3, 1, 10, dma_q, reads_q, FA, FB, ACC, lambda sg: [VAq(sg,0), VAq(sg,1), VB(sg)], False)
    a(f"s_lshr_b32 s{T0}, s{S_TOK}, 5")
    a(f"s_add_u32 s{T0}, s{T0}, s{S_ROT}")
    a(f"s_mul_i32 s{T1}, s{T0}, {KVS}")
    a(f"s_add_u32 s{T1}, s{T1}, {KVF_OFF}")
    a(f"s_mul_i32 s{T0}, s{T0}, 40960")
    a(f"s_mul_i32 s{T3}, s{S_COL}, 6")
    a(f"s_add_u32 s{T2}, s{T2}, s{T3}")
    a(f"s_lshl_b32 s{T3}, s{T2}, 11")
    a(f"s_add_u32 s{T0}, s{T0}, s{T3}")
    a(f"v_mul_f32 v28, {f32bits(QSCALE)}, v26")
    a("s_nop 1")
    for aa in range(3):
        A = ACC(aa, 0)
        Lk, Ld = lab("kv"), lab("sd")
        a(f"s_cmp_lt_u32 s{T2}, {20-aa}")
        a(f"s_cbranch_scc0 {Lk}")
        for j in range(0, 16, 2):
            a(f"v_pk_mul_f32 {vr(A+j,2)}, {vr(A+j,2)}, v[28:29] op_sel_hi:[1,0]")
        for q in range(8):
            a(f"v_cvt_pk_bf16_f32 v{A+q}, v{A+2*q}, v{A+2*q+1}")
        for i in range(2):
            a(f"buffer_store_dwordx4 {vr(A+4*i,4)}, v{VL16}, s[{SWS}:{SWS+3}], s{T0} offen offset:{(2048*aa+1024*i) & 4095} sc1")
        if aa == 1:
            a(f"s_add_u32 s{T0}, s{T0}, 4096")
        a(f"s_branch {Ld}")
        a(f"{Lk}:")
        if aa == 2:
            a(f"s_cmp_eq_u32 s{T2}, 18")
            a(f"s_cbranch_scc0 {Ld}")
            for j in range(0, 12, 2):
                a(f"v_pk_mul_f32 {vr(A+j,2)}, {vr(A+j,2)}, v[26:27] op_sel_hi:[1,0]")
            for q in range(6):
                a(f"v_cvt_pk_bf16_f32 v{A+q}, v{A+2*q}, v{A+2*q+1}")
            a(f"buffer_store_dwordx4 {vr(A,4)}, v{VL16}, s[{SWS}:{SWS+3}], s{T1} offen sc1")
            a(f"buffer_store_dwordx2 {vr(A+4,2)}, v{VL8}, s[{SWS}:{SWS+3}], s{T1} offen offset:1024 sc1")
        elif aa == 0:
            for j in range(0, 12, 2):
                a(f"v_pk_mul_f32 {vr(A+j,2)}, {vr(A+j,2)}, v[26:27] op_sel_hi:[1,0]")
            a(f"s_mul_i32 s{T3}, s{S_ROT}, 2304")
            a(f"s_add_u32 s{T3}, s{T3}, {VT_OFF}")
            a(f"v_mul_u32_u24 v1, {4*72}, v{VH}")
            a(f"v_lshl_add_u32 v1, v{VT}, 1, v1")
            a(f"v_add_u32 v1, s{T3}, v1")
            a(f"v_mul_u32_u24 v2, 72, v{VT}")
            a(f"v_lshl_add_u32 v2, v{VH}, 3, v2")
            a(f"v_add_u32 v2, s{T3}, v2")
            a(f"v_cndmask_b32 v{A+8}, v{A+8}, 1.0, s[{S_UP}:{S_UP+1}]")
            for j in (9, 10, 11):
                a(f"v_cndmask_b32 v{A+j}, v{A+j}, 0, s[{S_UP}:{S_UP+1}]")
            for q in range(6):
                a(f"v_cvt_pk_bf16_f32 v{A+q}, v{A+2*q}, v{A+2*q+1}")
            for j in range(12):
                row = 8*(j >> 2) + (j & 3)
                op = "ds_write_b16_d16_hi" if j & 1 else "ds_write_b16"
                a(f"{op} v1, v{A+(j>>1)} offset:{row*72}")
            for f in range(2):
                a(f"ds_read2_b64 {vr(A+8+4*f,4)}, v2 offset0:{4*f} offset1:{4*f+2}")
            a("s_waitcnt lgkmcnt(0)")
            for f in range(2):
                a(f"buffer_store_dwordx4 {vr(A+8+4*f,4)}, v{VLV}, s[{SWS}:{SWS+3}], s{T1} offen offset:{1280+672*f} sc1")
        a(f"{Ld}:")

    a(f"s_cmp_lg_u32 s{S_ISH}, 0")
    a(f"s_cbranch_scc1 L_q_lh")
    emit(bg_L())
    a("s_branch L_q_lx")
    a("L_q_lh:")
    emit(bg_H(late=True))
    a("L_q_lx:")
    a("s_waitcnt vmcnt(0)")
    a("s_barrier")
    a(f"s_cmp_lg_u32 s{S_W}, 4")
    a(f"s_cbranch_scc1 L_p2")
    a(f"s_lshl_b32 s{T0}, s{S_TOK}, 2")
    a(f"s_lshl_b32 s{T1}, s{S_COL}, 7")
    a(f"s_add_u32 s{T0}, s{T0}, s{T1}")
    a(f"s_add_u32 s{T0}, s{T0}, {QFL_OFF}")
    a("s_mov_b64 exec, 1")
    a(f"v_mov_b32 v2, s{S_NON}")
    a(f"buffer_store_dword v2, v244, s[{SWS}:{SWS+3}], s{T0} offen sc1")
    a("s_mov_b64 exec, -1")
    def h_stores():
        Lx = lab("hs")
        a(f"s_cmp_ge_u32 s{S_IDX}, 24")
        a(f"s_cbranch_scc1 {Lx}")
        for b in range(2):
            for aa in range(2):
                a(f"buffer_store_dwordx4 {vr(64 + 16*(2*aa+b),4)}, v{VL16}, s[{SWS}:{SWS+3}], s{88+b} offen offset:{1024*aa} sc1")
        a(f"{Lx}:")
    a("L_p2:")
    if not SP: stamp(a, 3)
    a(f"v_mov_b32 v15, 1")
    a(f"v_mov_b32 v14, s{S_NON}")
    a(f"s_cmp_lg_u32 s{S_ISH}, 0")
    a(f"s_cbranch_scc1 L_attn")
    KQ = S_WQ
    S_OA, S_OB, S_M, S_IT = 78, 82, 80, 81
    VXR = 180
    ACC = lambda m: 64 + 16*m
    FA0 = 144
    FB = lambda s: 192 + 4*s
    make_srd(a, SA, P_WD, 1536*1280)
    make_srd(a, SB2, P_WS, WS_SIZE)
    make_srd(a, SC, P_OUT, 2048*1280)
    a(f"s_mul_i32 s{S_OA}, s{KQ}, {24*16*1280}")
    a(f"s_mul_i32 s{S_M}, s{KQ}, {RSZ}")
    a(f"s_mul_i32 s{S_OB}, s{S_TB}, 96")
    a(f"s_mul_i32 s{T0}, s{KQ}, 24")
    a(f"s_add_u32 s{S_OB}, s{S_OB}, s{T0}")
    a(f"s_lshl_b32 s{S_OB}, s{S_OB}, 10")
    a(f"s_add_u32 s{S_OB}, s{S_OB}, {HF_OFF}")
    S_RT = 83
    a(f"s_and_b32 s{S_RT}, s{S_TB}, 3")
    a(f"s_mul_i32 s{T0}, s{S_RT}, {6*16*1280}")
    a(f"s_add_u32 s{S_OA}, s{S_OA}, s{T0}")
    a(f"s_mul_i32 s{T0}, s{S_RT}, {6*1024}")
    a(f"s_add_u32 s{S_OB}, s{S_OB}, s{T0}")
    def dma_a(slot):
        a(f"s_add_u32 m0, s{S_M}, {slot*5120}")
        a(f"s_add_u32 s{T2}, s{S_M}, {slot*5120+4096}")
        for j in range(4):
            a(f"buffer_load_dwordx4 v{VD[j]}, s[{SA}:{SA+3}], s{S_OA} offen offset:{1024*j} lds")
        a(f"s_mov_b32 m0, s{T2}")
        a("s_nop 0")
        a(f"buffer_load_dwordx4 v{VD[4]}, s[{SA}:{SA+3}], s{S_OA} offen lds")
        a(f"s_add_u32 s{S_OA}, s{S_OA}, {16*1280}")
    def dma_a_list(slot):
        o = [[f"s_add_u32 m0, s{S_M}, {slot*5120}", f"s_add_u32 s{T2}, s{S_M}, {slot*5120+4096}",
              f"buffer_load_dwordx4 v{VD[0]}, s[{SA}:{SA+3}], s{S_OA} offen lds"]]
        for j in range(1, 4):
            o.append([f"buffer_load_dwordx4 v{VD[j]}, s[{SA}:{SA+3}], s{S_OA} offen offset:{1024*j} lds"])
        o.append([f"s_mov_b32 m0, s{T2}", "s_nop 0", f"buffer_load_dwordx4 v{VD[4]}, s[{SA}:{SA+3}], s{S_OA} offen lds", f"s_add_u32 s{S_OA}, s{S_OA}, {16*1280}"])
        return o
    def load_b(reg):
        a(f"buffer_load_dwordx4 {vr(reg,4)}, v{VL16}, s[{SB2}:{SB2+3}], s{S_OB} offen sc1")
        a(f"s_add_u32 s{S_OB}, s{S_OB}, 1024")
    if LATEH:
        lds_wait(28, 4, sleep=2)
        h_stores()
        a("s_nop 1")
        for m in range(5):
            zero_mfma(ACC(m), VZ)
    a("s_waitcnt vmcnt(0)")
    a(f"ds_write_b32 v{VFL}, v15")
    if SB: stamp(a, 1)
    for s_ in range(PRE0):
        dma_a(s_)
    if not LATEH:
        for m in range(5):
            zero_mfma(ACC(m), VZ)
    a(f"s_cmp_lg_u32 s{S_W}, 0")
    a(f"s_cbranch_scc1 L_l_ring")
    a(f"s_cmp_ge_u32 s{S_IDX}, 24")
    a(f"s_cbranch_scc1 L_l_ring")
    lds_wait(0, 8, sleep=1)
    if SB: stamp(a, 2)
    a(f"s_lshl_b32 s{T0}, s{S_TOK}, 4")
    a(f"s_lshl_b32 s{T1}, s{S_COL}, 7")
    a(f"s_add_u32 s{T0}, s{T0}, s{T1}")
    a(f"s_add_u32 s{T0}, s{T0}, {HFL_OFF}")
    a("s_mov_b64 exec, 1")
    a(f"buffer_store_dword v14, v{VZ}, s[{SWS}:{SWS+3}], s{T0} offen sc1")
    a("s_mov_b64 exec, -1")
    a("L_l_ring:")
    if "G" in ABL: endpgm(a, 0)
    lds_wait(28, 4, sleep=2)
    for s in range(PRE0, RING):
        dma_a(s)
        if PACE > 1: a("s_waitcnt vmcnt(2)")
    for m in range(5):
        a(f"buffer_load_dwordx2 {vr(VXR+2*m,2)}, v{VXO}, s[{SX}:{SX+3}], 0 offen offset:{64*m}")
        if PACE > 1: a("s_waitcnt vmcnt(1)")
    a(f"s_cmp_lg_u32 s{S_W}, 0")
    a(f"s_cbranch_scc1 L_l_pub")
    mbx_wait(1, 10)
    lds_set(18)
    a("L_l_pub:")
    lds_wait(18, sleep=8)
    for s in range(RING):
        load_b(FB(s))
    a(f"s_mov_b32 s{S_IT}, 0")
    a("s_waitcnt vmcnt(0)")
    if not SP: stamp(a, 4)
    a(".p2align 6")
    a("L_gloop:")
    a(f"s_add_u32 s{S_RT}, s{S_RT}, 1")
    a(f"s_cmp_eq_u32 s{S_RT}, 4")
    a(f"s_cselect_b32 s{T0}, {24*16*1280}, 0")
    a(f"s_cselect_b32 s{T1}, {24*1024}, 0")
    a(f"s_sub_u32 s{S_OA}, s{S_OA}, s{T0}")
    a(f"s_sub_u32 s{S_OB}, s{S_OB}, s{T1}")
    a(f"s_cmp_lt_u32 s{S_IT}, 3")
    a(f"s_cbranch_scc1 L_gl1")
    a(f"s_mov_b64 s[{SA}:{SA+1}], s[{P_WO}:{P_WO+1}]")
    a(f"s_mov_b32 s{SA+2}, {640*1280}")
    a(f"s_mov_b32 s{SB2+2}, 0")
    a(f"s_mul_i32 s{S_OA}, s{KQ}, {160*1280}")
    a("L_gl1:")
    def rd_a(dst, slot, va, nrow):
        for m in range(5):
            for n in range(2):
                a(f"ds_read_b64_tr_b16 {vr(dst+4*m+2*n,2)}, v{va} offset:{slot*5120 + n*nrow + m*64}")
    def mm(fa, fb):
        for m in range(5):
            a(f"v_mfma_f32_32x32x16_bf16 {vr(ACC(m),16)}, {vr(fa+4*m,4)}, {vr(fb,4)}, {vr(ACC(m),16)}")
    for s in range(RING):
        a(f"s_waitcnt vmcnt({6*(RING-1)})")
        if "R" not in ABL: rd_a(FA0, s, VAR, 2560)
        a("s_waitcnt lgkmcnt(0)")
        if PACE:
            dl = dma_a_list(s)
            for m in range(5):
                a(f"v_mfma_f32_32x32x16_bf16 {vr(ACC(m),16)}, {vr(FA0+4*m,4)}, {vr(FB(s),4)}, {vr(ACC(m),16)}")
                emit([dl[m]])
            load_b(FB(s))
            continue
        if "D" not in ABL: dma_a(s)
        if "M" not in ABL: mm(FA0, FB(s))
        if "D" not in ABL: load_b(FB(s))
    a(f"s_add_u32 s{S_IT}, s{S_IT}, 1")
    a(f"s_cmp_lt_u32 s{S_IT}, 4")
    a(f"s_cbranch_scc1 L_gloop")
    PRE = [144, 2, 22, 42]
    OB = lambda k: 192 + 4*k
    a(f"s_mov_b32 s{SB2+2}, {WS_SIZE}")
    a(f"s_mul_i32 s{S_OB}, s{S_TB}, 40")
    a(f"s_mul_i32 s{T0}, s{KQ}, 10")
    a(f"s_add_u32 s{S_OB}, s{S_OB}, s{T0}")
    a(f"s_lshl_b32 s{S_OB}, s{S_OB}, 10")
    a(f"s_add_u32 s{S_OB}, s{S_OB}, {OF_OFF}")
    a(f"s_add_u32 s{T0}, s{S_OB}, 4096")
    a(f"s_add_u32 s{T1}, s{S_OB}, 8192")
    a("s_waitcnt vmcnt(12)")
    for k in range(4):
        rd_a(PRE[k], k, VAR2, 1280)
    a("s_waitcnt lgkmcnt(0)")
    for k in range(4):
        dma_a(k)
        if PACE > 1: a("s_waitcnt vmcnt(2)")
    for m in range(5):
        for q in range(2):
            a(f"v_lshlrev_b32 v{232+0}, 16, v{VXR+2*m+q}")
            a(f"v_and_b32 v{233}, 0xffff0000, v{VXR+2*m+q}")
            a(f"v_add_f32 v{ACC(m)+2*q}, v{ACC(m)+2*q}, v232")
            a(f"v_add_f32 v{ACC(m)+2*q+1}, v{ACC(m)+2*q+1}, v233")
    a(f"v_mov_b32 v232, {FL_OFF + 80}")
    a("L_ow:")
    a("ds_read_b128 v[236:239], v232")
    a("s_waitcnt lgkmcnt(0)")
    a(f"v_bitop3_b32 v236, v236, v237, v238 bitop3:{'0x80' if HINT == 2 else '0xfe'}")
    a(f"{'v_and_b32' if HINT == 2 else 'v_or_b32'} v236, v236, v239")
    a("s_nop 0")
    a(f"v_readfirstlane_b32 s{T4}, v236")
    a("s_nop 0")
    a(f"s_cmp_eq_u32 s{T4}, 1")
    a(f"s_cbranch_scc1 L_owd")
    a("s_sleep 4")
    a(f"s_branch L_ow")
    a("L_owd:")
    a(f"s_mov_b32 s{T5}, 0")
    def ld_o(k):
        a(f"buffer_load_dwordx4 {vr(OB(k),4)}, v{VL16}, s[{SB2}:{SB2+3}], s{[S_OB, T0, T1][k >> 2]} offen offset:{1024*(k & 3)} sc1")
    for k in range(10):
        ld_o(k)
    for k in range(10):
        a(f"s_waitcnt vmcnt({9-k})")
        a(f"L_oc{k}:")
        a(f"v_max3_u32 v232, v{OB(k)}, v{OB(k)+1}, v{OB(k)+2}")
        a(f"v_max_u32 v232, v232, v{OB(k)+3}")
        a(f"v_cmp_eq_u32 vcc, -1, v232")
        if k >= 4:
            a(f"s_waitcnt lgkmcnt({min(15, 10*min(3, 9-k))})")
        a("s_cmp_lg_u64 vcc, 0")
        a(f"s_cbranch_scc1 L_or{k}")
        a(f"L_og{k}:")
        if k == 0 and STAMPS and not SB and not SP: a("s_memtime s[6:7]")
        mm(PRE[k & 3], OB(k))
        if k + 4 < 10:
            kk = k + 4
            rd_a(PRE[k & 3], kk if kk < 6 else kk - 6, VAR2, 1280)
    if STAMPS and not SB and not SP: a("s_memtime s[8:9]")
    a(f"v_mov_b32 v15, 1")
    a(f"v_mov_b32 v12, {FL_OFF+48}")
    a("s_nop 5")
    for m in range(5):
        for i in range(1, 4):
            a(f"ds_write_b128 v{VRW}, {vr(ACC(m)+4*i,4)} offset:{((i-1)*5+m)*1024}")
    a("s_waitcnt lgkmcnt(0)")
    a(f"ds_write_b32 v{VFL}, v15 offset:48")
    a("L_gpoll:")
    a(f"ds_read_b128 v[4:7], v12")
    a("s_waitcnt lgkmcnt(0)")
    a("v_bitop3_b32 v4, v4, v5, v6 bitop3:0x80")
    a("v_and_b32 v4, v4, v7")
    a("s_nop 0")
    a(f"v_readfirstlane_b32 s{T0}, v4")
    a("s_nop 0")
    a(f"s_cmp_eq_u32 s{T0}, 1")
    a(f"s_cbranch_scc0 L_gpoll")
    for m in range(5):
        for i in range(1, 4):
            a(f"ds_read_b128 {vr(ACC(m)+4*i,4)}, v{VRD[i]} offset:{((i-1)*5+m)*1024}")
    for m in range(5):
        A = ACC(m)
        a(f"s_waitcnt lgkmcnt({12-3*m})")
        for h2 in range(2):
            a(f"v_pk_add_f32 {vr(A+2*h2,2)}, {vr(A+2*h2,2)}, {vr(A+4+2*h2,2)}")
            a(f"v_pk_add_f32 {vr(A+8+2*h2,2)}, {vr(A+8+2*h2,2)}, {vr(A+12+2*h2,2)}")
        for h2 in range(2):
            a(f"v_pk_add_f32 {vr(A+2*h2,2)}, {vr(A+2*h2,2)}, {vr(A+8+2*h2,2)}")
        a(f"v_cvt_pk_bf16_f32 v{A}, v{A}, v{A+1}")
        a(f"v_cvt_pk_bf16_f32 v{A+1}, v{A+2}, v{A+3}")
        a(f"buffer_store_dwordx2 {vr(A,2)}, v{VXO}, s[{SC}:{SC+3}], 0 offen offset:{64*m}")
    endpgm(a, 0)

    for k in range(10):
        a(f"L_or{k}:")
        a("s_waitcnt vmcnt(0)")
        if RSL: a(f"s_sleep {RSL}")
        for j in range(k, 10): ld_o(j)
        a(f"s_add_u32 s{T5}, s{T5}, 1")
        a(f"s_cmp_lt_u32 s{T5}, {SPIN_MAX}")
        a(f"s_waitcnt vmcnt({9-k})")
        a(f"s_cbranch_scc1 L_oc{k}")
        a(f"s_branch L_og{k}")

    S_IT = 78
    def load_kv(r):
        a(f"buffer_load_dwordx4 {vr(K1(r),4)}, v{VL16}, s[{SWS}:{SWS+3}], s{S_KV} offen sc1")
        a(f"buffer_load_dwordx2 {vr(K2(r),2)}, v{VL8}, s[{SWS}:{SWS+3}], s{S_KV} offen offset:1024 sc1")
        a(f"buffer_load_dwordx4 {vr(V1(r),4)}, v{VLV}, s[{SWS}:{SWS+3}], s{S_KV} offen offset:1280 sc1")
        a(f"buffer_load_dwordx4 {vr(V2(r),4)}, v{VLV}, s[{SWS}:{SWS+3}], s{S_KV} offen offset:1952 sc1")
        a(f"s_add_u32 s{S_KV}, s{S_KV}, {KVS}")
    a("L_attn_loads:")
    a(f"s_mul_i32 s{T0}, s{S_TB}, 40960")
    for d in (Q1(0), Q1(0)+2, Q2(0)):
        a(f"buffer_load_dwordx2 {vr(d,2)}, v{d}, s[{SWS}:{SWS+3}], s{T0} offen sc1")
    load_kv(0)
    for q in range(1, 4):
        for d in (Q1(q), Q1(q)+2, Q2(q)):
            a(f"buffer_load_dwordx2 {vr(d,2)}, v{d}, s[{SWS}:{SWS+3}], s{T0} offen sc1")
    for r in range(1, 3):
        load_kv(r)
    a(f"s_setpc_b64 s[{T4}:{T5}]")

    a("L_attn:")
    for q in range(4):
        zero_mfma(O(q), V2(3))
    a(f"s_cmp_eq_u32 s{S_EARLY}, 1")
    a(f"s_cbranch_scc1 L_attn_go")
    if not LATEH:
        a("s_waitcnt vmcnt(0)")
        a(f"ds_write_b32 v{VFL}, v15")
    if SB: stamp(a, 1)
    a(f"s_cmp_lg_u32 s{S_W}, 4")
    a(f"s_cbranch_scc1 L_attn_w")
    mbx_wait(0, 1)
    lds_set(17)
    a("L_attn_w:")
    lds_wait(17, sleep=1)
    if SB: stamp(a, 2)
    a(f"s_call_b64 s[{T4}:{T5}], L_attn_loads")
    a("L_attn_go:")
    if LATEH: h_stores()
    a(f"s_lshl_b32 s{T0}, s2, 3")
    a(f"s_add_u32 s{T0}, s{T0}, s{S_WQ}")
    a(f"s_cmp_lg_u32 s{T0}, 0")
    a(f"s_cbranch_scc1 L_attn_g2")
    a(f"s_mov_b32 s{T0}, {EPOCH_OFF}")
    a("v_mov_b32 v2, 0")
    a("s_mov_b64 exec, 1")
    a(f"buffer_store_dword v14, v2, s[{SWS}:{SWS+3}], s{T0} offen sc1")
    a("s_mov_b64 exec, -1")
    a("L_attn_g2:")
    for r in range(P1, P1+4):
        a(f"v_mov_b32 v{r}, 0")
    a(f"s_mov_b32 s{S_IT}, 0")
    a("s_waitcnt vmcnt(17)")
    a(f"ds_write_b32 v{VFL}, v15 offset:96")
    if not SP: stamp(a, 4)
    def qk1(buf, r, q): a(f"v_mfma_f32_32x32x16_bf16 {vr(S(buf),16)}, {vr(K1(r),4)}, {vr(Q1(q),4)}, 0")
    def qk2(buf, r, q): a(f"v_mfma_f32_32x32x8_bf16 {vr(S(buf),16)}, {vr(K2(r),2)}, {vr(Q2(q),2)}, {vr(S(buf),16)}")
    def pv(q, vreg, preg): a(f"v_mfma_f32_32x32x16_bf16 {vr(O(q),16)}, {vr(vreg,4)}, {vr(preg,4)}, {vr(O(q),16)}")
    def E(buf, i0):
        for i in range(i0, i0+4): a(f"v_exp_f32 v{S(buf)+i}, v{S(buf)+i}")
    def C(dst, buf, i): a(f"v_cvt_pk_bf16_f32 v{dst}, v{S(buf)+i}, v{S(buf)+i+1}")
    qk1(0, 0, 0); qk2(0, 0, 0)
    a("s_nop 10")
    a(".p2align 6")
    a("L_aloop:")
    for r in range(4):
        for q in range(4):
            buf = q & 1; nb = buf ^ 1
            nr, nq = (r, q+1) if q < 3 else ((r+1) & 3, 0)
            pr, pq = (r, q-1) if q > 0 else ((r-1) & 3, 3)
            if r == 0 and q < 3:
                a(f"s_waitcnt vmcnt({[14, 15, 12][q]})")
            if q == 3:
                a("s_waitcnt vmcnt(8)")
                if r == 1:
                    a(f"ds_write_b32 v{VFL}, v15")
            qk1(nb, nr, nq); E(buf, 0)
            pv(pq, V2(pr), P1); C(P0, buf, 0); C(P0+1, buf, 2)
            if q == 0:
                load_kv((r+3) & 3)
            E(buf, 4)
            qk2(nb, nr, nq); C(P0+2, buf, 4); C(P0+3, buf, 6); E(buf, 8)
            pv(q, V1(r), P0); C(P1, buf, 8); C(P1+1, buf, 10); E(buf, 12); C(P1+2, buf, 12); C(P1+3, buf, 14)
    a(f"s_add_u32 s{S_IT}, s{S_IT}, 1")
    a(f"s_cmp_lt_u32 s{S_IT}, 8")
    a(f"s_cbranch_scc1 L_aloop")
    if HINT == 0: a(f"ds_write_b32 v{VFL}, v15 offset:64")
    else: a("s_nop 0")
    pv(3, V2(3), P1)
    if STAMPS and not SB and not SP: a("s_memtime s[6:7]")
    for i in range(3):
        a(f"ds_write_b128 v{VCW}, {vr(O(2)+4*i,4)} offset:{1024*i}")
    a("s_nop 9")
    for i in range(3):
        a(f"ds_write_b128 v{VCW}, {vr(O(3)+4*i,4)} offset:{4096+1024*i}")
    a("s_waitcnt lgkmcnt(0)")
    a(f"ds_write_b32 v{VFL}, v15 offset:16")
    a("L_apoll:")
    a(f"ds_read_b32 v2, v{VFR} offset:16")
    a("s_waitcnt lgkmcnt(0)")
    a(f"v_readfirstlane_b32 s{T0}, v2")
    a("s_nop 0")
    a(f"s_cmp_eq_u32 s{T0}, 1")
    a(f"s_cbranch_scc0 L_apoll")
    for q in range(2):
        for i in range(3):
            a(f"ds_read_b128 {vr(O(2+q)+4*i,4)}, v{VCR} offset:{4096*q+1024*i}")
    for q in range(2):
        a(f"s_waitcnt lgkmcnt({3-3*q})")
        for j in range(0, 12, 2):
            a(f"v_pk_add_f32 {vr(O(q)+j,2)}, {vr(O(q)+j,2)}, {vr(O(2+q)+j,2)}")
    def get_l():
        for q in range(2):
            a(f"v_mov_b32 v{4+2*q}, v{O(q)+8}")
            a(f"v_mov_b32 v{5+2*q}, v{O(q)+8}")
        a("s_nop 0")
        for q in range(2):
            a(f"v_permlane32_swap_b32 v{5+2*q}, v{4+2*q}")
    get_l()
    a(f"v_mov_b32 v2, 0")
    a(f"v_mov_b32 v3, 0")
    a(f"v_mov_b32 v8, 0")
    for q in range(2):
        for j in range(0, 12, 2):
            a(f"v_pk_fma_f32 v[2:3], {vr(O(q)+j,2)}, v[8:9], v[2:3] op_sel_hi:[1,0,1]")
    a(f"v_min_f32 v10, v4, v6")
    a(f"v_max_f32 v11, v4, v6")
    a(f"v_fmac_f32 v2, 0, v4")
    a(f"v_fmac_f32 v3, 0, v6")
    a(f"v_cmp_le_f32 vcc, 0x1f800000, v10")
    a(f"s_mov_b64 s[{T0}:{T1}], vcc")
    a(f"v_cmp_ge_f32 vcc, 0x5f800000, v11")
    a(f"s_and_b64 s[{T0}:{T1}], s[{T0}:{T1}], vcc")
    a(f"v_cmp_o_f32 vcc, v2, v3")
    a(f"s_and_b64 s[{T0}:{T1}], s[{T0}:{T1}], vcc")
    a(f"s_cmp_eq_u64 s[{T0}:{T1}], exec")
    a("s_branch L_fb" if force_fallback else "s_cbranch_scc0 L_fb")
    a("L_norm:")
    for q in range(2):
        a(f"v_rcp_f32 v{4+2*q}, v{4+2*q}")
    a("s_nop 0")
    for q in range(2):
        for j in range(0, 12, 2):
            a(f"v_pk_mul_f32 {vr(O(q)+j,2)}, {vr(O(q)+j,2)}, {vr(4+2*q,2)} op_sel_hi:[1,0]")
    A_, B_ = O(0), O(1)
    def cvs(d, x):
        a(f"v_cvt_pk_bf16_f32 v{d}, v{x}, v{x+1}")
    for k in range(4): cvs(A_+k, A_+2*k)
    for k in range(4): a(f"v_min_u32 v{A_+k}, -2, v{A_+k}")
    for k in (4, 5): cvs(A_+k, A_+2*k)
    a(f"v_permlane32_swap_b32 v{A_}, v{A_+2}")
    a(f"v_permlane32_swap_b32 v{A_+1}, v{A_+3}")
    cvs(A_+6, B_); cvs(A_+7, B_+2)
    a(f"buffer_store_dwordx4 {vr(A_,4)}, v{VL16}, s[{SWS}:{SWS+3}], s{S_OO} offen sc1")
    cvs(B_, B_+4); cvs(B_+1, B_+6); cvs(B_+4, B_+8); cvs(B_+5, B_+10)
    for r in (A_+4, A_+5, A_+6, A_+7, B_, B_+1, B_+4, B_+5):
        a(f"v_min_u32 v{r}, -2, v{r}")
    a(f"v_cndmask_b32 v{A_+4}, v{A_+4}, v{A_+6}, s[{S_UP}:{S_UP+1}]")
    a(f"v_cndmask_b32 v{A_+5}, v{A_+5}, v{A_+7}, s[{S_UP}:{S_UP+1}]")
    a(f"v_permlane32_swap_b32 v{A_+6}, v{B_}")
    a(f"v_permlane32_swap_b32 v{A_+7}, v{B_+1}")
    a(f"v_permlane32_swap_b32 v{B_+2}, v{B_+4}")
    a(f"v_permlane32_swap_b32 v{B_+3}, v{B_+5}")
    a(f"buffer_store_dwordx4 {vr(A_+4,4)}, v{VL16}, s[{SWS}:{SWS+3}], s{S_OO} offen offset:1024 sc1")
    a("s_mov_b32 exec_lo, 0")
    a(f"buffer_store_dwordx4 {vr(B_,4)}, v{VL16}, s[{SWS}:{SWS+3}], s{S_OO} offen offset:1536 sc1")
    a("s_mov_b64 exec, -1")
    if HINT: a(f"ds_write_b32 v{VFL}, v15 offset:64")
    endpgm(a, 0)
    a("L_fb:")
    a("s_waitcnt vmcnt(0)")
    a(f"v_mov_b32 v4, 0xff800000")
    a(f"v_mov_b32 v5, 0xff800000")
    a(f"s_mov_b32 s{S_KV}, {KVF_OFF}")
    a(f"s_mov_b32 s{S_IT}, 0")
    a("L_fb1:")
    load_kv(0)
    a("s_waitcnt vmcnt(0)")
    for q in range(2):
        qk1(q, 0, q); qk2(q, 0, q)
    a("s_nop 15")
    for q in range(2):
        for j in range(0, 16, 2):
            a(f"v_max3_f32 v{4+q}, v{S(q)+j}, v{S(q)+j+1}, v{4+q}")
    a(f"s_add_u32 s{S_IT}, s{S_IT}, 1")
    a(f"s_cmp_lt_u32 s{S_IT}, 64")
    a(f"s_cbranch_scc1 L_fb1")
    for q in range(2):
        a(f"v_mov_b32 v6, v{4+q}")
        a("s_nop 1")
        a(f"v_permlane32_swap_b32 v6, v{4+q}")
        a("s_nop 1")
        a(f"v_max_f32 v6, v6, v{4+q}")
        a(f"v_sub_f32 v6, 0, v6")
        a(f"v_cvt_pk_bf16_f32 v7, v6, v6")
        a(f"v_lshlrev_b32 v7, 16, v7")
        a(f"v_sub_f32 v8, v6, v7")
        a(f"v_cvt_pk_bf16_f32 v7, v7, v8")
        a(f"v_cndmask_b32 v{Q2(q)}, v{Q2(q)}, v7, s[{S_UP}:{S_UP+1}]")
        for j in range(16):
            a(f"v_mov_b32 v{O(q)+j}, 0")
    a(f"s_mov_b32 s{S_KV}, {KVF_OFF}")
    a(f"s_mov_b32 s{S_IT}, 0")
    a("v_mov_b32 v9, 0x3f803f80")
    a("L_fb2:")
    load_kv(0)
    a("s_waitcnt vmcnt(0)")
    a(f"v_cndmask_b32 v{K2(0)}, v{K2(0)}, v9, s[{S_UP}:{S_UP+1}]")
    a("s_nop 1")
    for q in range(2):
        qk1(q, 0, q); qk2(q, 0, q)
    a("s_nop 15")
    for q in range(2):
        for i0 in range(0, 16, 4): E(q, i0)
        a("s_nop 0")
        for k in range(4): C(P0+k, q, 2*k)
        for k in range(4): C(P1+k, q, 8+2*k)
        a("s_nop 1")
        pv(q, V1(0), P0); pv(q, V2(0), P1)
    a(f"s_add_u32 s{S_IT}, s{S_IT}, 1")
    a(f"s_cmp_lt_u32 s{S_IT}, 64")
    a(f"s_cbranch_scc1 L_fb2")
    a("s_nop 15")
    get_l()
    a("s_nop 1")
    a("s_branch L_norm")
    a("L_end:")
    a("s_endpgm")
    return a, kernel_desc(name, 256)

def build(force_fallback=False):
    hdr = open("cdna_kernels/%s.s.ref" % NAME).read().split("\n")
    hdr = [l for l in hdr if l.startswith(";") and "@launch" not in l and "Override" not in l and "grid=ceil" not in l]
    body, desc = gen(NAME + "_kernel", force_fallback)
    out = "\n".join(hdr) + "\n"
    out += f"; @launch grid=(256,1,1) block=(512,1,1) lds={LDS_BYTES}\n"
    out += '.amdgcn_target "amdgcn-amd-amdhsa--gfx950"\n.text\n'
    out += body.text()
    out += '.section .rodata,"a"\n' + desc
    return out

if __name__ == "__main__":
    out = sys.argv[1] if len(sys.argv) > 1 else "cdna_kernels/%s.s" % NAME
    open(out, "w").write(build("fb" in sys.argv[2:]))
    print("wrote", out)
```

```python
NAME = "parallel_sum__grouped_kv_mqa__glu_gated_bilinear__prompt"

QF_OFF  = 0x000000
KVF_OFF = 0x280000
HF_OFF  = 0x300000
OF_OFF  = 0x900000
RF_OFF  = 0xC00000
WS_SIZE = 0x1100000

class Asm:
    def __init__(self):
        self.lines = []
    def __call__(self, s):
        for l in s.strip("\n").split("\n"):
            l = l.strip()
            if not l:
                continue
            if l.endswith(":"):
                self.lines.append(l)
            else:
                self.lines.append("    " + l)
    def raw(self, s):
        self.lines.append(s)
    def text(self):
        return "\n".join(self.lines) + "\n"

def vr(b, n=1):
    return f"v{b}" if n == 1 else f"v[{b}:{b+n-1}]"
def sr(b, n=1):
    return f"s{b}" if n == 1 else f"s[{b}:{b+n-1}]"

def kernel_begin(a, name):
    a.raw(f".globl {name}")
    a.raw(".p2align 8")
    a.raw(f".type {name},@function")
    a.raw(f"{name}:")

def kernel_desc(name, vgpr, sgpr=102, accum=None):
    accum = accum or ((vgpr + 3) // 4 * 4)
    return f""".p2align 6
.amdhsa_kernel {name}
  .amdhsa_next_free_vgpr {vgpr}
  .amdhsa_next_free_sgpr {sgpr}
  .amdhsa_accum_offset {accum}
  .amdhsa_group_segment_fixed_size 0
  .amdhsa_kernarg_size 96
  .amdhsa_user_sgpr_count 2
  .amdhsa_user_sgpr_kernarg_segment_ptr 1
  .amdhsa_system_sgpr_workgroup_id_x 1
.end_amdhsa_kernel
"""

P_X, P_WQ, P_WK, P_WV, P_WO, P_BX, P_WG, P_WU, P_WD, P_OUT, P_DBG, P_WS = [16 + 2*i for i in range(12)]

def load_kernargs(a):
    if DBGT: a("s_memrealtime s[94:95]"); a("s_memtime s[4:5]")
    stamp(a, 0); stamp_rt(a, 0)
    if STAMPS:
        for i in range(1, 5): a(f"s_mov_b64 s[{4+2*i}:{5+2*i}], 0")
    a("s_load_dwordx16 s[16:31], s[0:1], 0")
    a("s_load_dwordx8 s[32:39], s[0:1], 64")

def make_srd(a, d, ptr, size):
    a(f"s_mov_b32 s{d}, s{ptr}")
    a(f"s_mov_b32 s{d+1}, s{ptr+1}")
    a(f"s_mov_b32 s{d+2}, {size}" if not isinstance(size, str) else f"s_mov_b32 s{d+2}, {size}")
    a(f"s_mov_b32 s{d+3}, 0x00020000")

def f32bits(x):
    import struct
    return "0x%08x" % struct.unpack("<I", struct.pack("<f", x))[0]

import os
STAMPS = os.environ.get("STAMPS", "0") == "1"
STAMP_OFF = 0x1000000 + 0x80000
def stamp(a, i):
    if STAMPS:
        a(f"s_memtime s[{4+2*i}:{5+2*i}]")
def stamp_rt(a, i):
    if STAMPS:
        a(f"s_memrealtime s[{94+2*i}:{95+2*i}]")
DBGT = os.environ.get("DBGT", "0") == "1"
def endpgm(a, kidx):
    if DBGT:
        a("s_memrealtime s[96:97]"); a("s_memtime s[14:15]")
        a("s_waitcnt lgkmcnt(0)")
        a("s_sub_u32 s94, -1, s94")
        a("s_sub_u32 s14, s14, s4")
        a("v_mov_b32 v2, s94"); a("v_mov_b32 v3, s96"); a("v_mov_b32 v4, s14"); a("v_mov_b32 v1, 0")
        a("s_mov_b64 exec, 1")
        a("global_atomic_umax v1, v2, s[36:37]"); a("global_atomic_umax v1, v3, s[36:37] offset:4"); a("global_atomic_umax v1, v4, s[36:37] offset:8")
    if STAMPS:
        stamp(a, 5); stamp_rt(a, 1)
        a("s_waitcnt lgkmcnt(0)")
        a("s_mov_b32 s98, s38"); a("s_mov_b32 s99, s39")
        a("s_wqm_b64 exec, exec")
        a(f"s_lshl_b32 s100, s2, 3")
        a(f"s_add_u32 s100, s100, s3")
        a(f"s_lshl_b32 s100, s100, 5")
        a(f"s_add_u32 s100, s100, {0x2000000 + kidx*0x10000}")
        a("s_add_u32 s98, s98, s100"); a("s_addc_u32 s99, s99, 0")
        for j, sreg in enumerate([4, 6, 8, 10, 12, 14, 94, 96]):
            a(f"v_mov_b32 v{2+j}, s{sreg}")
        a("v_mov_b32 v1, 0")
        a("global_store_dwordx4 v1, v[2:5], s[98:99]")
        a("global_store_dwordx4 v1, v[6:9], s[98:99] offset:16")
    a("s_endpgm")
```

```python
from common import *
import math, sys

STF_OFF = 0x2F0000
QFL_OFF, HFL_OFF = 0x2D0000, 0x2D4000
MBX_OFF = 0x2D0000
EPOCH_OFF = 0x2FF000
OFL_OFF = 0x2F8000
STG = 49408
RING = 6
RSZ = RING * 5120
CB_OFF = 4 * RSZ
CS_OFF = CB_OFF
ST_OFF = 3 * STG
VT_OFF = CB_OFF + 8192
FL_OFF = CB_OFF + 32768
LDS_BYTES = FL_OFF + 192
G_OFF, U_REL = 32768, 8256
KVS = 2688 if os.environ.get("KVC", "1") == "1" else 3584
QSCALE = math.log2(math.e) / math.sqrt(20.0)
SPIN_MAX = 1 << 18
ABL = os.environ.get("ABL", "")
SB = "B" in ABL
SP = "P" in ABL
PACE = int(os.environ.get("PACE", "2"))
PRE0 = int(os.environ.get("PRE0", "0"))
LATEH = int(os.environ.get("LATEH", "1"))
PGT = int(os.environ.get("PGT", "0"))
KVC = int(os.environ.get("KVC", "1"))
HINT = int(os.environ.get("HINT", "2"))
RSL = int(os.environ.get("RSL", "4"))

S_W = 3
SX, SWS, SDBG, SA, SB2, SC, SD = 40, 44, 48, 52, 56, 60, 88
S_TH, S_CG, S_IDX, S_WQ, S_ISH, S_TB, S_G, S_TOK = 64, 65, 66, 67, 68, 69, 70, 71
T0, T1, T2, T3, T4, T5 = 72, 73, 74, 75, 76, 77
S_I, S_DB, S_RB, S_OX, S_OW, S_O2, S_O3, S_ST2 = 78, 79, 80, 81, 82, 83, 84, 85
S_EARLY, S_COL = 86, 87
S_UP = 92
S_MBX, S_ROT, S_MH, S_DL = 99, 100, 101, 98
S_NON = 79
S_OO = 56
S_OFL, S_KV, S_H0, S_K2 = 52, 53, 54, 55
VL, VT, VH, VL16, VL8, VF, VFL = 250, 251, 252, 253, 254, 249, 248
VLV = 0
VZ = 244
FBASE = [32, 48, 128, 144]
CSA = 26

def gen(name, force_fallback=False):
    a = Asm()
    kernel_begin(a, name)
    uid = [0]
    def lab(s):
        uid[0] += 1
        return f"L{uid[0]}_{s}"
    def emit(ch):
        for c in ch:
            for l in c: a(l)
    def lds_set(idx):
        a(f"v_mov_b32 v2, {FL_OFF + 4*idx}")
        a(f"v_mov_b32 v3, 1")
        a(f"ds_write_b32 v2, v3")
    def lds_wait(idx, n=1, sleep=1):
        L = lab("lw")
        a(f"v_mov_b32 v2, {FL_OFF + 4*idx}")
        a(f"{L}:")
        if n == 1:
            a("ds_read_b32 v4, v2")
            a("s_waitcnt lgkmcnt(0)")
        else:
            a("ds_read_b128 v[4:7], v2")
            if n == 8: a("ds_read_b128 v[8:11], v2 offset:16")
            a("s_waitcnt lgkmcnt(0)")
            a("v_bitop3_b32 v4, v4, v5, v6 bitop3:0x80")
            if n == 8:
                a("v_bitop3_b32 v8, v8, v9, v10 bitop3:0x80")
                a("v_bitop3_b32 v4, v4, v8, v11 bitop3:0x80")
            a("v_and_b32 v4, v4, v7")
            a("s_nop 0")
        a(f"v_readfirstlane_b32 s{T4}, v4")
        a("s_nop 0")
        a(f"s_cmp_eq_u32 s{T4}, 1")
        a(f"s_cbranch_scc1 {L}_d")
        a(f"s_sleep {sleep}")
        a(f"s_branch {L}")
        a(f"{L}_d:")
    def mbx_load(line):
        if line == 0:
            a(f"s_lshr_b32 s{T1}, s{S_TB}, 2")
            a(f"s_lshl_b32 s{T1}, s{T1}, 9")
            a(f"v_and_b32 v2, 3, v{VL}")
            a(f"v_lshl_add_u32 v2, v2, 7, s{T1}")
            a(f"v_and_b32 v3, 15, v{VL}")
            a(f"v_lshlrev_b32 v3, 9, v3")
            a(f"v_add_u32 v3, 384, v3")
            a(f"s_mov_b32 s{T0}, {QFL_OFF}")
            a(f"v_cndmask_b32 v2, v3, v2, s[{S_UP}:{S_UP+1}]")
        else:
            a(f"s_and_b32 s{T0}, s2, 7")
            a(f"s_lshl_b32 s{T0}, s{T0}, 12")
            a(f"s_add_u32 s{T0}, s{T0}, {HFL_OFF}")
            a(f"s_lshl_b32 s{T1}, s{S_TB}, 7")
            a(f"s_add_u32 s{T1}, s{T1}, {OFL_OFF}")
            a(f"s_sub_u32 s{T1}, s{T1}, s{T0}")
            a(f"v_and_b32 v2, 15, v{VL}")
            a(f"v_lshl_add_u32 v2, v2, 2, s{T1}")
            a(f"v_min_u32 v3, 23, v{VL}")
            a(f"v_lshlrev_b32 v3, 7, v3")
            a(f"v_cndmask_b32 v2, v3, v2, s[{S_UP}:{S_UP+1}]")
        a(f"buffer_load_dword v{VF}, v2, s[{SWS}:{SWS+3}], s{T0} offen sc1")
    def mbx_test():
        a(f"v_cmp_ne_u32 vcc, s{S_NON}, v{VF}")
        a("s_cmp_eq_u64 vcc, 0")
    def mbx_wait(line, sleep):
        L, D = lab("spin"), lab("done")
        a(f"s_mov_b32 s{T5}, 0")
        mbx_load(line)
        a(f"{L}:")
        a(f"s_add_u32 s{T5}, s{T5}, 1")
        a("s_waitcnt vmcnt(0)")
        mbx_test()
        a(f"s_cbranch_scc1 {D}")
        a(f"s_sleep {sleep}")
        a(f"buffer_load_dword v{VF}, v2, s[{SWS}:{SWS+3}], s{T0} offen sc1")
        a(f"s_cmp_lt_u32 s{T5}, {SPIN_MAX}")
        a(f"s_cbranch_scc1 {L}")
        a(f"{D}:")
    def zero_mfma(dst, z):
        a(f"v_mfma_f32_32x32x16_bf16 {vr(dst,16)}, {vr(z,4)}, {vr(z,4)}, 0")

    O = lambda q: [32, 48, 128, 144][q]
    S = lambda p: 64 + 16*p
    P0, P1 = 96, 100
    Q1 = lambda q: 168 + 4*q
    Q2 = lambda q: 184 + 2*q
    KVB = lambda r: 192 + 14*r
    K1 = lambda r: KVB(r); V1 = lambda r: KVB(r)+4; V2 = lambda r: KVB(r)+8; K2 = lambda r: KVB(r)+12
    VCW, VCR, VCW4, VCR4, VFR = 22, 23, 24, 25, 255
    VD = [168, 169, 170, 171, 172]
    VAR, VAR2, VR0, VR1, VXO, VRW = 173, 174, 175, 176, 177, 178
    VX = [22, 23]; VW, VW2, VW3 = 24, 25, 190

    a("s_cmp_ge_u32 s2, 256")
    a("s_cbranch_scc1 L_end")
    load_kernargs(a)
    a(f"s_getpc_b64 s[{T0}:{T1}]")
    a("L_pc:")
    a(f"v_lshlrev_b32 v1, 7, v0")
    a(f"v_min_u32 v1, L_end-L_pc, v1")
    a(f"global_load_dword v{VF}, v1, s[{T0}:{T1}]")
    a("v_lshrrev_b32 v1, 6, v0")
    a(f"v_and_b32 v{VL}, 63, v0")
    a(f"v_readfirstlane_b32 s{S_W}, v1")
    a(f"s_and_b32 s{T0}, s2, 7")
    a(f"s_lshr_b32 s{S_IDX}, s2, 3")
    a(f"s_and_b32 s{S_TH}, s{T0}, 1")
    a(f"s_lshr_b32 s{S_CG}, s{T0}, 1")
    a(f"s_and_b32 s{S_WQ}, s{S_W}, 3")
    a(f"s_lshr_b32 s{S_ISH}, s{S_W}, 2")
    a(f"s_lshl_b32 s{S_TOK}, s{S_TH}, 2")
    a(f"s_and_b32 s{T1}, s{S_IDX}, 3")
    a(f"s_add_u32 s{S_TOK}, s{S_TOK}, s{T1}")
    a(f"s_lshl_b32 s{S_TOK}, s{S_TOK}, 8")
    a(f"s_mul_i32 s{S_COL}, s{S_CG}, 6")
    a(f"s_lshr_b32 s{T1}, s{S_IDX}, 2")
    a(f"s_add_u32 s{S_COL}, s{S_COL}, s{T1}")
    a(f"s_lshl_b32 s{T1}, s{S_TH}, 3")
    a(f"s_add_u32 s{T1}, s{T1}, s{S_IDX}")
    a(f"s_sub_u32 s{T1}, s{T1}, 24")
    a(f"s_lshl_b32 s{T1}, s{T1}, 7")
    a(f"s_cmp_lt_u32 s{S_IDX}, 24")
    a(f"s_cselect_b32 s{S_TOK}, s{S_TOK}, s{T1}")
    a(f"s_cselect_b32 s{S_COL}, s{S_COL}, s{S_CG}")
    a(f"s_cselect_b32 s{T1}, 6, 5")
    a(f"v_and_b32 v{VT}, 31, v0")
    a(f"v_bfe_u32 v{VH}, v0, 5, 1")
    a(f"s_cmp_lg_u32 s{S_ISH}, 0")
    a(f"s_cbranch_scc1 L_p0_h")
    a(f"v_lshrrev_b32 v1, 3, v{VL}")
    a(f"v_lshrrev_b32 v2, 4, v{VL}")
    a(f"v_and_b32 v4, 7, v{VL}")
    a(f"v_xor_b32 v3, v2, v4")
    a(f"s_lshl_b32 s{T2}, s{S_WQ}, s{T1}")
    a(f"s_add_u32 s{T2}, s{T2}, s{S_TOK}")
    a(f"v_add_u32 v5, s{T2}, v1")
    a(f"v_mul_u32_u24 v5, 1280, v5")
    a(f"v_lshl_add_u32 v{VX[0]}, v3, 4, v5")
    a(f"v_xor_b32 v3, 4, v3")
    a(f"v_lshl_add_u32 v{VX[1]}, v3, 4, v5")
    S_MX, S_MW = S_OX, S_RB
    S_RX, S_RW = 86, 99
    a(f"s_mul_i32 s{T2}, s{S_IDX}, 3")
    a(f"s_mul_i32 s{T3}, s{T2}, 205")
    a(f"s_lshr_b32 s{T3}, s{T3}, 11")
    a(f"s_mul_i32 s{T3}, s{T3}, 10")
    a(f"s_sub_u32 s{S_RW}, s{T2}, s{T3}")
    if "0" not in ABL: a(f"s_mov_b32 s{S_RW}, 0")
    if "2" in ABL:
        a(f"s_lshr_b32 s{T2}, s{S_IDX}, 2")
        a(f"s_xor_b32 s{T2}, s{T2}, s{S_IDX}")
        a(f"s_and_b32 s{T2}, s{T2}, 1")
        a(f"s_mul_i32 s{S_RW}, s{T2}, 5")
    S_RX = 82
    a(f"s_lshl_b32 s{S_RX}, s{S_RW}, 7")
    a(f"s_cmp_lt_u32 s{S_IDX}, 24")
    a(f"s_cbranch_scc0 L_q_l")
    a(f"v_and_b32 v2, 1, v2")
    a(f"v_lshlrev_b32 v2, 1, v2")
    a(f"v_xor_b32 v4, v4, v2")
    a(f"s_lshl_b32 s{T2}, s{S_WQ}, 4")
    a(f"v_add_u32 v1, s{T2}, v1")
    a(f"v_mul_u32_u24 v1, 3072, v1")
    a(f"v_lshl_add_u32 v1, v4, 4, v1")
    a(f"s_lshl_b32 s{T2}, s{S_COL}, 7")
    a(f"v_add_u32 v{VW}, s{T2}, v1")
    a(f"s_lshl_b32 s{S_MX}, s{S_WQ}, 13")
    a(f"s_lshl_b32 s{S_MW}, s{S_WQ}, 11")
    a(f"s_mul_i32 s{S_RW}, s{S_RW}, {64*3072}")
    a("s_waitcnt lgkmcnt(0)")
    make_srd(a, SX, P_X, 2048*1280)
    make_srd(a, SA, P_WG, 640*3072)
    make_srd(a, SB2, P_WU, 640*3072)
    def dma_gu(st):
        db = (st % 3) * STG
        ch = []
        for j in (0, 1, 2, 3, 8, 9, 4, 5, 6, 7, 10, 11):
            c = []
            if j < 8:
                if j in (0, 4):
                    c += [f"s_add_u32 m0, s{S_MX}, {db + 4096*(j>>2)}"]
                c += [f"s_add_u32 s{T3}, s{S_RX}, {j*10240 - 1024*(j&3)}",
                      f"buffer_load_dwordx4 v{VX[j&1]}, s[{SX}:{SX+3}], s{T3} offen offset:{1024*(j&3)} lds"]
            else:
                srd = SA if j < 10 else SB2
                if j in (8, 10):
                    c += [f"s_add_u32 m0, s{S_MW}, {db + G_OFF + (U_REL if j == 10 else 0)}"]
                c += [f"s_add_u32 s{T3}, s{S_RW}, {(j&1)*(8*3072-1024)}",
                      f"buffer_load_dwordx4 v{VW}, s[{srd}:{srd+3}], s{T3} offen offset:{1024*(j&1)} lds"]
                if j == 11:
                    c += [f"s_add_u32 s{S_RX}, s{S_RX}, 128", f"s_add_u32 s{S_RW}, s{S_RW}, {64*3072}", f"s_cmp_eq_u32 s{S_RX}, 1280",
                          f"s_cselect_b32 s{S_RX}, 0, s{S_RX}", f"s_cselect_b32 s{S_RW}, 0, s{S_RW}"]
            ch.append(c)
        return ch
    if SP: stamp(a, 1)
    emit(dma_gu(0))
    if SP: stamp(a, 2)
    a("s_branch L_common")
    a("L_q_l:")
    EX1, EX2, S_M2 = 60, 62, 79
    a(f"s_cmp_eq_u32 s{S_COL}, 3")
    a(f"s_cselect_b32 s{T0}, 40, 1280")
    a(f"s_lshl_b32 s{S_ST2}, s{T0}, 6")
    a(f"v_and_b32 v2, 1, v2")
    a(f"v_lshlrev_b32 v2, 2, v2")
    a(f"v_xor_b32 v4, v4, v2")
    a(f"s_lshl_b32 s{T1}, s{S_WQ}, 4")
    a(f"v_add_u32 v1, s{T1}, v1")
    a(f"v_mul_u32_u24 v3, 1280, v1")
    a(f"v_lshl_add_u32 v3, v4, 4, v3")
    a(f"s_mul_i32 s{T2}, s{S_COL}, 384")
    a(f"v_add_u32 v{VW}, s{T2}, v3")
    a(f"v_add_u32 v{VW2}, 128, v{VW}")
    a(f"v_add_u32 v{VW3}, 256, v{VW}")
    a(f"s_lshl_b32 s{S_MX}, s{S_WQ}, 12")
    a(f"s_lshl_b32 s{S_MW}, s{S_WQ}, 11")
    a(f"s_add_u32 s{S_M2}, s{S_MW}, 8192")
    a(f"s_mov_b64 s[{EX1}:{EX1+1}], -1")
    a(f"s_mov_b64 s[{EX2}:{EX2+1}], -1")
    a(f"s_mul_i32 s{S_O2}, s{S_RW}, s{S_ST2}")
    a(f"s_mul_i32 s{S_RW}, s{S_RW}, {64*1280}")
    a(f"s_lshr_b32 s{S_O3}, s{S_ST2}, 3")
    a(f"s_sub_u32 s{S_O3}, s{S_O3}, 1024")
    a("s_waitcnt lgkmcnt(0)")
    make_srd(a, SX, P_X, 2048*1280)
    for r in (SA, SB2, SD):
        make_srd(a, r, P_WQ, 640*1280)
    a(f"s_cmp_eq_u32 s{S_COL}, 3")
    a(f"s_cbranch_scc0 L_q_l1")
    a(f"s_mov_b64 s[{SB2}:{SB2+1}], s[{P_WK}:{P_WK+1}]")
    a(f"s_mov_b64 s[{SD}:{SD+1}], s[{P_WV}:{P_WV+1}]")
    a(f"s_mov_b32 s{SB2+2}, {640*40}")
    a(f"s_mov_b32 s{SD+2}, {640*40}")
    a(f"s_mov_b32 s{S_M2}, s{S_MW}")
    a(f"v_mul_u32_u24 v3, 40, v1")
    a(f"v_and_b32 v2, 3, v4")
    a(f"v_lshl_add_u32 v{VW2}, v2, 4, v3")
    a(f"v_mov_b32 v{VW3}, v{VW2}")
    a(f"v_cmp_gt_u32 s[{EX1}:{EX1+1}], 4, v4")
    a(f"v_cmp_le_u32 s[{EX2}:{EX2+1}], 4, v4")
    a("L_q_l1:")
    def dma_q(st):
        db = (st % 3) * STG
        ch = []
        for j in range(4):
            c = []
            if j == 0:
                c += [f"s_add_u32 m0, s{S_MX}, {db}"]
            c += [f"s_add_u32 s{T3}, s{S_RX}, {j*(10240-1024)}",
                  f"buffer_load_dwordx4 v{VX[j&1]}, s[{SX}:{SX+3}], s{T3} offen offset:{1024*j} lds"]
            ch.append(c)
        ch.append([f"s_add_u32 m0, s{S_MW}, {db + 16384}", f"s_add_u32 s{T3}, s{S_RW}, {8*1280-1024}",
                   f"buffer_load_dwordx4 v{VW}, s[{SA}:{SA+3}], s{S_RW} offen lds"])
        ch.append([f"buffer_load_dwordx4 v{VW}, s[{SA}:{SA+3}], s{T3} offen offset:1024 lds"])
        for sm, srd, vo, ex in ((S_MW, SB2, VW2, EX1), (S_M2, SD, VW3, EX2)):
            ch.append([f"s_add_u32 m0, s{sm}, {db + 16384 + 8192}", f"s_mov_b64 exec, s[{ex}:{ex+1}]",
                       f"buffer_load_dwordx4 v{vo}, s[{srd}:{srd+3}], s{S_O2} offen lds", "s_mov_b64 exec, -1"])
            ch.append([f"s_add_u32 m0, s{sm}, {db + 16384 + 8192 + 1024}", f"s_add_u32 s{T3}, s{S_O2}, s{S_O3}", f"s_add_u32 s{T3}, s{T3}, 1024", f"s_mov_b64 exec, s[{ex}:{ex+1}]",
                       f"buffer_load_dwordx4 v{vo}, s[{srd}:{srd+3}], s{T3} offen lds", "s_mov_b64 exec, -1"])
        ch[-1] += [f"s_add_u32 s{S_RX}, s{S_RX}, 128", f"s_add_u32 s{S_RW}, s{S_RW}, {64*1280}", f"s_add_u32 s{S_O2}, s{S_O2}, s{S_ST2}", f"s_cmp_eq_u32 s{S_RX}, 1280",
                   f"s_cselect_b32 s{S_RX}, 0, s{S_RX}", f"s_cselect_b32 s{S_RW}, 0, s{S_RW}", f"s_cselect_b32 s{S_O2}, 0, s{S_O2}"]
        return ch
    if SP: stamp(a, 1)
    emit(dma_q(0))
    if SP: stamp(a, 2)
    a("s_branch L_common")

    a("L_p0_h:")
    a(f"s_lshl_b32 s{T0}, s2, 3")
    a(f"s_lshl_b32 s{T1}, s{S_WQ}, 1")
    a(f"s_add_u32 s{T0}, s{T0}, s{T1}")
    a(f"v_add_u32 v4, s{T0}, v{VH}")
    a(f"v_mul_u32_u24 v5, 1280, v4")
    a(f"v_lshl_add_u32 v5, v{VT}, 3, v5")
    a(f"v_lshlrev_b32 v255, 3, v4")
    a(f"v_mov_b32 v242, 0")
    a(f"s_mov_b32 s{T1}, {EPOCH_OFF}")
    a("s_waitcnt lgkmcnt(0)")
    make_srd(a, SX, P_X, 2048*1280)
    make_srd(a, SWS, P_WS, WS_SIZE)
    a(f"buffer_load_dword v203, v242, s[{SWS}:{SWS+3}], s{T1} offen sc1")
    for j in range(5):
        a(f"buffer_load_dwordx2 {vr(192+2*j,2)}, v5, s[{SX}:{SX+3}], 0 offen offset:{256*j}")

    if PGT:
        make_srd(a, SD, P_OUT, 2048*1280)
        a(f"s_cmp_eq_u32 s{S_WQ}, 1")
        a(f"s_cselect_b64 s[{SD}:{SD+1}], s[{P_WD}:{P_WD+1}], s[{SD}:{SD+1}]")
        a(f"s_cselect_b32 s{SD+2}, {1536*1280}, s{SD+2}")
        a(f"s_cmp_eq_u32 s{S_WQ}, 2")
        a(f"s_cselect_b64 s[{SD}:{SD+1}], s[{P_WO}:{P_WO+1}], s[{SD}:{SD+1}]")
        a(f"s_cselect_b32 s{SD+2}, {640*1280}, s{SD+2}")
        a(f"s_cmp_eq_u32 s{S_WQ}, 3")
        a(f"s_cselect_b64 s[{SD}:{SD+1}], s[{P_WS}:{P_WS+1}], s[{SD}:{SD+1}]")
        a(f"s_cselect_b32 s{SD+2}, {0xC00000}, s{SD+2}")
        a(f"v_lshlrev_b32 v1, 19, v{VL}")
        a(f"s_lshl_b32 s{T0}, s2, 7")
        a(f"buffer_load_dword v246, v1, s[{SD}:{SD+3}], s{T0} offen")

    a("L_common:")
    make_srd(a, SWS, P_WS, WS_SIZE)
    make_srd(a, SDBG, P_DBG, 256)
    a(f"s_and_b32 s{S_MH}, s{S_W}, 1")
    a(f"s_lshr_b32 s{S_ROT}, s{S_W}, 1")
    a(f"s_mov_b32 s{S_UP}, 0")
    a(f"s_mov_b32 s{S_UP+1}, -1")
    a(f"v_lshlrev_b32 v{VL16}, 4, v{VL}")
    a(f"v_bfe_u32 v1, v{VT}, 1, 3")
    a(f"v_xor_b32 v1, v1, v{VH}")
    a(f"s_lshl_b32 s{T1}, s{S_ROT}, 1")
    a(f"v_xor_b32 v1, s{T1}, v1")
    a(f"v_lshlrev_b32 v2, 7, v{VT}")
    a(f"s_cmp_lt_u32 s{S_IDX}, 24")
    a(f"s_cselect_b32 s{T0}, 13, 12")
    a(f"s_lshl_b32 s{T0}, s{S_ROT}, s{T0}")
    a(f"v_add_u32 v2, s{T0}, v2")
    VB = lambda sg: 18 + sg
    for sg in range(4):
        a(f"v_xor_b32 v3, {2*sg}, v1")
        a(f"v_lshl_add_u32 v{VB(sg)}, v3, 4, v2")
    for r in range(CSA, CSA+6):
        a(f"v_mov_b32 v{r}, 0")
    a(f"s_and_b32 s{T0}, s2, 7")
    a(f"s_lshl_b32 s{S_TB}, s{T0}, 3")
    a(f"s_and_b32 s{T1}, s{S_IDX}, 7")
    a(f"s_add_u32 s{S_TB}, s{S_TB}, s{T1}")
    a(f"s_lshr_b32 s{S_G}, s{S_IDX}, 3")
    a(f"s_mov_b32 s{S_EARLY}, 0")
    a(f"s_mov_b32 s{S_DL}, {STG}")
    a(f"s_mov_b32 s{S_I}, {-2*STG & 0xffffffff}")
    a(f"v_bfe_u32 v1, v{VL}, 2, 2")
    a(f"v_lshl_add_u32 v2, v{VH}, 3, v1")
    a(f"v_bfe_u32 v3, v{VL}, 4, 1")
    a(f"s_cmp_lt_u32 s{S_IDX}, 24")
    a(f"s_cbranch_scc0 L_q_rd")
    VAg = lambda sg, aa: 10 + 2*sg + aa
    a(f"v_lshlrev_b32 v2, 7, v2")
    a(f"v_mul_u32_u24 v3, {U_REL}, v3")
    a(f"v_add_u32 v2, v2, v3")
    a(f"v_and_b32 v1, 2, v1")
    a(f"v_bfe_u32 v3, v{VL}, 1, 1")
    a(f"v_add_u32 v1, v1, v3")
    a(f"v_lshl_add_u32 v2, v1, 4, v2")
    a(f"v_and_b32 v3, 1, v{VL}")
    a(f"v_lshl_add_u32 v2, v3, 3, v2")
    a(f"s_lshl_b32 s{T0}, s{S_MH}, 6")
    a(f"s_add_u32 s{T0}, s{T0}, {G_OFF}")
    for sg in range(4):
        a(f"s_xor_b32 s{T1}, s{S_ROT}, {sg}")
        a(f"s_lshl_b32 s{T1}, s{T1}, 11")
        a(f"s_add_u32 s{T1}, s{T1}, s{T0}")
        a(f"v_add_u32 v{VAg(sg,0)}, s{T1}, v2")
        a(f"v_xor_b32 v{VAg(sg,1)}, 32, v{VAg(sg,0)}")

    def one(lst): return [[x] for x in lst]
    def bg_common():
        o = [f"v_lshlrev_b32 v{VL8}, 3, v{VL}", "v_mov_b32 v4, 0x80000000", f"v_cndmask_b32 v{VL8}, v{VL8}, v4, s[{S_UP}:{S_UP+1}]",
             f"v_mul_u32_u24 v5, 21, v{VH}", f"v_add_lshl_u32 v5, v5, v{VT}, 4", f"v_cmp_gt_u32 vcc, 21, v{VT}", "s_nop 1", f"v_cndmask_b32 v{VLV}, v4, v5, vcc", f"s_lshl_b32 s{T0}, s{S_W}, 2", f"s_add_u32 s{T0}, s{T0}, {FL_OFF}", f"v_mov_b32 v{VFL}, s{T0}"]
        o += [f"v_mov_b32 v{r}, 0" for r in (243, 244, 245)]
        return one(o)
    def bg_L():
        o = [f"v_mov_b32 v246, 0", f"v_mov_b32 v247, 0", f"s_mul_i32 s{T0}, s{S_G}, 320"]
        for j in range(5):
            o += [f"v_add_u32 v6, {64*j}, v{VL}", f"v_mul_u32_u24 v4, 3277, v6", f"v_lshrrev_b32 v4, 16, v4", f"v_mul_u32_u24 v5, 20, v4",
                  f"v_sub_u32 v5, v6, v5", f"v_mul_u32_u24 v4, 1280, v4", f"v_lshl_add_u32 v4, v5, 4, v4", f"v_add_u32 v{VD[j]}, s{T0}, v4"]
            if 0 < j < 4: o += [f"v_subrev_u32 v{VD[j]}, {1024*j}, v{VD[j]}"]
        o += [f"s_lshl_b32 s{T1}, s{S_TB}, 5", f"v_add_u32 v6, s{T1}, v{VT}", f"v_mul_u32_u24 v6, 1280, v6", f"v_lshl_add_u32 v6, v{VH}, 3, v6",
              f"s_lshl_b32 s{T1}, s{S_WQ}, 4", f"s_add_u32 s{T0}, s{T0}, s{T1}", f"v_add_u32 v{VXO}, s{T0}, v6",
              f"s_mul_i32 s{T0}, s{S_WQ}, {RSZ}", f"v_bfe_u32 v6, v{VL}, 2, 2", f"v_bfe_u32 v4, v{VL}, 4, 1", f"v_and_b32 v5, 3, v{VL}",
              f"v_lshl_add_u32 v4, v4, 2, v5", f"s_lshl_b32 s{T1}, s{S_WQ}, 1", f"v_xor_b32 v4, s{T1}, v4", f"v_lshl_add_u32 v4, v4, 3, s{T0}",
              f"v_lshl_add_u32 v5, v{VH}, 2, v6", f"v_mul_u32_u24 v5, 320, v5", f"v_add_u32 v{VAR}, v4, v5",
              f"v_lshl_add_u32 v5, v{VH}, 3, v6", f"v_mul_u32_u24 v5, 320, v5", f"v_add_u32 v{VAR2}, v4, v5", f"v_add_u32 v{VRW}, s{T0}, v{VL16}"]
        for i, vv in ((1, VR0), (2, VR1), (3, VRW+1)):
            o += [f"s_xor_b32 s{T1}, s{S_WQ}, {i}", f"s_mul_i32 s{T1}, s{T1}, {RSZ}", f"v_add_u32 v{vv}, s{T1}, v{VL16}"]
        return one(o)
    VRD = {1: VR0, 2: VR1, 3: VRW+1}
    def touches():
        a(f"s_lshl_b32 s{T0}, s{S_TH}, 10")
        a(f"s_lshl_b32 s{T1}, s{S_IDX}, 5")
        a(f"s_add_u32 s{T0}, s{T0}, s{T1}")
        a(f"v_add_u32 v1, s{T0}, v{VT}")
        a(f"v_mul_u32_u24 v1, 1280, v1")
        a(f"v_mov_b32 v2, 128")
        a(f"v_mov_b32 v3, s{P_X}")
        a(f"v_mov_b32 v4, s{P_X+1}")
        a(f"v_min_u32 v5, 29, v{VT}")
        a(f"v_cmp_le_u32 vcc, 15, v5")
        a(f"s_lshl_b32 s{T0}, s{S_IDX}, 1")
        a(f"v_mov_b32 v6, s{T0}")
        a(f"v_subrev_u32 v7, 15, v5")
        a(f"v_addc_co_u32 v6, s[{T2}:{T3}], 0, v6, vcc")
        a(f"v_cndmask_b32 v5, v5, v7, vcc")
        a(f"v_cmp_le_u32 vcc, 6, v5")
        a(f"v_subrev_u32 v7, 6, v5")
        a(f"v_mov_b32 v8, s{P_WG}")
        a(f"v_cndmask_b32 v7, v5, v7, vcc")
        a(f"v_mov_b32 v9, s{P_WU}")
        a(f"v_cndmask_b32 v8, v8, v9, vcc")
        a(f"v_mov_b32 v9, s{P_WG+1}")
        a(f"v_mov_b32 v32, s{P_WU+1}")
        a(f"v_cndmask_b32 v9, v9, v32, vcc")
        a(f"s_mul_i32 s{T0}, s{S_CG}, 768")
        a(f"v_mul_u32_u24 v32, 3072, v6")
        a(f"v_lshl_add_u32 v32, v7, 7, v32")
        a(f"v_add_u32 v32, s{T0}, v32")
        a(f"v_mov_b32 v33, {64*3072}")
        a(f"v_cmp_le_u32 vcc, 12, v5")
        a(f"s_mul_i32 s{T0}, s{S_CG}, 384")
        a(f"s_sub_u32 s{T0}, s{T0}, {12*128}")
        a(f"v_lshl_add_u32 v7, v5, 7, s{T0}")
        a(f"v_min_u32 v7, 1152, v7")
        a(f"v_mul_u32_u24 v6, 1280, v6")
        a(f"v_add_u32 v7, v7, v6")
        a(f"v_cndmask_b32 v32, v32, v7, vcc")
        a(f"v_mov_b32 v7, {64*1280}")
        a(f"v_cndmask_b32 v33, v33, v7, vcc")
        a(f"v_mov_b32 v7, s{P_WQ}")
        a(f"v_cndmask_b32 v8, v8, v7, vcc")
        a(f"v_mov_b32 v7, s{P_WQ+1}")
        a(f"v_cndmask_b32 v9, v9, v7, vcc")
        for d, s_ in ((1, 32), (2, 33), (3, 8), (4, 9)):
            a(f"v_cndmask_b32 v{d}, v{d}, v{s_}, s[{S_UP}:{S_UP+1}]")
        a(f"s_add_u32 s{T0}, s{S_WQ}, 3")
        a(f"v_mul_lo_u32 v5, v2, s{T0}")
        a(f"v_add_u32 v1, v1, v5")
        a(f"v_add_co_u32 v6, vcc, v3, v1")
        a(f"s_cmp_eq_u32 s{S_WQ}, 3")
        a(f"s_cselect_b32 s{T0}, 3, 4")
        a(f"v_addc_co_u32 v7, vcc, 0, v4, vcc")
        a(f"global_load_dword v246, v[6:7], off")
        a(f"v_mul_lo_u32 v2, v2, s{T0}")
        a(f"v_add_co_u32 v8, vcc, v6, v2")
        a(f"s_nop 1")
        a(f"v_addc_co_u32 v9, vcc, 0, v7, vcc")
        a(f"global_load_dword v247, v[8:9], off")
    NT_ = 2 if "T" in ABL else PGT
    def bg_H(full=True, late=False):
        d = {i: [] for i in range(10)}
        d[0].append([f"s_waitcnt vmcnt({NT_})"])
        st = ["v_mov_b32 v8, 0", "v_mov_b32 v9, 0"]
        for j in range(10):
            st += [f"v_lshlrev_b32 v4, 16, v{192+j}", f"v_and_b32 v5, 0xffff0000, v{192+j}", "v_add_f32 v8, v8, v4", "v_fmac_f32 v9, v4, v4",
                   "v_add_f32 v8, v8, v5", "v_fmac_f32 v9, v5, v5"]
        for rr in (8, 4, 2, 1):
            st += ["s_nop 0", f"v_add_f32_dpp v8, v8, v8 row_ror:{rr} row_mask:0xf bank_mask:0xf", f"v_add_f32_dpp v9, v9, v9 row_ror:{rr} row_mask:0xf bank_mask:0xf"]
        st += ["v_mov_b32 v4, v8", "v_mov_b32 v5, v9", "s_nop 1", "v_permlane16_swap_b32 v4, v8", "v_permlane16_swap_b32 v5, v9", "s_nop 1",
               "v_add_f32 v4, v4, v8", "v_add_f32 v5, v5, v9", f"v_mul_f32 v4, {f32bits(-1.0/640)}, v4", f"v_mul_f32 v5, {f32bits(1.0/640)}, v5",
               "v_fma_f32 v5, -v4, v4, v5", "v_max_f32 v5, 0, v5", "v_cvt_pk_bf16_f32 v5, v5, v5", "v_lshlrev_b32 v5, 16, v5",
               f"v_add_f32 v5, {f32bits(1e-5)}, v5", "v_cvt_pk_bf16_f32 v5, v5, v5", "v_lshlrev_b32 v5, 16, v5", "v_sqrt_f32 v5, v5", "s_nop 0",
               "v_cvt_pk_bf16_f32 v202, v4, v5"]
        h = len(st)//2
        d[0] += one(st[:24]); d[1] += one(st[24:])
        d[0].insert(1, ["v_add_u32 v203, 1, v203"]); d[0].insert(2, ["v_or_b32 v203, 0x80000000, v203"])
        d[0].insert(3, [f"v_mov_b32 v4, {FL_OFF + 128}", "ds_write_b32 v4, v203", f"v_readfirstlane_b32 s{S_NON}, v203"])
        d[1] += [["s_mov_b32 exec_lo, 1", "s_mov_b32 exec_hi, 1", f"s_mov_b32 s{T0}, {STF_OFF}",
                  f"buffer_store_dwordx2 v[202:203], v255, s[{SWS}:{SWS+3}], s{T0} offen sc1", "s_mov_b64 exec, -1"]]
        o = [f"s_lshl_b32 s{T0}, s{S_TB}, 5", f"s_lshl_b32 s{T1}, s{S_G}, 2", f"s_add_u32 s{T0}, s{T0}, s{T1}", f"s_add_u32 s{T0}, s{T0}, s{S_WQ}",
             f"s_lshl_b32 s{T0}, s{T0}, 2", f"s_add_u32 s{S_OFL}, s{T0}, {OFL_OFF}",
             f"s_and_b32 s{S_K2}, s{S_WQ}, 2", f"s_mul_i32 s{S_KV}, s{S_K2}, {16*KVS}", f"s_add_u32 s{S_KV}, s{S_KV}, {KVF_OFF}",
             f"s_lshl_b32 s{S_H0}, s{S_G}, 3", f"s_and_b32 s{T0}, s{S_WQ}, 1", f"s_lshl_b32 s{T0}, s{T0}, 2", f"s_add_u32 s{S_H0}, s{S_H0}, s{T0}",
             f"v_lshlrev_b32 v7, 4, v{VT}", f"v_mov_b32 v8, 0x80000000"]
        for q in range(4):
            o += [f"s_xor_b32 s{T0}, s{S_K2}, {q}", f"s_add_u32 s{T0}, s{T0}, s{S_H0}", f"s_mul_i32 s{T0}, s{T0}, 5"]
            for j, dst in enumerate((Q1(q), Q1(q)+2, Q2(q))):
                o += [f"v_add_u32 v4, s{T0}, v{VH}"]
                if j: o += [f"v_add_u32 v4, {2*j}, v4"]
                o += [f"v_lshrrev_b32 v5, 2, v4", f"v_lshl_add_u32 v5, v5, 10, v7", f"v_and_b32 v6, 1, v4", f"v_lshl_add_u32 v5, v6, 9, v5",
                      f"v_and_b32 v6, 2, v4", f"v_lshl_add_u32 v{dst}, v6, 2, v5"]
                if j == 2: o += [f"v_cndmask_b32 v{dst}, v{dst}, v8, s[{S_UP}:{S_UP+1}]"]
        o += [f"s_lshl_b32 s{T0}, s{S_WQ}, 13", f"s_add_u32 s{T0}, s{T0}, {CB_OFF}", f"s_xor_b32 s{T1}, s{S_WQ}, 2", f"s_lshl_b32 s{T1}, s{T1}, 13",
              f"s_add_u32 s{T1}, s{T1}, {CB_OFF}", f"v_add_u32 v{VCW}, s{T0}, v{VL16}", f"v_add_u32 v{VCR}, s{T1}, v{VL16}",
              ]
        n3 = (len(o) + 2)//3
        if late: return one(o[13:])
        if full: d[5] += one(o[:n3]); d[6] += one(o[n3:2*n3]); d[7] += one(o[2*n3:])
        else: d[5] += one(o[:13])
        d[6].insert(0, [f"s_add_u32 s{T1}, s{S_H0}, s{S_K2}", f"s_mul_i32 s{T1}, s{T1}, 5", f"s_mul_i32 s{S_OO}, s{S_TB}, 160", f"s_add_u32 s{S_OO}, s{S_OO}, s{T1}",
                        f"s_lshl_b32 s{S_OO}, s{S_OO}, 8", f"s_add_u32 s{S_OO}, s{S_OO}, {OF_OFF}"] + [f"v_mov_b32 v{r}, -1" for r in range(204, 208)] +
                       [f"buffer_store_dwordx4 v[204:207], v{VL16}, s[{SWS}:{SWS+3}], s{S_OO} offen sc1",
                        f"buffer_store_dwordx4 v[204:207], v{VL16}, s[{SWS}:{SWS+3}], s{S_OO} offen offset:1024 sc1",
                        f"buffer_store_dwordx4 v[204:207], v{VL16}, s[{SWS}:{SWS+3}], s{S_OO} offen offset:1536 sc1"])
        d[2] += bg_common()
        return d

    def p1_phase(tag, nA, nB, ND, dma, reads, FA, FB, ACC, addr_regs, early):
        nR = 2*nA + nB
        nm = nA*nB
        dw = [(aa, i) for aa in range(nA) for i in range(4)]
        hd = len(dw)//2; qd = hd//2
        def cs_ops(p, lst):
            o = []
            for aa, i in lst:
                o += [f"v_lshlrev_b32 v2, 16, v{FA(p,aa)+i}", f"v_and_b32 v3, 0xffff0000, v{FA(p,aa)+i}",
                      f"v_add_f32 v{CSA+2*aa}, v{CSA+2*aa}, v2", f"v_add_f32 v{CSA+2*aa+1}, v{CSA+2*aa+1}, v3"]
            return o
        def group(p, rd_sg, extra=(), dma_ch=(), bg=(), first=False, skip=False):
            extra = list(extra); bg = list(bg)
            rd = reads(rd_sg) if (rd_sg is not None and "r" not in ABL) else []
            per = (len(extra) + nm - 1)//nm
            bper = (len(bg) + nm - 1)//nm
            rper = (len(rd) + 1)//2
            dch = list(dma_ch)
            k = 0
            for aa in range(nA):
                for b in range(nB):
                    if "m" not in ABL and not skip:
                        a(f"v_mfma_f32_32x32x16_bf16 {vr(ACC(aa,b),16)}, {vr(FA(p,aa),4)}, {vr(FB(p,b),4)}, {'0' if first else vr(ACC(aa,b),16)}")
                    for e in rd[rper*k:rper*(k+1)]: a(e)
                    ndc = (len(dch) + (nm - k) - 1)//(nm - k)
                    emit(dch[:ndc]); dch = dch[ndc:]
                    for e in extra[per*k:per*(k+1)]: a(e)
                    emit(bg[bper*k:bper*(k+1)])
                    k += 1
        def upd(sg, st):
            sreg = S_I if st % 3 == 2 else S_DL
            return [f"v_add_u32 v{r}, s{sreg}, v{r}" for r in addr_regs(sg)] if st < 9 else []
        def run(role):
            bgd = bg_H(early) if role == "H" else {i: [] for i in range(10)}
            if role == "L":
                o = bg_common() + (bg_L() if early else []); n = (len(o) + 4)//5
                for i in range(5): bgd[1+i] = o[n*i:n*(i+1)]
            for it in range(10):
                if role == "L":
                    if it == 0: emit(dma(1))
                    a(f"s_waitcnt vmcnt({ND if it < 9 else 0})")
                if SP and it == 0: stamp(a, 3)
                a("s_barrier")
                if SP and it == 0: stamp(a, 4)
                if "I" in ABL:
                    a(f"v_writelane_b32 v241, s12, {it}"); a("s_memtime s[12:13]")
                pre = []
                if role == "H":
                    if it == 4:
                        pre = [[f"v_xor_b32 v{VFR}, 8, v{VFL}"]]
                    if it == 8:
                        a("s_waitcnt vmcnt(0)")
                        a("s_mov_b64 exec, 1")
                        a(f"buffer_store_dword v203, v242, s[{SWS}:{SWS+3}], s{S_OFL} offen sc1")
                        a("s_mov_b64 exec, -1")
                    if it == 8 or it == 9:
                        Lx = lab("hk")
                        a(f"s_cmp_lg_u32 s{S_W}, 4")
                        a(f"s_cbranch_scc1 {Lx}")
                        if it == 8:
                            a(f"s_lshl_b32 s{T0}, s{S_TOK}, 3")
                            a(f"s_add_u32 s{S_O2}, s{T0}, {STF_OFF}")
                            a(f"buffer_load_dwordx4 v[160:163], v{VL16}, s[{SWS}:{SWS+3}], s{S_O2} offen sc1")
                            a(f"buffer_load_dwordx4 v[164:167], v{VL16}, s[{SWS}:{SWS+3}], s{S_O2} offen offset:{1024 if nB == 2 else 0} sc1")
                        if it == 9:
                            a(f"s_call_b64 s[{T4}:{T5}], L_stats")
                            if early: mbx_load(0)
                        a(f"{Lx}:")
                elif it == 9:
                    a(f"v_mov_b32 v4, {FL_OFF + 128}"); a("ds_read_b32 v5, v4")
                    pre = [[f"v_readfirstlane_b32 s{S_NON}, v5"]]
                xl = 1 if ((role == "H" and it == 3) or (role == "L" and it == 9)) else 0
                ch = dma(it + 2) if (role == "L" and it < 8 and "g" not in ABL) else []
                q = (len(ch) + 3)//4
                bg = bgd[it]; bq = (len(bg) + 3)//4
                if it == 0: bq = (len(bg) + 1)//2; b0, b1, b2, b3 = [], [], bg[:bq], bg[bq:]
                else: b0, b1, b2, b3 = bg[:bq], bg[bq:2*bq], bg[2*bq:3*bq], bg[3*bq:]
                group(2, 0, extra=(upd(3, it-1) + cs_ops(2, dw[hd:hd+qd])) if it else [], dma_ch=ch[0:q], bg=b0, skip=(it == 0))
                group(3, 1, extra=upd(0, it) + (cs_ops(2, dw[hd+qd:]) if it else []), dma_ch=ch[q:2*q], bg=b1, skip=(it == 0))
                a(f"s_waitcnt lgkmcnt({nR})")
                group(0, 2, extra=upd(1, it) + cs_ops(0, dw[:qd]), dma_ch=ch[2*q:3*q], bg=pre + b2, first=(it == 0))
                a(f"s_waitcnt lgkmcnt({nR})")
                group(1, 3, extra=upd(2, it) + cs_ops(0, dw[qd:hd]), dma_ch=ch[3*q:], bg=b3)
                a("s_waitcnt lgkmcnt(0)")
        if not SP: stamp(a, 1)
        a(f"s_cmp_lg_u32 s{S_ISH}, 0")
        a(f"s_cbranch_scc1 L_{tag}_h")
        run("L")
        a(f"s_branch L_{tag}_fin")
        a(f"L_{tag}_h:")
        if "T" in ABL: touches()
        a(f"v_lshlrev_b32 v1, 2, v{VT}")
        a(f"v_add_u32 v1, {FL_OFF}, v1")
        a(f"ds_write_b32 v1, v242")
        run("H")
        a(f"L_{tag}_fin:")
        group(2, None, extra=cs_ops(2, dw[hd:]))
        group(3, None)
        if not SP: stamp(a, 2)
        if "I" in ABL:
            a(f"v_writelane_b32 v241, s12, 10")
            a("s_waitcnt lgkmcnt(0)")
            a(f"v_writelane_b32 v241, s4, 0")
            a(f"v_writelane_b32 v241, s8, 11")
            a(f"s_lshl_b32 s{T0}, s2, 3"); a(f"s_add_u32 s{T0}, s{T0}, s3"); a(f"s_lshl_b32 s{T0}, s{T0}, 8"); a(f"s_add_u32 s{T0}, s{T0}, 0x1000000")
            a(f"v_lshlrev_b32 v2, 2, v{VL}")
            a(f"buffer_store_dword v241, v2, s[{SWS}:{SWS+3}], s{T0} offen")
        if "X" in ABL: endpgm(a, 0)
        a(f"s_mul_i32 s{T2}, s{S_MH}, {nA}")
        a(f"s_lshl_b32 s{T0}, s{T2}, 10")
        a(f"s_add_u32 s{T0}, s{T0}, {CS_OFF}")
        a(f"v_add_u32 v1, s{T0}, v{VL16}")
        a(f"s_lshl_b32 s{T1}, s{S_ROT}, 2")
        a(f"v_add_u32 v9, s{T1}, v1")
        for aa in range(nA):
            a(f"v_add_f32 v{2+aa}, v{CSA+2*aa}, v{CSA+2*aa+1}")
        for aa in range(nA):
            a(f"v_cvt_pk_bf16_f32 v{5+aa}, v{2+aa}, v{2+aa}")
        for aa in range(nA):
            a(f"v_lshlrev_b32 v{5+aa}, 16, v{5+aa}")
        for aa in range(nA):
            a(f"v_sub_f32 v{5+aa}, v{2+aa}, v{5+aa}")
        for aa in range(nA):
            a(f"v_cvt_pk_bf16_f32 v{5+aa}, v{2+aa}, v{5+aa}")
            a(f"ds_write_b32 v9, v{5+aa} offset:{1024*aa}")
        if early:
            Lx = lab("nost")
            a(f"s_cmp_lg_u32 s{S_W}, 4")
            a(f"s_cbranch_scc1 {Lx}")
            a("s_waitcnt vmcnt(0)")
            mbx_test()
            a(f"s_cbranch_scc0 {Lx}")
            lds_set(16)
            a(f"{Lx}:")
        a(f"s_lshl_b32 s{T1}, s{S_ROT}, {8 + (nB-1)}")
        a(f"s_add_u32 s{T1}, s{T1}, {ST_OFF}")
        a(f"v_lshl_add_u32 v5, v{VT}, 3, s{T1}")
        a(f"v_mov_b32 v6, {FL_OFF + 64}")
        a("s_waitcnt lgkmcnt(0)")
        a("s_barrier")
        for b in range(nB):
            a(f"ds_read_b64 {vr(160+4*b,2)}, v5 offset:{256*b}")
        for aa in range(nA):
            a(f"ds_read_b128 {vr(10+4*aa,4)}, v1 offset:{1024*aa}")
        if early:
            a("ds_read_b32 v4, v6")
        a(f"s_cmp_eq_u32 s{S_ISH}, 0")
        a(f"s_cbranch_scc1 L_{tag}_np")
        a("s_setprio 2")
        a(f"L_{tag}_np:")
        a(f"s_waitcnt lgkmcnt({nA + (1 if early else 0)})")
        for b in range(nB):
            a(f"v_mov_b32 v{26+b}, v{161+4*b}")
            for j in (1, 2, 3):
                a(f"v_mov_b32 v{160+4*b+j}, v{160+4*b}")
        a("s_waitcnt lgkmcnt(0)")
        a("s_nop 0")
        for b in range(nB):
            for aa in range(nA):
                a(f"v_mfma_f32_32x32x16_bf16 {vr(ACC(aa,b),16)}, {vr(10+4*aa,4)}, {vr(160+4*b,4)}, {vr(ACC(aa,b),16)}")

    FA = lambda p, aa: FBASE[p] + 4*aa
    FB = lambda p, b: FBASE[p] + 8 + 4*b
    ACC = lambda aa, b: 64 + 16*(2*aa + b)
    def reads_gu(sg):
        o = []
        for aa in range(2):
            for n in range(2):
                o.append(f"ds_read_b64_tr_b16 {vr(FA(sg,aa)+2*n,2)}, v{VAg(sg,aa)} offset:{512*n}")
            o.append(f"ds_read_b128 {vr(FB(sg,aa),4)}, v{VB(sg)} offset:{4096*aa}")
        return o
    p1_phase("gu", 2, 2, 12, dma_gu, reads_gu, FA, FB, ACC, lambda sg: [VAg(sg,0), VAg(sg,1), VB(sg)], True)
    a(f"v_readfirstlane_b32 s{S_EARLY}, v4")
    a(f"v_mul_f32 v26, v26, v26")
    a(f"v_mul_f32 v28, v27, v27")
    a(f"s_and_b32 s{S_EARLY}, s{S_EARLY}, s{S_ISH}")
    a(f"s_cmp_eq_u32 s{S_EARLY}, 1")
    a(f"s_cbranch_scc0 L_gu_ne")
    a(f"s_call_b64 s[{T4}:{T5}], L_attn_loads")
    a("L_gu_ne:")
    a(f"s_lshr_b32 s{T0}, s{S_TOK}, 5")
    a(f"s_lshl_b32 s{T1}, s{S_ROT}, 1")
    a(f"s_add_u32 s{T0}, s{T0}, s{T1}")
    a(f"s_mul_i32 s{T0}, s{T0}, 96")
    a(f"s_lshl_b32 s{T1}, s{S_COL}, 2")
    a(f"s_add_u32 s{T0}, s{T0}, s{T1}")
    a(f"s_add_u32 s{T0}, s{T0}, s{T2}")
    a(f"s_lshl_b32 s{T0}, s{T0}, 10")
    a(f"s_add_u32 s{T0}, s{T0}, {HF_OFF}")
    a(f"s_add_u32 s{T1}, s{T0}, {96*1024}")
    a(f"s_mov_b64 s[88:89], s[{T0}:{T1}]")
    a("s_nop 0")
    for b in range(2):
        for aa in range(2):
            A = ACC(aa, b)
            for j in range(0, 8, 2):
                a(f"v_pk_mul_f32 {vr(A+j,2)}, {vr(A+j,2)}, {vr(26+2*b,2)} op_sel_hi:[1,0]")
            for j in range(0, 8, 2):
                a(f"v_pk_mul_f32 {vr(A+j,2)}, {vr(A+j,2)}, {vr(A+8+j,2)}")
            for q in range(4):
                a(f"v_cvt_pk_bf16_f32 v{A+q}, v{A+2*q}, v{A+2*q+1}")
            if not LATEH: a(f"buffer_store_dwordx4 {vr(A,4)}, v{VL16}, s[{SWS}:{SWS+3}], s{T0 if b == 0 else T1} offen offset:{1024*aa} sc1")
    a("s_branch L_p2")

    a("L_stats:")
    a(f"s_mov_b32 s{T1}, 0")
    a("L_stats_l:")
    a("s_waitcnt vmcnt(0)")
    a(f"v_xor_b32 v4, s{S_NON}, v161")
    a(f"v_xor_b32 v5, s{S_NON}, v163")
    a(f"v_xor_b32 v6, s{S_NON}, v165")
    a(f"v_xor_b32 v7, s{S_NON}, v167")
    a("v_or3_b32 v4, v4, v5, v6")
    a("v_or_b32 v4, v4, v7")
    a("v_cmp_ne_u32 vcc, 0, v4")
    a(f"s_add_u32 s{T1}, s{T1}, 1")
    a("s_cmp_eq_u64 vcc, 0")
    a("s_cbranch_scc1 L_stats_d")
    a("s_sleep 8")
    a(f"s_cmp_lt_u32 s{S_IDX}, 24")
    a(f"s_cselect_b32 s{T0}, 1024, 0")
    a(f"s_add_u32 s{T0}, s{T0}, s{S_O2}")
    a(f"buffer_load_dwordx4 v[160:163], v{VL16}, s[{SWS}:{SWS+3}], s{S_O2} offen sc1")
    a(f"buffer_load_dwordx4 v[164:167], v{VL16}, s[{SWS}:{SWS+3}], s{T0} offen sc1")
    a(f"s_cmp_lt_u32 s{T1}, {SPIN_MAX}")
    a("s_cbranch_scc1 L_stats_l")
    a("L_stats_d:")
    a(f"s_mov_b32 s{T0}, 0x01000100")
    for r in (160, 162, 164, 166):
        a(f"v_and_b32 v{r+1}, 0xffff0000, v{r}")
        a(f"v_rcp_f32 v{r+1}, v{r+1}")
        a(f"v_perm_b32 v{r}, v{r}, v{r}, s{T0}")
    a(f"v_add_u32 v4, {ST_OFF}, v{VL16}")
    a(f"ds_write_b128 v4, v[160:163]")
    a(f"ds_write_b128 v4, v[164:167] offset:1024")
    a(f"s_setpc_b64 s[{T4}:{T5}]")

    a("L_q_rd:")
    VAq = lambda sg, par: 10 + 2*sg + par
    a(f"v_lshlrev_b32 v2, 7, v2")
    a(f"v_lshl_add_u32 v2, v3, 5, v2")
    a(f"v_and_b32 v3, 3, v{VL}")
    a(f"v_lshl_add_u32 v2, v3, 3, v2")
    a(f"v_and_b32 v1, 2, v1")
    a(f"v_lshl_add_u32 v2, v1, 5, v2")
    a(f"s_lshl_b32 s{T0}, s{S_MH}, 6")
    a(f"v_xor_b32 v2, s{T0}, v2")
    a(f"s_lshl_b32 s{T0}, s{S_MH}, 13")
    a(f"s_add_u32 s{T2}, s{T0}, 16384")
    for sg in range(4):
        a(f"s_xor_b32 s{T1}, s{S_ROT}, {sg}")
        a(f"s_lshl_b32 s{T1}, s{T1}, 11")
        a(f"s_add_u32 s{T1}, s{T1}, s{T2}")
        a(f"v_add_u32 v{VAq(sg,0)}, s{T1}, v2")
        a(f"v_xor_b32 v{VAq(sg,1)}, 64, v{VAq(sg,0)}")
        a(f"v_add_u32 v{VAq(sg,1)}, s{T0}, v{VAq(sg,1)}")
    FA = lambda p, aa: FBASE[p] + 4*aa
    FB = lambda p, b: FBASE[p] + 12
    ACC = lambda aa, b: 64 + 16*aa
    def reads_q(sg):
        o = [f"ds_read_b128 {vr(FB(sg,0),4)}, v{VB(sg)}"]
        for aa in range(3):
            for n in range(2):
                o.append(f"ds_read_b64_tr_b16 {vr(FA(sg,aa)+2*n,2)}, v{VAq(sg, aa & 1)} offset:{8192*(aa >> 1)+512*n}")
        return o
    p1_phase("q", 3, 1, 10, dma_q, reads_q, FA, FB, ACC, lambda sg: [VAq(sg,0), VAq(sg,1), VB(sg)], False)
    a(f"s_lshr_b32 s{T0}, s{S_TOK}, 5")
    a(f"s_add_u32 s{T0}, s{T0}, s{S_ROT}")
    a(f"s_mul_i32 s{T1}, s{T0}, {KVS}")
    a(f"s_add_u32 s{T1}, s{T1}, {KVF_OFF}")
    a(f"s_mul_i32 s{T0}, s{T0}, 40960")
    a(f"s_mul_i32 s{T3}, s{S_COL}, 6")
    a(f"s_add_u32 s{T2}, s{T2}, s{T3}")
    a(f"s_lshl_b32 s{T3}, s{T2}, 11")
    a(f"s_add_u32 s{T0}, s{T0}, s{T3}")
    a(f"v_mul_f32 v28, {f32bits(QSCALE)}, v26")
    a("s_nop 1")
    for aa in range(3):
        A = ACC(aa, 0)
        Lk, Ld = lab("kv"), lab("sd")
        a(f"s_cmp_lt_u32 s{T2}, {20-aa}")
        a(f"s_cbranch_scc0 {Lk}")
        for j in range(0, 16, 2):
            a(f"v_pk_mul_f32 {vr(A+j,2)}, {vr(A+j,2)}, v[28:29] op_sel_hi:[1,0]")
        for q in range(8):
            a(f"v_cvt_pk_bf16_f32 v{A+q}, v{A+2*q}, v{A+2*q+1}")
        for i in range(2):
            a(f"buffer_store_dwordx4 {vr(A+4*i,4)}, v{VL16}, s[{SWS}:{SWS+3}], s{T0} offen offset:{(2048*aa+1024*i) & 4095} sc1")
        if aa == 1:
            a(f"s_add_u32 s{T0}, s{T0}, 4096")
        a(f"s_branch {Ld}")
        a(f"{Lk}:")
        if aa == 2:
            a(f"s_cmp_eq_u32 s{T2}, 18")
            a(f"s_cbranch_scc0 {Ld}")
            for j in range(0, 12, 2):
                a(f"v_pk_mul_f32 {vr(A+j,2)}, {vr(A+j,2)}, v[26:27] op_sel_hi:[1,0]")
            for q in range(6):
                a(f"v_cvt_pk_bf16_f32 v{A+q}, v{A+2*q}, v{A+2*q+1}")
            a(f"buffer_store_dwordx4 {vr(A,4)}, v{VL16}, s[{SWS}:{SWS+3}], s{T1} offen sc1")
            a(f"buffer_store_dwordx2 {vr(A+4,2)}, v{VL8}, s[{SWS}:{SWS+3}], s{T1} offen offset:1024 sc1")
        elif aa == 0:
            for j in range(0, 12, 2):
                a(f"v_pk_mul_f32 {vr(A+j,2)}, {vr(A+j,2)}, v[26:27] op_sel_hi:[1,0]")
            a(f"s_mul_i32 s{T3}, s{S_ROT}, 2304")
            a(f"s_add_u32 s{T3}, s{T3}, {VT_OFF}")
            a(f"v_mul_u32_u24 v1, {4*72}, v{VH}")
            a(f"v_lshl_add_u32 v1, v{VT}, 1, v1")
            a(f"v_add_u32 v1, s{T3}, v1")
            a(f"v_mul_u32_u24 v2, 72, v{VT}")
            a(f"v_lshl_add_u32 v2, v{VH}, 3, v2")
            a(f"v_add_u32 v2, s{T3}, v2")
            a(f"v_cndmask_b32 v{A+8}, v{A+8}, 1.0, s[{S_UP}:{S_UP+1}]")
            for j in (9, 10, 11):
                a(f"v_cndmask_b32 v{A+j}, v{A+j}, 0, s[{S_UP}:{S_UP+1}]")
            for q in range(6):
                a(f"v_cvt_pk_bf16_f32 v{A+q}, v{A+2*q}, v{A+2*q+1}")
            for j in range(12):
                row = 8*(j >> 2) + (j & 3)
                op = "ds_write_b16_d16_hi" if j & 1 else "ds_write_b16"
                a(f"{op} v1, v{A+(j>>1)} offset:{row*72}")
            for f in range(2):
                a(f"ds_read2_b64 {vr(A+8+4*f,4)}, v2 offset0:{4*f} offset1:{4*f+2}")
            a("s_waitcnt lgkmcnt(0)")
            for f in range(2):
                a(f"buffer_store_dwordx4 {vr(A+8+4*f,4)}, v{VLV}, s[{SWS}:{SWS+3}], s{T1} offen offset:{1280+672*f} sc1")
        a(f"{Ld}:")

    a(f"s_cmp_lg_u32 s{S_ISH}, 0")
    a(f"s_cbranch_scc1 L_q_lh")
    emit(bg_L())
    a("s_branch L_q_lx")
    a("L_q_lh:")
    emit(bg_H(late=True))
    a("L_q_lx:")
    a("s_waitcnt vmcnt(0)")
    a("s_barrier")
    a(f"s_cmp_lg_u32 s{S_W}, 4")
    a(f"s_cbranch_scc1 L_p2")
    a(f"s_lshl_b32 s{T0}, s{S_TOK}, 2")
    a(f"s_lshl_b32 s{T1}, s{S_COL}, 7")
    a(f"s_add_u32 s{T0}, s{T0}, s{T1}")
    a(f"s_add_u32 s{T0}, s{T0}, {QFL_OFF}")
    a("s_mov_b64 exec, 1")
    a(f"v_mov_b32 v2, s{S_NON}")
    a(f"buffer_store_dword v2, v244, s[{SWS}:{SWS+3}], s{T0} offen sc1")
    a("s_mov_b64 exec, -1")
    def h_stores():
        Lx = lab("hs")
        a(f"s_cmp_ge_u32 s{S_IDX}, 24")
        a(f"s_cbranch_scc1 {Lx}")
        for b in range(2):
            for aa in range(2):
                a(f"buffer_store_dwordx4 {vr(64 + 16*(2*aa+b),4)}, v{VL16}, s[{SWS}:{SWS+3}], s{88+b} offen offset:{1024*aa} sc1")
        a(f"{Lx}:")
    a("L_p2:")
    if not SP: stamp(a, 3)
    a(f"v_mov_b32 v15, 1")
    a(f"v_mov_b32 v14, s{S_NON}")
    a(f"s_cmp_lg_u32 s{S_ISH}, 0")
    a(f"s_cbranch_scc1 L_attn")
    KQ = S_WQ
    S_OA, S_OB, S_M, S_IT = 78, 82, 80, 81
    VXR = 180
    ACC = lambda m: 64 + 16*m
    FA0 = 144
    FB = lambda s: 192 + 4*s
    make_srd(a, SA, P_WD, 1536*1280)
    make_srd(a, SB2, P_WS, WS_SIZE)
    make_srd(a, SC, P_OUT, 2048*1280)
    a(f"s_mul_i32 s{S_OA}, s{KQ}, {24*16*1280}")
    a(f"s_mul_i32 s{S_M}, s{KQ}, {RSZ}")
    a(f"s_mul_i32 s{S_OB}, s{S_TB}, 96")
    a(f"s_mul_i32 s{T0}, s{KQ}, 24")
    a(f"s_add_u32 s{S_OB}, s{S_OB}, s{T0}")
    a(f"s_lshl_b32 s{S_OB}, s{S_OB}, 10")
    a(f"s_add_u32 s{S_OB}, s{S_OB}, {HF_OFF}")
    S_RT = 83
    a(f"s_and_b32 s{S_RT}, s{S_TB}, 3")
    a(f"s_mul_i32 s{T0}, s{S_RT}, {6*16*1280}")
    a(f"s_add_u32 s{S_OA}, s{S_OA}, s{T0}")
    a(f"s_mul_i32 s{T0}, s{S_RT}, {6*1024}")
    a(f"s_add_u32 s{S_OB}, s{S_OB}, s{T0}")
    def dma_a(slot):
        a(f"s_add_u32 m0, s{S_M}, {slot*5120}")
        a(f"s_add_u32 s{T2}, s{S_M}, {slot*5120+4096}")
        for j in range(4):
            a(f"buffer_load_dwordx4 v{VD[j]}, s[{SA}:{SA+3}], s{S_OA} offen offset:{1024*j} lds")
        a(f"s_mov_b32 m0, s{T2}")
        a("s_nop 0")
        a(f"buffer_load_dwordx4 v{VD[4]}, s[{SA}:{SA+3}], s{S_OA} offen lds")
        a(f"s_add_u32 s{S_OA}, s{S_OA}, {16*1280}")
    def dma_a_list(slot):
        o = [[f"s_add_u32 m0, s{S_M}, {slot*5120}", f"s_add_u32 s{T2}, s{S_M}, {slot*5120+4096}",
              f"buffer_load_dwordx4 v{VD[0]}, s[{SA}:{SA+3}], s{S_OA} offen lds"]]
        for j in range(1, 4):
            o.append([f"buffer_load_dwordx4 v{VD[j]}, s[{SA}:{SA+3}], s{S_OA} offen offset:{1024*j} lds"])
        o.append([f"s_mov_b32 m0, s{T2}", "s_nop 0", f"buffer_load_dwordx4 v{VD[4]}, s[{SA}:{SA+3}], s{S_OA} offen lds", f"s_add_u32 s{S_OA}, s{S_OA}, {16*1280}"])
        return o
    def load_b(reg):
        a(f"buffer_load_dwordx4 {vr(reg,4)}, v{VL16}, s[{SB2}:{SB2+3}], s{S_OB} offen sc1")
        a(f"s_add_u32 s{S_OB}, s{S_OB}, 1024")
    if LATEH:
        lds_wait(28, 4, sleep=2)
        h_stores()
        a("s_nop 1")
        for m in range(5):
            zero_mfma(ACC(m), VZ)
    a("s_waitcnt vmcnt(0)")
    a(f"ds_write_b32 v{VFL}, v15")
    if SB: stamp(a, 1)
    for s_ in range(PRE0):
        dma_a(s_)
    if not LATEH:
        for m in range(5):
            zero_mfma(ACC(m), VZ)
    a(f"s_cmp_lg_u32 s{S_W}, 0")
    a(f"s_cbranch_scc1 L_l_ring")
    a(f"s_cmp_ge_u32 s{S_IDX}, 24")
    a(f"s_cbranch_scc1 L_l_ring")
    lds_wait(0, 8, sleep=1)
    if SB: stamp(a, 2)
    a(f"s_lshl_b32 s{T0}, s{S_TOK}, 4")
    a(f"s_lshl_b32 s{T1}, s{S_COL}, 7")
    a(f"s_add_u32 s{T0}, s{T0}, s{T1}")
    a(f"s_add_u32 s{T0}, s{T0}, {HFL_OFF}")
    a("s_mov_b64 exec, 1")
    a(f"buffer_store_dword v14, v{VZ}, s[{SWS}:{SWS+3}], s{T0} offen sc1")
    a("s_mov_b64 exec, -1")
    a("L_l_ring:")
    if "G" in ABL: endpgm(a, 0)
    lds_wait(28, 4, sleep=2)
    for s in range(PRE0, RING):
        dma_a(s)
        if PACE > 1: a("s_waitcnt vmcnt(2)")
    for m in range(5):
        a(f"buffer_load_dwordx2 {vr(VXR+2*m,2)}, v{VXO}, s[{SX}:{SX+3}], 0 offen offset:{64*m}")
        if PACE > 1: a("s_waitcnt vmcnt(1)")
    a(f"s_cmp_lg_u32 s{S_W}, 0")
    a(f"s_cbranch_scc1 L_l_pub")
    mbx_wait(1, 10)
    lds_set(18)
    a("L_l_pub:")
    lds_wait(18, sleep=8)
    for s in range(RING):
        load_b(FB(s))
    a(f"s_mov_b32 s{S_IT}, 0")
    a("s_waitcnt vmcnt(0)")
    if not SP: stamp(a, 4)
    a(".p2align 6")
    a("L_gloop:")
    a(f"s_add_u32 s{S_RT}, s{S_RT}, 1")
    a(f"s_cmp_eq_u32 s{S_RT}, 4")
    a(f"s_cselect_b32 s{T0}, {24*16*1280}, 0")
    a(f"s_cselect_b32 s{T1}, {24*1024}, 0")
    a(f"s_sub_u32 s{S_OA}, s{S_OA}, s{T0}")
    a(f"s_sub_u32 s{S_OB}, s{S_OB}, s{T1}")
    a(f"s_cmp_lt_u32 s{S_IT}, 3")
    a(f"s_cbranch_scc1 L_gl1")
    a(f"s_mov_b64 s[{SA}:{SA+1}], s[{P_WO}:{P_WO+1}]")
    a(f"s_mov_b32 s{SA+2}, {640*1280}")
    a(f"s_mov_b32 s{SB2+2}, 0")
    a(f"s_mul_i32 s{S_OA}, s{KQ}, {160*1280}")
    a("L_gl1:")
    def rd_a(dst, slot, va, nrow):
        for m in range(5):
            for n in range(2):
                a(f"ds_read_b64_tr_b16 {vr(dst+4*m+2*n,2)}, v{va} offset:{slot*5120 + n*nrow + m*64}")
    def mm(fa, fb):
        for m in range(5):
            a(f"v_mfma_f32_32x32x16_bf16 {vr(ACC(m),16)}, {vr(fa+4*m,4)}, {vr(fb,4)}, {vr(ACC(m),16)}")
    for s in range(RING):
        a(f"s_waitcnt vmcnt({6*(RING-1)})")
        if "R" not in ABL: rd_a(FA0, s, VAR, 2560)
        a("s_waitcnt lgkmcnt(0)")
        if PACE:
            dl = dma_a_list(s)
            for m in range(5):
                a(f"v_mfma_f32_32x32x16_bf16 {vr(ACC(m),16)}, {vr(FA0+4*m,4)}, {vr(FB(s),4)}, {vr(ACC(m),16)}")
                emit([dl[m]])
            load_b(FB(s))
            continue
        if "D" not in ABL: dma_a(s)
        if "M" not in ABL: mm(FA0, FB(s))
        if "D" not in ABL: load_b(FB(s))
    a(f"s_add_u32 s{S_IT}, s{S_IT}, 1")
    a(f"s_cmp_lt_u32 s{S_IT}, 4")
    a(f"s_cbranch_scc1 L_gloop")
    PRE = [144, 2, 22, 42]
    OB = lambda k: 192 + 4*k
    a(f"s_mov_b32 s{SB2+2}, {WS_SIZE}")
    a(f"s_mul_i32 s{S_OB}, s{S_TB}, 40")
    a(f"s_mul_i32 s{T0}, s{KQ}, 10")
    a(f"s_add_u32 s{S_OB}, s{S_OB}, s{T0}")
    a(f"s_lshl_b32 s{S_OB}, s{S_OB}, 10")
    a(f"s_add_u32 s{S_OB}, s{S_OB}, {OF_OFF}")
    a(f"s_add_u32 s{T0}, s{S_OB}, 4096")
    a(f"s_add_u32 s{T1}, s{S_OB}, 8192")
    a("s_waitcnt vmcnt(12)")
    for k in range(4):
        rd_a(PRE[k], k, VAR2, 1280)
    a("s_waitcnt lgkmcnt(0)")
    for k in range(4):
        dma_a(k)
        if PACE > 1: a("s_waitcnt vmcnt(2)")
    for m in range(5):
        for q in range(2):
            a(f"v_lshlrev_b32 v{232+0}, 16, v{VXR+2*m+q}")
            a(f"v_and_b32 v{233}, 0xffff0000, v{VXR+2*m+q}")
            a(f"v_add_f32 v{ACC(m)+2*q}, v{ACC(m)+2*q}, v232")
            a(f"v_add_f32 v{ACC(m)+2*q+1}, v{ACC(m)+2*q+1}, v233")
    a(f"v_mov_b32 v232, {FL_OFF + 80}")
    a("L_ow:")
    a("ds_read_b128 v[236:239], v232")
    a("s_waitcnt lgkmcnt(0)")
    a(f"v_bitop3_b32 v236, v236, v237, v238 bitop3:{'0x80' if HINT == 2 else '0xfe'}")
    a(f"{'v_and_b32' if HINT == 2 else 'v_or_b32'} v236, v236, v239")
    a("s_nop 0")
    a(f"v_readfirstlane_b32 s{T4}, v236")
    a("s_nop 0")
    a(f"s_cmp_eq_u32 s{T4}, 1")
    a(f"s_cbranch_scc1 L_owd")
    a("s_sleep 4")
    a(f"s_branch L_ow")
    a("L_owd:")
    a(f"s_mov_b32 s{T5}, 0")
    def ld_o(k):
        a(f"buffer_load_dwordx4 {vr(OB(k),4)}, v{VL16}, s[{SB2}:{SB2+3}], s{[S_OB, T0, T1][k >> 2]} offen offset:{1024*(k & 3)} sc1")
    for k in range(10):
        ld_o(k)
    for k in range(10):
        a(f"s_waitcnt vmcnt({9-k})")
        a(f"L_oc{k}:")
        a(f"v_max3_u32 v232, v{OB(k)}, v{OB(k)+1}, v{OB(k)+2}")
        a(f"v_max_u32 v232, v232, v{OB(k)+3}")
        a(f"v_cmp_eq_u32 vcc, -1, v232")
        if k >= 4:
            a(f"s_waitcnt lgkmcnt({min(15, 10*min(3, 9-k))})")
        a("s_cmp_lg_u64 vcc, 0")
        a(f"s_cbranch_scc1 L_or{k}")
        a(f"L_og{k}:")
        if k == 0 and STAMPS and not SB and not SP: a("s_memtime s[6:7]")
        mm(PRE[k & 3], OB(k))
        if k + 4 < 10:
            kk = k + 4
            rd_a(PRE[k & 3], kk if kk < 6 else kk - 6, VAR2, 1280)
    if STAMPS and not SB and not SP: a("s_memtime s[8:9]")
    a(f"v_mov_b32 v15, 1")
    a(f"v_mov_b32 v12, {FL_OFF+48}")
    a("s_nop 5")
    for m in range(5):
        for i in range(1, 4):
            a(f"ds_write_b128 v{VRW}, {vr(ACC(m)+4*i,4)} offset:{((i-1)*5+m)*1024}")
    a("s_waitcnt lgkmcnt(0)")
    a(f"ds_write_b32 v{VFL}, v15 offset:48")
    a("L_gpoll:")
    a(f"ds_read_b128 v[4:7], v12")
    a("s_waitcnt lgkmcnt(0)")
    a("v_bitop3_b32 v4, v4, v5, v6 bitop3:0x80")
    a("v_and_b32 v4, v4, v7")
    a("s_nop 0")
    a(f"v_readfirstlane_b32 s{T0}, v4")
    a("s_nop 0")
    a(f"s_cmp_eq_u32 s{T0}, 1")
    a(f"s_cbranch_scc0 L_gpoll")
    for m in range(5):
        for i in range(1, 4):
            a(f"ds_read_b128 {vr(ACC(m)+4*i,4)}, v{VRD[i]} offset:{((i-1)*5+m)*1024}")
    for m in range(5):
        A = ACC(m)
        a(f"s_waitcnt lgkmcnt({12-3*m})")
        for h2 in range(2):
            a(f"v_pk_add_f32 {vr(A+2*h2,2)}, {vr(A+2*h2,2)}, {vr(A+4+2*h2,2)}")
            a(f"v_pk_add_f32 {vr(A+8+2*h2,2)}, {vr(A+8+2*h2,2)}, {vr(A+12+2*h2,2)}")
        for h2 in range(2):
            a(f"v_pk_add_f32 {vr(A+2*h2,2)}, {vr(A+2*h2,2)}, {vr(A+8+2*h2,2)}")
        a(f"v_cvt_pk_bf16_f32 v{A}, v{A}, v{A+1}")
        a(f"v_cvt_pk_bf16_f32 v{A+1}, v{A+2}, v{A+3}")
        a(f"buffer_store_dwordx2 {vr(A,2)}, v{VXO}, s[{SC}:{SC+3}], 0 offen offset:{64*m}")
    endpgm(a, 0)

    for k in range(10):
        a(f"L_or{k}:")
        a("s_waitcnt vmcnt(0)")
        if RSL: a(f"s_sleep {RSL}")
        for j in range(k, 10): ld_o(j)
        a(f"s_add_u32 s{T5}, s{T5}, 1")
        a(f"s_cmp_lt_u32 s{T5}, {SPIN_MAX}")
        a(f"s_waitcnt vmcnt({9-k})")
        a(f"s_cbranch_scc1 L_oc{k}")
        a(f"s_branch L_og{k}")

    S_IT = 78
    def load_kv(r):
        a(f"buffer_load_dwordx4 {vr(K1(r),4)}, v{VL16}, s[{SWS}:{SWS+3}], s{S_KV} offen sc1")
        a(f"buffer_load_dwordx2 {vr(K2(r),2)}, v{VL8}, s[{SWS}:{SWS+3}], s{S_KV} offen offset:1024 sc1")
        a(f"buffer_load_dwordx4 {vr(V1(r),4)}, v{VLV}, s[{SWS}:{SWS+3}], s{S_KV} offen offset:1280 sc1")
        a(f"buffer_load_dwordx4 {vr(V2(r),4)}, v{VLV}, s[{SWS}:{SWS+3}], s{S_KV} offen offset:1952 sc1")
        a(f"s_add_u32 s{S_KV}, s{S_KV}, {KVS}")
    a("L_attn_loads:")
    a(f"s_mul_i32 s{T0}, s{S_TB}, 40960")
    for d in (Q1(0), Q1(0)+2, Q2(0)):
        a(f"buffer_load_dwordx2 {vr(d,2)}, v{d}, s[{SWS}:{SWS+3}], s{T0} offen sc1")
    load_kv(0)
    for q in range(1, 4):
        for d in (Q1(q), Q1(q)+2, Q2(q)):
            a(f"buffer_load_dwordx2 {vr(d,2)}, v{d}, s[{SWS}:{SWS+3}], s{T0} offen sc1")
    for r in range(1, 3):
        load_kv(r)
    a(f"s_setpc_b64 s[{T4}:{T5}]")

    a("L_attn:")
    for q in range(4):
        zero_mfma(O(q), V2(3))
    a(f"s_cmp_eq_u32 s{S_EARLY}, 1")
    a(f"s_cbranch_scc1 L_attn_go")
    if not LATEH:
        a("s_waitcnt vmcnt(0)")
        a(f"ds_write_b32 v{VFL}, v15")
    if SB: stamp(a, 1)
    a(f"s_cmp_lg_u32 s{S_W}, 4")
    a(f"s_cbranch_scc1 L_attn_w")
    mbx_wait(0, 1)
    lds_set(17)
    a("L_attn_w:")
    lds_wait(17, sleep=1)
    if SB: stamp(a, 2)
    a(f"s_call_b64 s[{T4}:{T5}], L_attn_loads")
    a("L_attn_go:")
    if LATEH: h_stores()
    a(f"s_lshl_b32 s{T0}, s2, 3")
    a(f"s_add_u32 s{T0}, s{T0}, s{S_WQ}")
    a(f"s_cmp_lg_u32 s{T0}, 0")
    a(f"s_cbranch_scc1 L_attn_g2")
    a(f"s_mov_b32 s{T0}, {EPOCH_OFF}")
    a("v_mov_b32 v2, 0")
    a("s_mov_b64 exec, 1")
    a(f"buffer_store_dword v14, v2, s[{SWS}:{SWS+3}], s{T0} offen sc1")
    a("s_mov_b64 exec, -1")
    a("L_attn_g2:")
    for r in range(P1, P1+4):
        a(f"v_mov_b32 v{r}, 0")
    a(f"s_mov_b32 s{S_IT}, 0")
    a("s_waitcnt vmcnt(17)")
    a(f"ds_write_b32 v{VFL}, v15 offset:96")
    if not SP: stamp(a, 4)
    def qk1(buf, r, q): a(f"v_mfma_f32_32x32x16_bf16 {vr(S(buf),16)}, {vr(K1(r),4)}, {vr(Q1(q),4)}, 0")
    def qk2(buf, r, q): a(f"v_mfma_f32_32x32x8_bf16 {vr(S(buf),16)}, {vr(K2(r),2)}, {vr(Q2(q),2)}, {vr(S(buf),16)}")
    def pv(q, vreg, preg): a(f"v_mfma_f32_32x32x16_bf16 {vr(O(q),16)}, {vr(vreg,4)}, {vr(preg,4)}, {vr(O(q),16)}")
    def E(buf, i0):
        for i in range(i0, i0+4): a(f"v_exp_f32 v{S(buf)+i}, v{S(buf)+i}")
    def C(dst, buf, i): a(f"v_cvt_pk_bf16_f32 v{dst}, v{S(buf)+i}, v{S(buf)+i+1}")
    qk1(0, 0, 0); qk2(0, 0, 0)
    a("s_nop 10")
    a(".p2align 6")
    a("L_aloop:")
    for r in range(4):
        for q in range(4):
            buf = q & 1; nb = buf ^ 1
            nr, nq = (r, q+1) if q < 3 else ((r+1) & 3, 0)
            pr, pq = (r, q-1) if q > 0 else ((r-1) & 3, 3)
            if r == 0 and q < 3:
                a(f"s_waitcnt vmcnt({[14, 15, 12][q]})")
            if q == 3:
                a("s_waitcnt vmcnt(8)")
                if r == 1:
                    a(f"ds_write_b32 v{VFL}, v15")
            qk1(nb, nr, nq); E(buf, 0)
            pv(pq, V2(pr), P1); C(P0, buf, 0); C(P0+1, buf, 2)
            if q == 0:
                load_kv((r+3) & 3)
            E(buf, 4)
            qk2(nb, nr, nq); C(P0+2, buf, 4); C(P0+3, buf, 6); E(buf, 8)
            pv(q, V1(r), P0); C(P1, buf, 8); C(P1+1, buf, 10); E(buf, 12); C(P1+2, buf, 12); C(P1+3, buf, 14)
    a(f"s_add_u32 s{S_IT}, s{S_IT}, 1")
    a(f"s_cmp_lt_u32 s{S_IT}, 8")
    a(f"s_cbranch_scc1 L_aloop")
    if HINT == 0: a(f"ds_write_b32 v{VFL}, v15 offset:64")
    else: a("s_nop 0")
    pv(3, V2(3), P1)
    if STAMPS and not SB and not SP: a("s_memtime s[6:7]")
    for i in range(3):
        a(f"ds_write_b128 v{VCW}, {vr(O(2)+4*i,4)} offset:{1024*i}")
    a("s_nop 9")
    for i in range(3):
        a(f"ds_write_b128 v{VCW}, {vr(O(3)+4*i,4)} offset:{4096+1024*i}")
    a("s_waitcnt lgkmcnt(0)")
    a(f"ds_write_b32 v{VFL}, v15 offset:16")
    a("L_apoll:")
    a(f"ds_read_b32 v2, v{VFR} offset:16")
    a("s_waitcnt lgkmcnt(0)")
    a(f"v_readfirstlane_b32 s{T0}, v2")
    a("s_nop 0")
    a(f"s_cmp_eq_u32 s{T0}, 1")
    a(f"s_cbranch_scc0 L_apoll")
    for q in range(2):
        for i in range(3):
            a(f"ds_read_b128 {vr(O(2+q)+4*i,4)}, v{VCR} offset:{4096*q+1024*i}")
    for q in range(2):
        a(f"s_waitcnt lgkmcnt({3-3*q})")
        for j in range(0, 12, 2):
            a(f"v_pk_add_f32 {vr(O(q)+j,2)}, {vr(O(q)+j,2)}, {vr(O(2+q)+j,2)}")
    def get_l():
        for q in range(2):
            a(f"v_mov_b32 v{4+2*q}, v{O(q)+8}")
            a(f"v_mov_b32 v{5+2*q}, v{O(q)+8}")
        a("s_nop 0")
        for q in range(2):
            a(f"v_permlane32_swap_b32 v{5+2*q}, v{4+2*q}")
    get_l()
    a(f"v_mov_b32 v2, 0")
    a(f"v_mov_b32 v3, 0")
    a(f"v_mov_b32 v8, 0")
    for q in range(2):
        for j in range(0, 12, 2):
            a(f"v_pk_fma_f32 v[2:3], {vr(O(q)+j,2)}, v[8:9], v[2:3] op_sel_hi:[1,0,1]")
    a(f"v_min_f32 v10, v4, v6")
    a(f"v_max_f32 v11, v4, v6")
    a(f"v_fmac_f32 v2, 0, v4")
    a(f"v_fmac_f32 v3, 0, v6")
    a(f"v_cmp_le_f32 vcc, 0x1f800000, v10")
    a(f"s_mov_b64 s[{T0}:{T1}], vcc")
    a(f"v_cmp_ge_f32 vcc, 0x5f800000, v11")
    a(f"s_and_b64 s[{T0}:{T1}], s[{T0}:{T1}], vcc")
    a(f"v_cmp_o_f32 vcc, v2, v3")
    a(f"s_and_b64 s[{T0}:{T1}], s[{T0}:{T1}], vcc")
    a(f"s_cmp_eq_u64 s[{T0}:{T1}], exec")
    a("s_branch L_fb" if force_fallback else "s_cbranch_scc0 L_fb")
    a("L_norm:")
    for q in range(2):
        a(f"v_rcp_f32 v{4+2*q}, v{4+2*q}")
    a("s_nop 0")
    for q in range(2):
        for j in range(0, 12, 2):
            a(f"v_pk_mul_f32 {vr(O(q)+j,2)}, {vr(O(q)+j,2)}, {vr(4+2*q,2)} op_sel_hi:[1,0]")
    A_, B_ = O(0), O(1)
    def cvs(d, x):
        a(f"v_cvt_pk_bf16_f32 v{d}, v{x}, v{x+1}")
    for k in range(4): cvs(A_+k, A_+2*k)
    for k in range(4): a(f"v_min_u32 v{A_+k}, -2, v{A_+k}")
    for k in (4, 5): cvs(A_+k, A_+2*k)
    a(f"v_permlane32_swap_b32 v{A_}, v{A_+2}")
    a(f"v_permlane32_swap_b32 v{A_+1}, v{A_+3}")
    cvs(A_+6, B_); cvs(A_+7, B_+2)
    a(f"buffer_store_dwordx4 {vr(A_,4)}, v{VL16}, s[{SWS}:{SWS+3}], s{S_OO} offen sc1")
    cvs(B_, B_+4); cvs(B_+1, B_+6); cvs(B_+4, B_+8); cvs(B_+5, B_+10)
    for r in (A_+4, A_+5, A_+6, A_+7, B_, B_+1, B_+4, B_+5):
        a(f"v_min_u32 v{r}, -2, v{r}")
    a(f"v_cndmask_b32 v{A_+4}, v{A_+4}, v{A_+6}, s[{S_UP}:{S_UP+1}]")
    a(f"v_cndmask_b32 v{A_+5}, v{A_+5}, v{A_+7}, s[{S_UP}:{S_UP+1}]")
    a(f"v_permlane32_swap_b32 v{A_+6}, v{B_}")
    a(f"v_permlane32_swap_b32 v{A_+7}, v{B_+1}")
    a(f"v_permlane32_swap_b32 v{B_+2}, v{B_+4}")
    a(f"v_permlane32_swap_b32 v{B_+3}, v{B_+5}")
    a(f"buffer_store_dwordx4 {vr(A_+4,4)}, v{VL16}, s[{SWS}:{SWS+3}], s{S_OO} offen offset:1024 sc1")
    a("s_mov_b32 exec_lo, 0")
    a(f"buffer_store_dwordx4 {vr(B_,4)}, v{VL16}, s[{SWS}:{SWS+3}], s{S_OO} offen offset:1536 sc1")
    a("s_mov_b64 exec, -1")
    if HINT: a(f"ds_write_b32 v{VFL}, v15 offset:64")
    endpgm(a, 0)
    a("L_fb:")
    a("s_waitcnt vmcnt(0)")
    a(f"v_mov_b32 v4, 0xff800000")
    a(f"v_mov_b32 v5, 0xff800000")
    a(f"s_mov_b32 s{S_KV}, {KVF_OFF}")
    a(f"s_mov_b32 s{S_IT}, 0")
    a("L_fb1:")
    load_kv(0)
    a("s_waitcnt vmcnt(0)")
    for q in range(2):
        qk1(q, 0, q); qk2(q, 0, q)
    a("s_nop 15")
    for q in range(2):
        for j in range(0, 16, 2):
            a(f"v_max3_f32 v{4+q}, v{S(q)+j}, v{S(q)+j+1}, v{4+q}")
    a(f"s_add_u32 s{S_IT}, s{S_IT}, 1")
    a(f"s_cmp_lt_u32 s{S_IT}, 64")
    a(f"s_cbranch_scc1 L_fb1")
    for q in range(2):
        a(f"v_mov_b32 v6, v{4+q}")
        a("s_nop 1")
        a(f"v_permlane32_swap_b32 v6, v{4+q}")
        a("s_nop 1")
        a(f"v_max_f32 v6, v6, v{4+q}")
        a(f"v_sub_f32 v6, 0, v6")
        a(f"v_cvt_pk_bf16_f32 v7, v6, v6")
        a(f"v_lshlrev_b32 v7, 16, v7")
        a(f"v_sub_f32 v8, v6, v7")
        a(f"v_cvt_pk_bf16_f32 v7, v7, v8")
        a(f"v_cndmask_b32 v{Q2(q)}, v{Q2(q)}, v7, s[{S_UP}:{S_UP+1}]")
        for j in range(16):
            a(f"v_mov_b32 v{O(q)+j}, 0")
    a(f"s_mov_b32 s{S_KV}, {KVF_OFF}")
    a(f"s_mov_b32 s{S_IT}, 0")
    a("v_mov_b32 v9, 0x3f803f80")
    a("L_fb2:")
    load_kv(0)
    a("s_waitcnt vmcnt(0)")
    a(f"v_cndmask_b32 v{K2(0)}, v{K2(0)}, v9, s[{S_UP}:{S_UP+1}]")
    a("s_nop 1")
    for q in range(2):
        qk1(q, 0, q); qk2(q, 0, q)
    a("s_nop 15")
    for q in range(2):
        for i0 in range(0, 16, 4): E(q, i0)
        a("s_nop 0")
        for k in range(4): C(P0+k, q, 2*k)
        for k in range(4): C(P1+k, q, 8+2*k)
        a("s_nop 1")
        pv(q, V1(0), P0); pv(q, V2(0), P1)
    a(f"s_add_u32 s{S_IT}, s{S_IT}, 1")
    a(f"s_cmp_lt_u32 s{S_IT}, 64")
    a(f"s_cbranch_scc1 L_fb2")
    a("s_nop 15")
    get_l()
    a("s_nop 1")
    a("s_branch L_norm")
    a("L_end:")
    a("s_endpgm")
    return a, kernel_desc(name, 256)

def build(force_fallback=False):
    hdr = open("cdna_kernels/%s.s.ref" % NAME).read().split("\n")
    hdr = [l for l in hdr if l.startswith(";") and "@launch" not in l and "Override" not in l and "grid=ceil" not in l]
    body, desc = gen(NAME + "_kernel", force_fallback)
    out = "\n".join(hdr) + "\n"
    out += f"; @launch grid=(256,1,1) block=(512,1,1) lds={LDS_BYTES}\n"
    out += '.amdgcn_target "amdgcn-amd-amdhsa--gfx950"\n.text\n'
    out += body.text()
    out += '.section .rodata,"a"\n' + desc
    return out

if __name__ == "__main__":
    out = sys.argv[1] if len(sys.argv) > 1 else "cdna_kernels/%s.s" % NAME
    open(out, "w").write(build("fb" in sys.argv[2:]))
    print("wrote", out)
```

```python
NAME = "parallel_sum__grouped_kv_mqa__glu_gated_bilinear__prompt"

QF_OFF  = 0x000000
KVF_OFF = 0x280000
HF_OFF  = 0x300000
OF_OFF  = 0x900000
RF_OFF  = 0xC00000
WS_SIZE = 0x1100000

class Asm:
    def __init__(self):
        self.lines = []
    def __call__(self, s):
        for l in s.strip("\n").split("\n"):
            l = l.strip()
            if not l:
                continue
            if l.endswith(":"):
                self.lines.append(l)
            else:
                self.lines.append("    " + l)
    def raw(self, s):
        self.lines.append(s)
    def text(self):
        return "\n".join(self.lines) + "\n"

def vr(b, n=1):
    return f"v{b}" if n == 1 else f"v[{b}:{b+n-1}]"
def sr(b, n=1):
    return f"s{b}" if n == 1 else f"s[{b}:{b+n-1}]"

def kernel_begin(a, name):
    a.raw(f".globl {name}")
    a.raw(".p2align 8")
    a.raw(f".type {name},@function")
    a.raw(f"{name}:")

def kernel_desc(name, vgpr, sgpr=102, accum=None):
    accum = accum or ((vgpr + 3) // 4 * 4)
    return f""".p2align 6
.amdhsa_kernel {name}
  .amdhsa_next_free_vgpr {vgpr}
  .amdhsa_next_free_sgpr {sgpr}
  .amdhsa_accum_offset {accum}
  .amdhsa_group_segment_fixed_size 0
  .amdhsa_kernarg_size 96
  .amdhsa_user_sgpr_count 2
  .amdhsa_user_sgpr_kernarg_segment_ptr 1
  .amdhsa_system_sgpr_workgroup_id_x 1
.end_amdhsa_kernel
"""

P_X, P_WQ, P_WK, P_WV, P_WO, P_BX, P_WG, P_WU, P_WD, P_OUT, P_DBG, P_WS = [16 + 2*i for i in range(12)]

def load_kernargs(a):
    if DBGT: a("s_memrealtime s[94:95]"); a("s_memtime s[4:5]")
    stamp(a, 0); stamp_rt(a, 0)
    if STAMPS:
        for i in range(1, 5): a(f"s_mov_b64 s[{4+2*i}:{5+2*i}], 0")
    a("s_load_dwordx16 s[16:31], s[0:1], 0")
    a("s_load_dwordx8 s[32:39], s[0:1], 64")

def make_srd(a, d, ptr, size):
    a(f"s_mov_b32 s{d}, s{ptr}")
    a(f"s_mov_b32 s{d+1}, s{ptr+1}")
    a(f"s_mov_b32 s{d+2}, {size}" if not isinstance(size, str) else f"s_mov_b32 s{d+2}, {size}")
    a(f"s_mov_b32 s{d+3}, 0x00020000")

def f32bits(x):
    import struct
    return "0x%08x" % struct.unpack("<I", struct.pack("<f", x))[0]

import os
STAMPS = os.environ.get("STAMPS", "0") == "1"
STAMP_OFF = 0x1000000 + 0x80000
def stamp(a, i):
    if STAMPS:
        a(f"s_memtime s[{4+2*i}:{5+2*i}]")
def stamp_rt(a, i):
    if STAMPS:
        a(f"s_memrealtime s[{94+2*i}:{95+2*i}]")
DBGT = os.environ.get("DBGT", "0") == "1"
def endpgm(a, kidx):
    if DBGT:
        a("s_memrealtime s[96:97]"); a("s_memtime s[14:15]")
        a("s_waitcnt lgkmcnt(0)")
        a("s_sub_u32 s14, s14, s4")
        a("v_mov_b32 v2, s94"); a("v_mov_b32 v3, s96"); a("s_lshl_b32 s15, s2, 3"); a("v_mov_b32 v1, s15")
        a("s_or_b32 s15, s3, s2"); a("s_cmp_lt_u32 s2, 8"); a("s_cselect_b32 s15, s3, 1"); a("s_cmp_eq_u32 s15, 0"); a("s_cselect_b64 exec, 1, 0")
        a("s_mov_b32 s98, s36"); a("s_mov_b32 s99, s37"); a("s_mov_b32 s100, 64"); a("s_mov_b32 s101, 0x00020000")
        a("s_mov_b32 s96, s36"); a("s_mov_b32 s97, s37"); a("s_mov_b32 s98, 64"); a("s_mov_b32 s99, 0x00020000")
        a("buffer_store_dwordx2 v[2:3], v1, s[96:99], 0 offen")
    if STAMPS:
        stamp(a, 5); stamp_rt(a, 1)
        a("s_waitcnt lgkmcnt(0)")
        a("s_mov_b32 s98, s38"); a("s_mov_b32 s99, s39")
        a("s_wqm_b64 exec, exec")
        a(f"s_lshl_b32 s100, s2, 3")
        a(f"s_add_u32 s100, s100, s3")
        a(f"s_lshl_b32 s100, s100, 5")
        a(f"s_add_u32 s100, s100, {0x2000000 + kidx*0x10000}")
        a("s_add_u32 s98, s98, s100"); a("s_addc_u32 s99, s99, 0")
        for j, sreg in enumerate([4, 6, 8, 10, 12, 14, 94, 96]):
            a(f"v_mov_b32 v{2+j}, s{sreg}")
        a("v_mov_b32 v1, 0")
        a("global_store_dwordx4 v1, v[2:5], s[98:99]")
        a("global_store_dwordx4 v1, v[6:9], s[98:99] offset:16")
    a("s_endpgm")
```

```python
from common import *
import math, sys

STF_OFF = 0x2F0000
QFL_OFF, HFL_OFF = 0x2D0000, 0x2D4000
MBX_OFF = 0x2D0000
EPOCH_OFF = 0x2FF000
OFL_OFF = 0x2F8000
STG = 49408
RING = 6
RSZ = RING * 5120
CB_OFF = 4 * RSZ
CS_OFF = CB_OFF
ST_OFF = 3 * STG
VT_OFF = CB_OFF + 8192
FL_OFF = CB_OFF + 32768
LDS_BYTES = FL_OFF + 192
G_OFF, U_REL = 32768, 8256
KVS = 2688 if os.environ.get("KVC", "1") == "1" else 3584
QSCALE = math.log2(math.e) / math.sqrt(20.0)
SPIN_MAX = 1 << 18
ABL = os.environ.get("ABL", "")
SB = "B" in ABL
SP = "P" in ABL
PACE = int(os.environ.get("PACE", "2"))
PRE0 = int(os.environ.get("PRE0", "0"))
LATEH = int(os.environ.get("LATEH", "1"))
PGT = int(os.environ.get("PGT", "0"))
QF1 = int(os.environ.get("QF1", "1"))
PD = int(os.environ.get("PD", "6"))
A3 = int(os.environ.get("A3", "1"))
AUN = int(os.environ.get("AUN", "1"))
KVC = int(os.environ.get("KVC", "1"))
HINT = int(os.environ.get("HINT", "2"))
RSL = int(os.environ.get("RSL", "4"))

S_W = 3
SX, SWS, SDBG, SA, SB2, SC, SD = 40, 44, 48, 52, 56, 60, 88
S_TH, S_CG, S_IDX, S_WQ, S_ISH, S_TB, S_G, S_TOK = 64, 65, 66, 67, 68, 69, 70, 71
T0, T1, T2, T3, T4, T5 = 72, 73, 74, 75, 76, 77
S_I, S_DB, S_RB, S_OX, S_OW, S_O2, S_O3, S_ST2 = 78, 79, 80, 81, 82, 83, 84, 85
S_EARLY, S_COL = 86, 87
S_UP = 92
S_MBX, S_ROT, S_MH, S_DL = 99, 100, 101, 98
S_NON = 79
S_OO = 56
S_OFL, S_KV, S_H0, S_K2 = 52, 53, 54, 55
VL, VT, VH, VL16, VL8, VF, VFL = 250, 251, 252, 253, 254, 249, 248
VLV = 0
VZ = 244
FBASE = [32, 48, 128, 144]
CSA = 26

def gen(name, force_fallback=False):
    a = Asm()
    kernel_begin(a, name)
    uid = [0]
    def lab(s):
        uid[0] += 1
        return f"L{uid[0]}_{s}"
    def emit(ch):
        for c in ch:
            for l in c: a(l)
    def lds_set(idx):
        a(f"v_mov_b32 v2, {FL_OFF + 4*idx}")
        a(f"v_mov_b32 v3, 1")
        a(f"ds_write_b32 v2, v3")
    def lds_wait(idx, n=1, sleep=1):
        L = lab("lw")
        a(f"v_mov_b32 v2, {FL_OFF + 4*idx}")
        a(f"{L}:")
        if n == 1:
            a("ds_read_b32 v4, v2")
            a("s_waitcnt lgkmcnt(0)")
        else:
            a("ds_read_b128 v[4:7], v2")
            if n == 8: a("ds_read_b128 v[8:11], v2 offset:16")
            a("s_waitcnt lgkmcnt(0)")
            a("v_bitop3_b32 v4, v4, v5, v6 bitop3:0x80")
            if n == 8:
                a("v_bitop3_b32 v8, v8, v9, v10 bitop3:0x80")
                a("v_bitop3_b32 v4, v4, v8, v11 bitop3:0x80")
            a("v_and_b32 v4, v4, v7")
            a("s_nop 0")
        a(f"v_readfirstlane_b32 s{T4}, v4")
        a("s_nop 0")
        a(f"s_cmp_eq_u32 s{T4}, 1")
        a(f"s_cbranch_scc1 {L}_d")
        a(f"s_sleep {sleep}")
        a(f"s_branch {L}")
        a(f"{L}_d:")
    def mbx_load(line):
        if line == 0:
            a(f"s_lshr_b32 s{T1}, s{S_TB}, 2")
            a(f"s_lshl_b32 s{T1}, s{T1}, 9")
            a(f"v_and_b32 v2, 3, v{VL}")
            a(f"v_lshl_add_u32 v2, v2, 7, s{T1}")
            a(f"v_and_b32 v3, 15, v{VL}")
            a(f"v_lshlrev_b32 v3, 9, v3")
            a(f"v_add_u32 v3, 384, v3")
            a(f"s_mov_b32 s{T0}, {QFL_OFF}")
            a(f"v_cndmask_b32 v2, v3, v2, s[{S_UP}:{S_UP+1}]")
        else:
            a(f"s_and_b32 s{T0}, s2, 7")
            a(f"s_lshl_b32 s{T0}, s{T0}, 12")
            a(f"s_add_u32 s{T0}, s{T0}, {HFL_OFF}")
            a(f"s_lshl_b32 s{T1}, s{S_TB}, 7")
            a(f"s_add_u32 s{T1}, s{T1}, {OFL_OFF}")
            a(f"s_sub_u32 s{T1}, s{T1}, s{T0}")
            a(f"v_and_b32 v2, 15, v{VL}")
            a(f"v_lshl_add_u32 v2, v2, 2, s{T1}")
            a(f"v_min_u32 v3, 23, v{VL}")
            a(f"v_lshlrev_b32 v3, 7, v3")
            a(f"v_cndmask_b32 v2, v3, v2, s[{S_UP}:{S_UP+1}]")
        a(f"buffer_load_dword v{VF}, v2, s[{SWS}:{SWS+3}], s{T0} offen sc1")
    def mbx_test():
        a(f"v_cmp_ne_u32 vcc, s{S_NON}, v{VF}")
        a("s_cmp_eq_u64 vcc, 0")
    def mbx_wait(line, sleep):
        L, D = lab("spin"), lab("done")
        a(f"s_mov_b32 s{T5}, 0")
        mbx_load(line)
        a(f"{L}:")
        a(f"s_add_u32 s{T5}, s{T5}, 1")
        a("s_waitcnt vmcnt(0)")
        mbx_test()
        a(f"s_cbranch_scc1 {D}")
        a(f"s_sleep {sleep}")
        a(f"buffer_load_dword v{VF}, v2, s[{SWS}:{SWS+3}], s{T0} offen sc1")
        a(f"s_cmp_lt_u32 s{T5}, {SPIN_MAX}")
        a(f"s_cbranch_scc1 {L}")
        a(f"{D}:")
    def zero_mfma(dst, z):
        a(f"v_mfma_f32_32x32x16_bf16 {vr(dst,16)}, {vr(z,4)}, {vr(z,4)}, 0")

    O = lambda q: [32, 48, 128, 144][q]
    S = lambda p: 64 + 16*p
    P0, P1 = 96, 100
    Q1 = lambda q: 168 + 4*q
    Q2 = lambda q: 184 + 2*q
    KVB = lambda r: 192 + 14*r
    K1 = lambda r: KVB(r); V1 = lambda r: KVB(r)+4; V2 = lambda r: KVB(r)+8; K2 = lambda r: KVB(r)+12
    VCW, VCR, VCW4, VCR4, VFR = 22, 23, 24, 25, 255
    VD = [168, 169, 170, 171, 172]
    VAR, VAR2, VR0, VR1, VXO, VRW = 173, 174, 175, 176, 177, 178
    VX = [22, 23]; VW, VW2, VW3 = 24, 25, 190

    a("s_cmp_ge_u32 s2, 256")
    a("s_cbranch_scc1 L_end")
    load_kernargs(a)
    a(f"s_getpc_b64 s[{T0}:{T1}]")
    a("L_pc:")
    a(f"v_lshlrev_b32 v1, 7, v0")
    a(f"v_min_u32 v1, L_end-L_pc, v1")
    a(f"global_load_dword v{VF}, v1, s[{T0}:{T1}]")
    a("v_lshrrev_b32 v1, 6, v0")
    a(f"v_and_b32 v{VL}, 63, v0")
    a(f"v_readfirstlane_b32 s{S_W}, v1")
    a(f"s_and_b32 s{T0}, s2, 7")
    a(f"s_lshr_b32 s{S_IDX}, s2, 3")
    if QF1:
        a(f"s_add_u32 s{S_IDX}, s{S_IDX}, 24")
        a(f"s_and_b32 s{S_IDX}, s{S_IDX}, 31")
    a(f"s_and_b32 s{S_TH}, s{T0}, 1")
    a(f"s_lshr_b32 s{S_CG}, s{T0}, 1")
    a(f"s_and_b32 s{S_WQ}, s{S_W}, 3")
    a(f"s_lshr_b32 s{S_ISH}, s{S_W}, 2")
    a(f"s_lshl_b32 s{S_TOK}, s{S_TH}, 2")
    a(f"s_and_b32 s{T1}, s{S_IDX}, 3")
    a(f"s_add_u32 s{S_TOK}, s{S_TOK}, s{T1}")
    a(f"s_lshl_b32 s{S_TOK}, s{S_TOK}, 8")
    a(f"s_mul_i32 s{S_COL}, s{S_CG}, 6")
    a(f"s_lshr_b32 s{T1}, s{S_IDX}, 2")
    a(f"s_add_u32 s{S_COL}, s{S_COL}, s{T1}")
    a(f"s_lshl_b32 s{T1}, s{S_TH}, 3")
    a(f"s_add_u32 s{T1}, s{T1}, s{S_IDX}")
    a(f"s_sub_u32 s{T1}, s{T1}, 24")
    a(f"s_lshl_b32 s{T1}, s{T1}, 7")
    a(f"s_cmp_lt_u32 s{S_IDX}, 24")
    a(f"s_cselect_b32 s{S_TOK}, s{S_TOK}, s{T1}")
    a(f"s_cselect_b32 s{S_COL}, s{S_COL}, s{S_CG}")
    a(f"s_cselect_b32 s{T1}, 6, 5")
    a(f"v_and_b32 v{VT}, 31, v0")
    a(f"v_bfe_u32 v{VH}, v0, 5, 1")
    a(f"s_cmp_lg_u32 s{S_ISH}, 0")
    a(f"s_cbranch_scc1 L_p0_h")
    a(f"v_lshrrev_b32 v1, 3, v{VL}")
    a(f"v_lshrrev_b32 v2, 4, v{VL}")
    a(f"v_and_b32 v4, 7, v{VL}")
    a(f"v_xor_b32 v3, v2, v4")
    a(f"s_lshl_b32 s{T2}, s{S_WQ}, s{T1}")
    a(f"s_add_u32 s{T2}, s{T2}, s{S_TOK}")
    a(f"v_add_u32 v5, s{T2}, v1")
    a(f"v_mul_u32_u24 v5, 1280, v5")
    a(f"v_lshl_add_u32 v{VX[0]}, v3, 4, v5")
    a(f"v_xor_b32 v3, 4, v3")
    a(f"v_lshl_add_u32 v{VX[1]}, v3, 4, v5")
    S_MX, S_MW = S_OX, S_RB
    S_RX, S_RW = 86, 99
    a(f"s_mul_i32 s{T2}, s{S_IDX}, 3")
    a(f"s_mul_i32 s{T3}, s{T2}, 205")
    a(f"s_lshr_b32 s{T3}, s{T3}, 11")
    a(f"s_mul_i32 s{T3}, s{T3}, 10")
    a(f"s_sub_u32 s{S_RW}, s{T2}, s{T3}")
    if "0" not in ABL: a(f"s_mov_b32 s{S_RW}, 0")
    if "2" in ABL:
        a(f"s_lshr_b32 s{T2}, s{S_IDX}, 2")
        a(f"s_xor_b32 s{T2}, s{T2}, s{S_IDX}")
        a(f"s_and_b32 s{T2}, s{T2}, 1")
        a(f"s_mul_i32 s{S_RW}, s{T2}, 5")
    S_RX = 82
    a(f"s_lshl_b32 s{S_RX}, s{S_RW}, 7")
    a(f"s_cmp_lt_u32 s{S_IDX}, 24")
    a(f"s_cbranch_scc0 L_q_l")
    a(f"v_and_b32 v2, 1, v2")
    a(f"v_lshlrev_b32 v2, 1, v2")
    a(f"v_xor_b32 v4, v4, v2")
    a(f"s_lshl_b32 s{T2}, s{S_WQ}, 4")
    a(f"v_add_u32 v1, s{T2}, v1")
    a(f"v_mul_u32_u24 v1, 3072, v1")
    a(f"v_lshl_add_u32 v1, v4, 4, v1")
    a(f"s_lshl_b32 s{T2}, s{S_COL}, 7")
    a(f"v_add_u32 v{VW}, s{T2}, v1")
    a(f"s_lshl_b32 s{S_MX}, s{S_WQ}, 13")
    a(f"s_lshl_b32 s{S_MW}, s{S_WQ}, 11")
    a(f"s_mul_i32 s{S_RW}, s{S_RW}, {64*3072}")
    a("s_waitcnt lgkmcnt(0)")
    make_srd(a, SX, P_X, 2048*1280)
    make_srd(a, SA, P_WG, 640*3072)
    make_srd(a, SB2, P_WU, 640*3072)
    def dma_gu(st):
        db = (st % 3) * STG
        ch = []
        for j in (0, 1, 2, 3, 8, 9, 4, 5, 6, 7, 10, 11):
            c = []
            if j < 8:
                if j in (0, 4):
                    c += [f"s_add_u32 m0, s{S_MX}, {db + 4096*(j>>2)}"]
                c += [f"s_add_u32 s{T3}, s{S_RX}, {j*10240 - 1024*(j&3)}",
                      f"buffer_load_dwordx4 v{VX[j&1]}, s[{SX}:{SX+3}], s{T3} offen offset:{1024*(j&3)} lds"]
            else:
                srd = SA if j < 10 else SB2
                if j in (8, 10):
                    c += [f"s_add_u32 m0, s{S_MW}, {db + G_OFF + (U_REL if j == 10 else 0)}"]
                c += [f"s_add_u32 s{T3}, s{S_RW}, {(j&1)*(8*3072-1024)}",
                      f"buffer_load_dwordx4 v{VW}, s[{srd}:{srd+3}], s{T3} offen offset:{1024*(j&1)} lds"]
                if j == 11:
                    c += [f"s_add_u32 s{S_RX}, s{S_RX}, 128", f"s_add_u32 s{S_RW}, s{S_RW}, {64*3072}", f"s_cmp_eq_u32 s{S_RX}, 1280",
                          f"s_cselect_b32 s{S_RX}, 0, s{S_RX}", f"s_cselect_b32 s{S_RW}, 0, s{S_RW}"]
            ch.append(c)
        return ch
    if SP: stamp(a, 1)
    emit(dma_gu(0))
    if SP: stamp(a, 2)
    a("s_branch L_common")
    a("L_q_l:")
    EX1, EX2, S_M2 = 60, 62, 79
    a(f"s_cmp_eq_u32 s{S_COL}, 3")
    a(f"s_cselect_b32 s{T0}, 40, 1280")
    a(f"s_lshl_b32 s{S_ST2}, s{T0}, 6")
    a(f"v_and_b32 v2, 1, v2")
    a(f"v_lshlrev_b32 v2, 2, v2")
    a(f"v_xor_b32 v4, v4, v2")
    a(f"s_lshl_b32 s{T1}, s{S_WQ}, 4")
    a(f"v_add_u32 v1, s{T1}, v1")
    a(f"v_mul_u32_u24 v3, 1280, v1")
    a(f"v_lshl_add_u32 v3, v4, 4, v3")
    a(f"s_mul_i32 s{T2}, s{S_COL}, 384")
    a(f"v_add_u32 v{VW}, s{T2}, v3")
    a(f"v_add_u32 v{VW2}, 128, v{VW}")
    a(f"v_add_u32 v{VW3}, 256, v{VW}")
    a(f"s_lshl_b32 s{S_MX}, s{S_WQ}, 12")
    a(f"s_lshl_b32 s{S_MW}, s{S_WQ}, 11")
    a(f"s_add_u32 s{S_M2}, s{S_MW}, 8192")
    a(f"s_mov_b64 s[{EX1}:{EX1+1}], -1")
    a(f"s_mov_b64 s[{EX2}:{EX2+1}], -1")
    a(f"s_mul_i32 s{S_O2}, s{S_RW}, s{S_ST2}")
    a(f"s_mul_i32 s{S_RW}, s{S_RW}, {64*1280}")
    a(f"s_lshr_b32 s{S_O3}, s{S_ST2}, 3")
    a(f"s_sub_u32 s{S_O3}, s{S_O3}, 1024")
    a("s_waitcnt lgkmcnt(0)")
    make_srd(a, SX, P_X, 2048*1280)
    for r in (SA, SB2, SD):
        make_srd(a, r, P_WQ, 640*1280)
    a(f"s_cmp_eq_u32 s{S_COL}, 3")
    a(f"s_cbranch_scc0 L_q_l1")
    a(f"s_mov_b64 s[{SB2}:{SB2+1}], s[{P_WK}:{P_WK+1}]")
    a(f"s_mov_b64 s[{SD}:{SD+1}], s[{P_WV}:{P_WV+1}]")
    a(f"s_mov_b32 s{SB2+2}, {640*40}")
    a(f"s_mov_b32 s{SD+2}, {640*40}")
    a(f"s_mov_b32 s{S_M2}, s{S_MW}")
    a(f"v_mul_u32_u24 v3, 40, v1")
    a(f"v_and_b32 v2, 3, v4")
    a(f"v_lshl_add_u32 v{VW2}, v2, 4, v3")
    a(f"v_mov_b32 v{VW3}, v{VW2}")
    a(f"v_cmp_gt_u32 s[{EX1}:{EX1+1}], 4, v4")
    a(f"v_cmp_le_u32 s[{EX2}:{EX2+1}], 4, v4")
    a("L_q_l1:")
    def dma_q(st):
        db = (st % 3) * STG
        ch = []
        for j in range(4):
            c = []
            if j == 0:
                c += [f"s_add_u32 m0, s{S_MX}, {db}"]
            c += [f"s_add_u32 s{T3}, s{S_RX}, {j*(10240-1024)}",
                  f"buffer_load_dwordx4 v{VX[j&1]}, s[{SX}:{SX+3}], s{T3} offen offset:{1024*j} lds"]
            ch.append(c)
        ch.append([f"s_add_u32 m0, s{S_MW}, {db + 16384}", f"s_add_u32 s{T3}, s{S_RW}, {8*1280-1024}",
                   f"buffer_load_dwordx4 v{VW}, s[{SA}:{SA+3}], s{S_RW} offen lds"])
        ch.append([f"buffer_load_dwordx4 v{VW}, s[{SA}:{SA+3}], s{T3} offen offset:1024 lds"])
        for sm, srd, vo, ex in ((S_MW, SB2, VW2, EX1), (S_M2, SD, VW3, EX2)):
            ch.append([f"s_add_u32 m0, s{sm}, {db + 16384 + 8192}", f"s_mov_b64 exec, s[{ex}:{ex+1}]",
                       f"buffer_load_dwordx4 v{vo}, s[{srd}:{srd+3}], s{S_O2} offen lds", "s_mov_b64 exec, -1"])
            ch.append([f"s_add_u32 m0, s{sm}, {db + 16384 + 8192 + 1024}", f"s_add_u32 s{T3}, s{S_O2}, s{S_O3}", f"s_add_u32 s{T3}, s{T3}, 1024", f"s_mov_b64 exec, s[{ex}:{ex+1}]",
                       f"buffer_load_dwordx4 v{vo}, s[{srd}:{srd+3}], s{T3} offen lds", "s_mov_b64 exec, -1"])
        ch[-1] += [f"s_add_u32 s{S_RX}, s{S_RX}, 128", f"s_add_u32 s{S_RW}, s{S_RW}, {64*1280}", f"s_add_u32 s{S_O2}, s{S_O2}, s{S_ST2}", f"s_cmp_eq_u32 s{S_RX}, 1280",
                   f"s_cselect_b32 s{S_RX}, 0, s{S_RX}", f"s_cselect_b32 s{S_RW}, 0, s{S_RW}", f"s_cselect_b32 s{S_O2}, 0, s{S_O2}"]
        return ch
    if SP: stamp(a, 1)
    emit(dma_q(0))
    if SP: stamp(a, 2)
    a("s_branch L_common")

    a("L_p0_h:")
    a(f"s_lshl_b32 s{T0}, s2, 3")
    a(f"s_lshl_b32 s{T1}, s{S_WQ}, 1")
    a(f"s_add_u32 s{T0}, s{T0}, s{T1}")
    a(f"v_add_u32 v4, s{T0}, v{VH}")
    a(f"v_mul_u32_u24 v5, 1280, v4")
    a(f"v_lshl_add_u32 v5, v{VT}, 3, v5")
    a(f"v_lshlrev_b32 v255, 3, v4")
    a(f"v_mov_b32 v242, 0")
    a(f"s_mov_b32 s{T1}, {EPOCH_OFF}")
    a("s_waitcnt lgkmcnt(0)")
    make_srd(a, SX, P_X, 2048*1280)
    make_srd(a, SWS, P_WS, WS_SIZE)
    a(f"buffer_load_dword v203, v242, s[{SWS}:{SWS+3}], s{T1} offen sc1")
    for j in range(5):
        a(f"buffer_load_dwordx2 {vr(192+2*j,2)}, v5, s[{SX}:{SX+3}], 0 offen offset:{256*j}")

    if PGT:
        make_srd(a, SD, P_OUT, 2048*1280)
        a(f"s_cmp_eq_u32 s{S_WQ}, 1")
        a(f"s_cselect_b64 s[{SD}:{SD+1}], s[{P_WD}:{P_WD+1}], s[{SD}:{SD+1}]")
        a(f"s_cselect_b32 s{SD+2}, {1536*1280}, s{SD+2}")
        a(f"s_cmp_eq_u32 s{S_WQ}, 2")
        a(f"s_cselect_b64 s[{SD}:{SD+1}], s[{P_WO}:{P_WO+1}], s[{SD}:{SD+1}]")
        a(f"s_cselect_b32 s{SD+2}, {640*1280}, s{SD+2}")
        a(f"s_cmp_eq_u32 s{S_WQ}, 3")
        a(f"s_cselect_b64 s[{SD}:{SD+1}], s[{P_WS}:{P_WS+1}], s[{SD}:{SD+1}]")
        a(f"s_cselect_b32 s{SD+2}, {0xC00000}, s{SD+2}")
        a(f"v_lshlrev_b32 v1, 19, v{VL}")
        a(f"s_lshl_b32 s{T0}, s2, 7")
        a(f"buffer_load_dword v246, v1, s[{SD}:{SD+3}], s{T0} offen")

    a("L_common:")
    make_srd(a, SWS, P_WS, WS_SIZE)
    make_srd(a, SDBG, P_DBG, 256)
    a(f"s_and_b32 s{S_MH}, s{S_W}, 1")
    a(f"s_lshr_b32 s{S_ROT}, s{S_W}, 1")
    a(f"s_mov_b32 s{S_UP}, 0")
    a(f"s_mov_b32 s{S_UP+1}, -1")
    a(f"v_lshlrev_b32 v{VL16}, 4, v{VL}")
    a(f"v_bfe_u32 v1, v{VT}, 1, 3")
    a(f"v_xor_b32 v1, v1, v{VH}")
    a(f"s_lshl_b32 s{T1}, s{S_ROT}, 1")
    a(f"v_xor_b32 v1, s{T1}, v1")
    a(f"v_lshlrev_b32 v2, 7, v{VT}")
    a(f"s_cmp_lt_u32 s{S_IDX}, 24")
    a(f"s_cselect_b32 s{T0}, 13, 12")
    a(f"s_lshl_b32 s{T0}, s{S_ROT}, s{T0}")
    a(f"v_add_u32 v2, s{T0}, v2")
    VB = lambda sg: 18 + sg
    for sg in range(4):
        a(f"v_xor_b32 v3, {2*sg}, v1")
        a(f"v_lshl_add_u32 v{VB(sg)}, v3, 4, v2")
    for r in range(CSA, CSA+6):
        a(f"v_mov_b32 v{r}, 0")
    a(f"s_and_b32 s{T0}, s2, 7")
    a(f"s_lshl_b32 s{S_TB}, s{T0}, 3")
    a(f"s_and_b32 s{T1}, s{S_IDX}, 7")
    a(f"s_add_u32 s{S_TB}, s{S_TB}, s{T1}")
    a(f"s_lshr_b32 s{S_G}, s{S_IDX}, 3")
    a(f"s_mov_b32 s{S_EARLY}, 0")
    a(f"s_mov_b32 s{S_DL}, {STG}")
    a(f"s_mov_b32 s{S_I}, {-2*STG & 0xffffffff}")
    a(f"v_bfe_u32 v1, v{VL}, 2, 2")
    a(f"v_lshl_add_u32 v2, v{VH}, 3, v1")
    a(f"v_bfe_u32 v3, v{VL}, 4, 1")
    a(f"s_cmp_lt_u32 s{S_IDX}, 24")
    a(f"s_cbranch_scc0 L_q_rd")
    VAg = lambda sg, aa: 10 + 2*sg + aa
    a(f"v_lshlrev_b32 v2, 7, v2")
    a(f"v_mul_u32_u24 v3, {U_REL}, v3")
    a(f"v_add_u32 v2, v2, v3")
    a(f"v_and_b32 v1, 2, v1")
    a(f"v_bfe_u32 v3, v{VL}, 1, 1")
    a(f"v_add_u32 v1, v1, v3")
    a(f"v_lshl_add_u32 v2, v1, 4, v2")
    a(f"v_and_b32 v3, 1, v{VL}")
    a(f"v_lshl_add_u32 v2, v3, 3, v2")
    a(f"s_lshl_b32 s{T0}, s{S_MH}, 6")
    a(f"s_add_u32 s{T0}, s{T0}, {G_OFF}")
    for sg in range(4):
        a(f"s_xor_b32 s{T1}, s{S_ROT}, {sg}")
        a(f"s_lshl_b32 s{T1}, s{T1}, 11")
        a(f"s_add_u32 s{T1}, s{T1}, s{T0}")
        a(f"v_add_u32 v{VAg(sg,0)}, s{T1}, v2")
        a(f"v_xor_b32 v{VAg(sg,1)}, 32, v{VAg(sg,0)}")

    def one(lst): return [[x] for x in lst]
    def bg_common():
        o = [f"v_lshlrev_b32 v{VL8}, 3, v{VL}", "v_mov_b32 v4, 0x80000000", f"v_cndmask_b32 v{VL8}, v{VL8}, v4, s[{S_UP}:{S_UP+1}]",
             f"v_mul_u32_u24 v5, 21, v{VH}", f"v_add_lshl_u32 v5, v5, v{VT}, 4", f"v_cmp_gt_u32 vcc, 21, v{VT}", "s_nop 1", f"v_cndmask_b32 v{VLV}, v4, v5, vcc", f"s_lshl_b32 s{T0}, s{S_W}, 2", f"s_add_u32 s{T0}, s{T0}, {FL_OFF}", f"v_mov_b32 v{VFL}, s{T0}"]
        o += [f"v_mov_b32 v{r}, 0" for r in (243, 244, 245)]
        return one(o)
    def bg_L():
        o = [f"v_mov_b32 v246, 0", f"v_mov_b32 v247, 0", f"s_mul_i32 s{T0}, s{S_G}, 320"]
        for j in range(5):
            o += [f"v_add_u32 v6, {64*j}, v{VL}", f"v_mul_u32_u24 v4, 3277, v6", f"v_lshrrev_b32 v4, 16, v4", f"v_mul_u32_u24 v5, 20, v4",
                  f"v_sub_u32 v5, v6, v5", f"v_mul_u32_u24 v4, 1280, v4", f"v_lshl_add_u32 v4, v5, 4, v4", f"v_add_u32 v{VD[j]}, s{T0}, v4"]
            if 0 < j < 4: o += [f"v_subrev_u32 v{VD[j]}, {1024*j}, v{VD[j]}"]
        o += [f"s_lshl_b32 s{T1}, s{S_TB}, 5", f"v_add_u32 v6, s{T1}, v{VT}", f"v_mul_u32_u24 v6, 1280, v6", f"v_lshl_add_u32 v6, v{VH}, 3, v6",
              f"s_lshl_b32 s{T1}, s{S_WQ}, 4", f"s_add_u32 s{T0}, s{T0}, s{T1}", f"v_add_u32 v{VXO}, s{T0}, v6",
              f"s_mul_i32 s{T0}, s{S_WQ}, {RSZ}", f"v_bfe_u32 v6, v{VL}, 2, 2", f"v_bfe_u32 v4, v{VL}, 4, 1", f"v_and_b32 v5, 3, v{VL}",
              f"v_lshl_add_u32 v4, v4, 2, v5", f"s_lshl_b32 s{T1}, s{S_WQ}, 1", f"v_xor_b32 v4, s{T1}, v4", f"v_lshl_add_u32 v4, v4, 3, s{T0}",
              f"v_lshl_add_u32 v5, v{VH}, 2, v6", f"v_mul_u32_u24 v5, 320, v5", f"v_add_u32 v{VAR}, v4, v5",
              f"v_lshl_add_u32 v5, v{VH}, 3, v6", f"v_mul_u32_u24 v5, 320, v5", f"v_add_u32 v{VAR2}, v4, v5", f"v_add_u32 v{VRW}, s{T0}, v{VL16}"]
        for i, vv in ((1, VR0), (2, VR1), (3, VRW+1)):
            o += [f"s_xor_b32 s{T1}, s{S_WQ}, {i}", f"s_mul_i32 s{T1}, s{T1}, {RSZ}", f"v_add_u32 v{vv}, s{T1}, v{VL16}"]
        return one(o)
    VRD = {1: VR0, 2: VR1, 3: VRW+1}
    def touches():
        a(f"s_lshl_b32 s{T0}, s{S_TH}, 10")
        a(f"s_lshl_b32 s{T1}, s{S_IDX}, 5")
        a(f"s_add_u32 s{T0}, s{T0}, s{T1}")
        a(f"v_add_u32 v1, s{T0}, v{VT}")
        a(f"v_mul_u32_u24 v1, 1280, v1")
        a(f"v_mov_b32 v2, 128")
        a(f"v_mov_b32 v3, s{P_X}")
        a(f"v_mov_b32 v4, s{P_X+1}")
        a(f"v_min_u32 v5, 29, v{VT}")
        a(f"v_cmp_le_u32 vcc, 15, v5")
        a(f"s_lshl_b32 s{T0}, s{S_IDX}, 1")
        a(f"v_mov_b32 v6, s{T0}")
        a(f"v_subrev_u32 v7, 15, v5")
        a(f"v_addc_co_u32 v6, s[{T2}:{T3}], 0, v6, vcc")
        a(f"v_cndmask_b32 v5, v5, v7, vcc")
        a(f"v_cmp_le_u32 vcc, 6, v5")
        a(f"v_subrev_u32 v7, 6, v5")
        a(f"v_mov_b32 v8, s{P_WG}")
        a(f"v_cndmask_b32 v7, v5, v7, vcc")
        a(f"v_mov_b32 v9, s{P_WU}")
        a(f"v_cndmask_b32 v8, v8, v9, vcc")
        a(f"v_mov_b32 v9, s{P_WG+1}")
        a(f"v_mov_b32 v32, s{P_WU+1}")
        a(f"v_cndmask_b32 v9, v9, v32, vcc")
        a(f"s_mul_i32 s{T0}, s{S_CG}, 768")
        a(f"v_mul_u32_u24 v32, 3072, v6")
        a(f"v_lshl_add_u32 v32, v7, 7, v32")
        a(f"v_add_u32 v32, s{T0}, v32")
        a(f"v_mov_b32 v33, {64*3072}")
        a(f"v_cmp_le_u32 vcc, 12, v5")
        a(f"s_mul_i32 s{T0}, s{S_CG}, 384")
        a(f"s_sub_u32 s{T0}, s{T0}, {12*128}")
        a(f"v_lshl_add_u32 v7, v5, 7, s{T0}")
        a(f"v_min_u32 v7, 1152, v7")
        a(f"v_mul_u32_u24 v6, 1280, v6")
        a(f"v_add_u32 v7, v7, v6")
        a(f"v_cndmask_b32 v32, v32, v7, vcc")
        a(f"v_mov_b32 v7, {64*1280}")
        a(f"v_cndmask_b32 v33, v33, v7, vcc")
        a(f"v_mov_b32 v7, s{P_WQ}")
        a(f"v_cndmask_b32 v8, v8, v7, vcc")
        a(f"v_mov_b32 v7, s{P_WQ+1}")
        a(f"v_cndmask_b32 v9, v9, v7, vcc")
        for d, s_ in ((1, 32), (2, 33), (3, 8), (4, 9)):
            a(f"v_cndmask_b32 v{d}, v{d}, v{s_}, s[{S_UP}:{S_UP+1}]")
        a(f"s_add_u32 s{T0}, s{S_WQ}, 3")
        a(f"v_mul_lo_u32 v5, v2, s{T0}")
        a(f"v_add_u32 v1, v1, v5")
        a(f"v_add_co_u32 v6, vcc, v3, v1")
        a(f"s_cmp_eq_u32 s{S_WQ}, 3")
        a(f"s_cselect_b32 s{T0}, 3, 4")
        a(f"v_addc_co_u32 v7, vcc, 0, v4, vcc")
        a(f"global_load_dword v246, v[6:7], off")
        a(f"v_mul_lo_u32 v2, v2, s{T0}")
        a(f"v_add_co_u32 v8, vcc, v6, v2")
        a(f"s_nop 1")
        a(f"v_addc_co_u32 v9, vcc, 0, v7, vcc")
        a(f"global_load_dword v247, v[8:9], off")
    NT_ = 2 if "T" in ABL else PGT
    def bg_H(full=True, late=False):
        d = {i: [] for i in range(10)}
        d[0].append([f"s_waitcnt vmcnt({NT_})"])
        st = ["v_mov_b32 v8, 0", "v_mov_b32 v9, 0"]
        for j in range(10):
            st += [f"v_lshlrev_b32 v4, 16, v{192+j}", f"v_and_b32 v5, 0xffff0000, v{192+j}", "v_add_f32 v8, v8, v4", "v_fmac_f32 v9, v4, v4",
                   "v_add_f32 v8, v8, v5", "v_fmac_f32 v9, v5, v5"]
        for rr in (8, 4, 2, 1):
            st += ["s_nop 0", f"v_add_f32_dpp v8, v8, v8 row_ror:{rr} row_mask:0xf bank_mask:0xf", f"v_add_f32_dpp v9, v9, v9 row_ror:{rr} row_mask:0xf bank_mask:0xf"]
        st += ["v_mov_b32 v4, v8", "v_mov_b32 v5, v9", "s_nop 1", "v_permlane16_swap_b32 v4, v8", "v_permlane16_swap_b32 v5, v9", "s_nop 1",
               "v_add_f32 v4, v4, v8", "v_add_f32 v5, v5, v9", f"v_mul_f32 v4, {f32bits(-1.0/640)}, v4", f"v_mul_f32 v5, {f32bits(1.0/640)}, v5",
               "v_fma_f32 v5, -v4, v4, v5", "v_max_f32 v5, 0, v5", "v_cvt_pk_bf16_f32 v5, v5, v5", "v_lshlrev_b32 v5, 16, v5",
               f"v_add_f32 v5, {f32bits(1e-5)}, v5", "v_cvt_pk_bf16_f32 v5, v5, v5", "v_lshlrev_b32 v5, 16, v5", "v_sqrt_f32 v5, v5", "s_nop 0",
               "v_cvt_pk_bf16_f32 v202, v4, v5"]
        h = len(st)//2
        d[0] += one(st[:24]); d[1] += one(st[24:])
        d[0].insert(1, ["v_add_u32 v203, 1, v203"]); d[0].insert(2, ["v_or_b32 v203, 0x80000000, v203"])
        d[0].insert(3, [f"v_mov_b32 v4, {FL_OFF + 128}", "ds_write_b32 v4, v203", f"v_readfirstlane_b32 s{S_NON}, v203"])
        d[1] += [["s_mov_b32 exec_lo, 1", "s_mov_b32 exec_hi, 1", f"s_mov_b32 s{T0}, {STF_OFF}",
                  f"buffer_store_dwordx2 v[202:203], v255, s[{SWS}:{SWS+3}], s{T0} offen sc1", "s_mov_b64 exec, -1"]]
        o = [f"s_lshl_b32 s{T0}, s{S_TB}, 5", f"s_lshl_b32 s{T1}, s{S_G}, 2", f"s_add_u32 s{T0}, s{T0}, s{T1}", f"s_add_u32 s{T0}, s{T0}, s{S_WQ}",
             f"s_lshl_b32 s{T0}, s{T0}, 2", f"s_add_u32 s{S_OFL}, s{T0}, {OFL_OFF}",
             f"s_and_b32 s{S_K2}, s{S_WQ}, 2", f"s_mul_i32 s{S_KV}, s{S_K2}, {16*KVS}", f"s_add_u32 s{S_KV}, s{S_KV}, {KVF_OFF}",
             f"s_lshl_b32 s{S_H0}, s{S_G}, 3", f"s_and_b32 s{T0}, s{S_WQ}, 1", f"s_lshl_b32 s{T0}, s{T0}, 2", f"s_add_u32 s{S_H0}, s{S_H0}, s{T0}",
             f"v_lshlrev_b32 v7, 4, v{VT}", f"v_mov_b32 v8, 0x80000000"]
        for q in range(4):
            o += [f"s_xor_b32 s{T0}, s{S_K2}, {q}", f"s_add_u32 s{T0}, s{T0}, s{S_H0}", f"s_mul_i32 s{T0}, s{T0}, 5"]
            for j, dst in enumerate((Q1(q), Q1(q)+2, Q2(q))):
                o += [f"v_add_u32 v4, s{T0}, v{VH}"]
                if j: o += [f"v_add_u32 v4, {2*j}, v4"]
                o += [f"v_lshrrev_b32 v5, 2, v4", f"v_lshl_add_u32 v5, v5, 10, v7", f"v_and_b32 v6, 1, v4", f"v_lshl_add_u32 v5, v6, 9, v5",
                      f"v_and_b32 v6, 2, v4", f"v_lshl_add_u32 v{dst}, v6, 2, v5"]
                if j == 2: o += [f"v_cndmask_b32 v{dst}, v{dst}, v8, s[{S_UP}:{S_UP+1}]"]
        o += [f"s_lshl_b32 s{T0}, s{S_WQ}, 13", f"s_add_u32 s{T0}, s{T0}, {CB_OFF}", f"s_xor_b32 s{T1}, s{S_WQ}, 2", f"s_lshl_b32 s{T1}, s{T1}, 13",
              f"s_add_u32 s{T1}, s{T1}, {CB_OFF}", f"v_add_u32 v{VCW}, s{T0}, v{VL16}", f"v_add_u32 v{VCR}, s{T1}, v{VL16}",
              ]
        n3 = (len(o) + 2)//3
        pois = [f"s_add_u32 s{T1}, s{S_H0}, s{S_K2}", f"s_mul_i32 s{T1}, s{T1}, 5", f"s_mul_i32 s{S_OO}, s{S_TB}, 160", f"s_add_u32 s{S_OO}, s{S_OO}, s{T1}",
                f"s_lshl_b32 s{S_OO}, s{S_OO}, 8", f"s_add_u32 s{S_OO}, s{S_OO}, {OF_OFF}"] + [f"v_mov_b32 v{r}, -1" for r in range(204, 208)] + \
               [f"buffer_store_dwordx4 v[204:207], v{VL16}, s[{SWS}:{SWS+3}], s{S_OO} offen sc1",
                f"buffer_store_dwordx4 v[204:207], v{VL16}, s[{SWS}:{SWS+3}], s{S_OO} offen offset:1024 sc1",
                f"buffer_store_dwordx4 v[204:207], v{VL16}, s[{SWS}:{SWS+3}], s{S_OO} offen offset:1536 sc1"]
        if late: return one(o[:13] + pois + o[13:])
        if full: d[5] += one(o[:n3]); d[6] += one(o[n3:2*n3]); d[7] += one(o[2*n3:])

        if full: d[6].insert(0, pois)
        d[2] += bg_common()
        return d

    def p1_phase(tag, nA, nB, ND, dma, reads, FA, FB, ACC, addr_regs, early):
        nR = 2*nA + nB
        nm = nA*nB
        dw = [(aa, i) for aa in range(nA) for i in range(4)]
        hd = len(dw)//2; qd = hd//2
        def cs_ops(p, lst):
            o = []
            if "c" in ABL: return o
            for aa, i in lst:
                o += [f"v_lshlrev_b32 v2, 16, v{FA(p,aa)+i}", f"v_and_b32 v3, 0xffff0000, v{FA(p,aa)+i}",
                      f"v_add_f32 v{CSA+2*aa}, v{CSA+2*aa}, v2", f"v_add_f32 v{CSA+2*aa+1}, v{CSA+2*aa+1}, v3"]
            return o
        sets3 = A3 and not early
        cur = [0]
        def group(p, rd_sg, extra=(), dma_ch=(), bg=(), first=False, skip=False):
            extra = list(extra); bg = list(bg)
            rd = reads(rd_sg) if (rd_sg is not None and "r" not in ABL) else []
            if sets3 and cur[0] % 3:
                for r in addr_regs(rd_sg) if rd_sg is not None else []:
                    rd = [x.replace(f", v{r} ", f", v{196 + 12*(cur[0] % 3) + r - 10} ") if f", v{r} " in x + " " else x for x in [y + " " for y in rd]]
                    rd = [x.strip() for x in rd]
            per = (len(extra) + nm - 1)//nm
            bper = (len(bg) + nm - 1)//nm
            rper = (len(rd) + 1)//2
            dch = list(dma_ch)
            k = 0
            for aa in range(nA):
                for b in range(nB):
                    if "m" not in ABL and not skip:
                        a(f"v_mfma_f32_32x32x16_bf16 {vr(ACC(aa,b),16)}, {vr(FA(p,aa),4)}, {vr(FB(p,b),4)}, {'0' if first else vr(ACC(aa,b),16)}")
                    for e in rd[rper*k:rper*(k+1)]: a(e)
                    ndc = (len(dch) + (nm - k) - 1)//(nm - k)
                    emit(dch[:ndc]); dch = dch[ndc:]
                    for e in extra[per*k:per*(k+1)]: a(e)
                    emit(bg[bper*k:bper*(k+1)])
                    k += 1
        def upd(sg, st):
            if sets3: return []
            sreg = S_I if st % 3 == 2 else S_DL
            return [f"v_add_u32 v{r}, s{sreg}, v{r}" for r in addr_regs(sg)] if st < 9 else []
        def run(role):
            bgd = bg_H(early) if role == "H" else {i: [] for i in range(10)}
            if role == "L":
                o = bg_common() + (bg_L() if early else []); n = (len(o) + 4)//5
                for i in range(5): bgd[1+i] = o[n*i:n*(i+1)]
            for it in range(10):
                cur[0] = it
                if it == 0 and sets3:
                    for k3 in (1, 2):
                        for r in range(10, 22):
                            a(f"v_add_u32 v{196 + 12*k3 + r - 10}, {k3*STG}, v{r}")
                if role == "L":
                    if it == 0: emit(dma(1))
                    a(f"s_waitcnt vmcnt({ND if it < 9 else 0})")
                if SP and it == 0: stamp(a, 3)
                a("s_barrier")
                if SP and it == 0: stamp(a, 4)
                if "I" in ABL:
                    a(f"v_writelane_b32 v241, s12, {it}"); a("s_memtime s[12:13]")
                pre = []
                if role == "H":
                    if it == 4:
                        pre = [[f"v_xor_b32 v{VFR}, 8, v{VFL}"]]
                    if it == 8 and early:
                        a("s_waitcnt vmcnt(0)")
                        a("s_mov_b64 exec, 1")
                        a(f"buffer_store_dword v203, v242, s[{SWS}:{SWS+3}], s{S_OFL} offen sc1")
                        a("s_mov_b64 exec, -1")
                    if it == 8 or it == 9:
                        Lx = lab("hk")
                        a(f"s_cmp_lg_u32 s{S_W}, 4")
                        a(f"s_cbranch_scc1 {Lx}")
                        if it == 8:
                            a(f"s_lshl_b32 s{T0}, s{S_TOK}, 3")
                            a(f"s_add_u32 s{S_O2}, s{T0}, {STF_OFF}")
                            a(f"buffer_load_dwordx4 v[160:163], v{VL16}, s[{SWS}:{SWS+3}], s{S_O2} offen sc1")
                            a(f"buffer_load_dwordx4 v[164:167], v{VL16}, s[{SWS}:{SWS+3}], s{S_O2} offen offset:{1024 if nB == 2 else 0} sc1")
                        if it == 9:
                            a(f"s_call_b64 s[{T4}:{T5}], L_stats")
                            if early: mbx_load(0)
                        a(f"{Lx}:")
                elif it == 9:
                    a(f"v_mov_b32 v4, {FL_OFF + 128}"); a("ds_read_b32 v5, v4")
                    pre = [[f"v_readfirstlane_b32 s{S_NON}, v5"]]
                xl = 1 if ((role == "H" and it == 3) or (role == "L" and it == 9)) else 0
                ch = dma(it + 2) if (role == "L" and it < 8 and "g" not in ABL) else []
                q = (len(ch) + 3)//4
                bg = bgd[it]; bq = (len(bg) + 3)//4
                if it == 0: bq = (len(bg) + 1)//2; b0, b1, b2, b3 = [], [], bg[:bq], bg[bq:]
                else: b0, b1, b2, b3 = bg[:bq], bg[bq:2*bq], bg[2*bq:3*bq], bg[3*bq:]
                group(2, 0, extra=(upd(3, it-1) + cs_ops(2, dw[hd:hd+qd])) if it else [], dma_ch=ch[0:q], bg=b0, skip=(it == 0))
                group(3, 1, extra=upd(0, it) + (cs_ops(2, dw[hd+qd:]) if it else []), dma_ch=ch[q:2*q], bg=b1, skip=(it == 0))
                a(f"s_waitcnt lgkmcnt({nR})")
                group(0, 2, extra=upd(1, it) + cs_ops(0, dw[:qd]), dma_ch=ch[2*q:3*q], bg=pre + b2, first=(it == 0))
                a(f"s_waitcnt lgkmcnt({nR})")
                group(1, 3, extra=upd(2, it) + cs_ops(0, dw[qd:hd]), dma_ch=ch[3*q:], bg=b3)
                a("s_waitcnt lgkmcnt(0)")
        if not SP: stamp(a, 1)
        a(f"s_cmp_lg_u32 s{S_ISH}, 0")
        a(f"s_cbranch_scc1 L_{tag}_h")
        run("L")
        a(f"s_branch L_{tag}_fin")
        a(f"L_{tag}_h:")
        if "T" in ABL: touches()
        a(f"v_lshlrev_b32 v1, 2, v{VT}")
        a(f"v_add_u32 v1, {FL_OFF}, v1")
        a(f"ds_write_b32 v1, v242")
        run("H")
        a(f"L_{tag}_fin:")
        group(2, None, extra=cs_ops(2, dw[hd:]))
        group(3, None)
        if not SP: stamp(a, 2)
        if "I" in ABL:
            a(f"v_writelane_b32 v241, s12, 10")
            a("s_waitcnt lgkmcnt(0)")
            a(f"v_writelane_b32 v241, s4, 0")
            a(f"v_writelane_b32 v241, s8, 11")
            a(f"s_lshl_b32 s{T0}, s2, 3"); a(f"s_add_u32 s{T0}, s{T0}, s3"); a(f"s_lshl_b32 s{T0}, s{T0}, 8"); a(f"s_add_u32 s{T0}, s{T0}, 0x1000000")
            a(f"v_lshlrev_b32 v2, 2, v{VL}")
            a(f"buffer_store_dword v241, v2, s[{SWS}:{SWS+3}], s{T0} offen")
        if "X" in ABL: endpgm(a, 0)
        a(f"s_mul_i32 s{T2}, s{S_MH}, {nA}")
        a(f"s_lshl_b32 s{T0}, s{T2}, 10")
        a(f"s_add_u32 s{T0}, s{T0}, {CS_OFF}")
        a(f"v_add_u32 v1, s{T0}, v{VL16}")
        a(f"s_lshl_b32 s{T1}, s{S_ROT}, 2")
        a(f"v_add_u32 v9, s{T1}, v1")
        for aa in range(nA):
            a(f"v_add_f32 v{2+aa}, v{CSA+2*aa}, v{CSA+2*aa+1}")
        for aa in range(nA):
            a(f"v_cvt_pk_bf16_f32 v{5+aa}, v{2+aa}, v{2+aa}")
        for aa in range(nA):
            a(f"v_lshlrev_b32 v{5+aa}, 16, v{5+aa}")
        for aa in range(nA):
            a(f"v_sub_f32 v{5+aa}, v{2+aa}, v{5+aa}")
        for aa in range(nA):
            a(f"v_cvt_pk_bf16_f32 v{5+aa}, v{2+aa}, v{5+aa}")
            a(f"ds_write_b32 v9, v{5+aa} offset:{1024*aa}")
        if early:
            Lx = lab("nost")
            a(f"s_cmp_lg_u32 s{S_W}, 4")
            a(f"s_cbranch_scc1 {Lx}")
            a("s_waitcnt vmcnt(0)")
            mbx_test()
            a(f"s_cbranch_scc0 {Lx}")
            lds_set(16)
            a(f"{Lx}:")
        a(f"s_lshl_b32 s{T1}, s{S_ROT}, {8 + (nB-1)}")
        a(f"s_add_u32 s{T1}, s{T1}, {ST_OFF}")
        a(f"v_lshl_add_u32 v5, v{VT}, 3, s{T1}")
        a(f"v_mov_b32 v6, {FL_OFF + 64}")
        a("s_waitcnt lgkmcnt(0)")
        a("s_barrier")
        for b in range(nB):
            a(f"ds_read_b64 {vr(160+4*b,2)}, v5 offset:{256*b}")
        for aa in range(nA):
            a(f"ds_read_b128 {vr(10+4*aa,4)}, v1 offset:{1024*aa}")
        if early:
            a("ds_read_b32 v4, v6")
        a(f"s_cmp_eq_u32 s{S_ISH}, 0")
        a(f"s_cbranch_scc1 L_{tag}_np")
        a("s_setprio 2")
        a(f"L_{tag}_np:")
        a(f"s_waitcnt lgkmcnt({nA + (1 if early else 0)})")
        for b in range(nB):
            a(f"v_mov_b32 v{26+b}, v{161+4*b}")
            for j in (1, 2, 3):
                a(f"v_mov_b32 v{160+4*b+j}, v{160+4*b}")
        a("s_waitcnt lgkmcnt(0)")
        a("s_nop 0")
        for b in range(nB):
            for aa in range(nA):
                a(f"v_mfma_f32_32x32x16_bf16 {vr(ACC(aa,b),16)}, {vr(10+4*aa,4)}, {vr(160+4*b,4)}, {vr(ACC(aa,b),16)}")

    FA = lambda p, aa: FBASE[p] + 4*aa
    FB = lambda p, b: FBASE[p] + 8 + 4*b
    ACC = lambda aa, b: 64 + 16*(2*aa + b)
    def reads_gu(sg):
        o = []
        for aa in range(2):
            for n in range(2):
                o.append(f"ds_read_b64_tr_b16 {vr(FA(sg,aa)+2*n,2)}, v{VAg(sg,aa)} offset:{512*n}")
            o.append(f"ds_read_b128 {vr(FB(sg,aa),4)}, v{VB(sg)} offset:{4096*aa}")
        return o
    p1_phase("gu", 2, 2, 12, dma_gu, reads_gu, FA, FB, ACC, lambda sg: [VAg(sg,0), VAg(sg,1), VB(sg)], True)
    a(f"v_readfirstlane_b32 s{S_EARLY}, v4")
    a(f"v_mul_f32 v26, v26, v26")
    a(f"v_mul_f32 v28, v27, v27")
    a(f"s_and_b32 s{S_EARLY}, s{S_EARLY}, s{S_ISH}")
    a(f"s_cmp_eq_u32 s{S_EARLY}, 1")
    a(f"s_cbranch_scc0 L_gu_ne")
    a(f"s_call_b64 s[{T4}:{T5}], L_attn_loads")
    a("L_gu_ne:")
    a(f"s_lshr_b32 s{T0}, s{S_TOK}, 5")
    a(f"s_lshl_b32 s{T1}, s{S_ROT}, 1")
    a(f"s_add_u32 s{T0}, s{T0}, s{T1}")
    a(f"s_mul_i32 s{T0}, s{T0}, 96")
    a(f"s_lshl_b32 s{T1}, s{S_COL}, 2")
    a(f"s_add_u32 s{T0}, s{T0}, s{T1}")
    a(f"s_add_u32 s{T0}, s{T0}, s{T2}")
    a(f"s_lshl_b32 s{T0}, s{T0}, 10")
    a(f"s_add_u32 s{T0}, s{T0}, {HF_OFF}")
    a(f"s_add_u32 s{T1}, s{T0}, {96*1024}")
    a(f"s_mov_b64 s[88:89], s[{T0}:{T1}]")
    a("s_nop 0")
    for b in range(2):
        for aa in range(2):
            A = ACC(aa, b)
            for j in range(0, 8, 2):
                a(f"v_pk_mul_f32 {vr(A+j,2)}, {vr(A+j,2)}, {vr(26+2*b,2)} op_sel_hi:[1,0]")
            for j in range(0, 8, 2):
                a(f"v_pk_mul_f32 {vr(A+j,2)}, {vr(A+j,2)}, {vr(A+8+j,2)}")
            for q in range(4):
                a(f"v_cvt_pk_bf16_f32 v{A+q}, v{A+2*q}, v{A+2*q+1}")
            if not LATEH: a(f"buffer_store_dwordx4 {vr(A,4)}, v{VL16}, s[{SWS}:{SWS+3}], s{T0 if b == 0 else T1} offen offset:{1024*aa} sc1")
    a("s_branch L_p2")

    a("L_stats:")
    a(f"s_mov_b32 s{T1}, 0")
    a("L_stats_l:")
    a("s_waitcnt vmcnt(0)")
    a(f"v_xor_b32 v4, s{S_NON}, v161")
    a(f"v_xor_b32 v5, s{S_NON}, v163")
    a(f"v_xor_b32 v6, s{S_NON}, v165")
    a(f"v_xor_b32 v7, s{S_NON}, v167")
    a("v_or3_b32 v4, v4, v5, v6")
    a("v_or_b32 v4, v4, v7")
    a("v_cmp_ne_u32 vcc, 0, v4")
    a(f"s_add_u32 s{T1}, s{T1}, 1")
    a("s_cmp_eq_u64 vcc, 0")
    a("s_cbranch_scc1 L_stats_d")
    a("s_sleep 8")
    a(f"s_cmp_lt_u32 s{S_IDX}, 24")
    a(f"s_cselect_b32 s{T0}, 1024, 0")
    a(f"s_add_u32 s{T0}, s{T0}, s{S_O2}")
    a(f"buffer_load_dwordx4 v[160:163], v{VL16}, s[{SWS}:{SWS+3}], s{S_O2} offen sc1")
    a(f"buffer_load_dwordx4 v[164:167], v{VL16}, s[{SWS}:{SWS+3}], s{T0} offen sc1")
    a(f"s_cmp_lt_u32 s{T1}, {SPIN_MAX}")
    a("s_cbranch_scc1 L_stats_l")
    a("L_stats_d:")
    a(f"s_mov_b32 s{T0}, 0x01000100")
    for r in (160, 162, 164, 166):
        a(f"v_and_b32 v{r+1}, 0xffff0000, v{r}")
        a(f"v_rcp_f32 v{r+1}, v{r+1}")
        a(f"v_perm_b32 v{r}, v{r}, v{r}, s{T0}")
    a(f"v_add_u32 v4, {ST_OFF}, v{VL16}")
    a(f"ds_write_b128 v4, v[160:163]")
    a(f"ds_write_b128 v4, v[164:167] offset:1024")
    a(f"s_setpc_b64 s[{T4}:{T5}]")

    a("L_q_rd:")
    VAq = lambda sg, par: 10 + 2*sg + par
    a(f"v_lshlrev_b32 v2, 7, v2")
    a(f"v_lshl_add_u32 v2, v3, 5, v2")
    a(f"v_and_b32 v3, 3, v{VL}")
    a(f"v_lshl_add_u32 v2, v3, 3, v2")
    a(f"v_and_b32 v1, 2, v1")
    a(f"v_lshl_add_u32 v2, v1, 5, v2")
    a(f"s_lshl_b32 s{T0}, s{S_MH}, 6")
    a(f"v_xor_b32 v2, s{T0}, v2")
    a(f"s_lshl_b32 s{T0}, s{S_MH}, 13")
    a(f"s_add_u32 s{T2}, s{T0}, 16384")
    for sg in range(4):
        a(f"s_xor_b32 s{T1}, s{S_ROT}, {sg}")
        a(f"s_lshl_b32 s{T1}, s{T1}, 11")
        a(f"s_add_u32 s{T1}, s{T1}, s{T2}")
        a(f"v_add_u32 v{VAq(sg,0)}, s{T1}, v2")
        a(f"v_xor_b32 v{VAq(sg,1)}, 64, v{VAq(sg,0)}")
        a(f"v_add_u32 v{VAq(sg,1)}, s{T0}, v{VAq(sg,1)}")
    FA = lambda p, aa: FBASE[p] + 4*aa
    FB = lambda p, b: FBASE[p] + 12
    ACC = lambda aa, b: 64 + 16*aa
    def reads_q(sg):
        o = [f"ds_read_b128 {vr(FB(sg,0),4)}, v{VB(sg)}"]
        for aa in range(3):
            for n in range(2):
                o.append(f"ds_read_b64_tr_b16 {vr(FA(sg,aa)+2*n,2)}, v{VAq(sg, aa & 1)} offset:{8192*(aa >> 1)+512*n}")
        return o
    p1_phase("q", 3, 1, 10, dma_q, reads_q, FA, FB, ACC, lambda sg: [VAq(sg,0), VAq(sg,1), VB(sg)], False)
    a(f"s_lshr_b32 s{T0}, s{S_TOK}, 5")
    a(f"s_add_u32 s{T0}, s{T0}, s{S_ROT}")
    a(f"s_mul_i32 s{T1}, s{T0}, {KVS}")
    a(f"s_add_u32 s{T1}, s{T1}, {KVF_OFF}")
    a(f"s_mul_i32 s{T0}, s{T0}, 40960")
    a(f"s_mul_i32 s{T3}, s{S_COL}, 6")
    a(f"s_add_u32 s{T2}, s{T2}, s{T3}")
    a(f"s_lshl_b32 s{T3}, s{T2}, 11")
    a(f"s_add_u32 s{T0}, s{T0}, s{T3}")
    a(f"v_mul_f32 v28, {f32bits(QSCALE)}, v26")
    a("s_nop 1")
    for aa in range(3):
        A = ACC(aa, 0)
        Lk, Ld = lab("kv"), lab("sd")
        a(f"s_cmp_lt_u32 s{T2}, {20-aa}")
        a(f"s_cbranch_scc0 {Lk}")
        for j in range(0, 16, 2):
            a(f"v_pk_mul_f32 {vr(A+j,2)}, {vr(A+j,2)}, v[28:29] op_sel_hi:[1,0]")
        for q in range(8):
            a(f"v_cvt_pk_bf16_f32 v{A+q}, v{A+2*q}, v{A+2*q+1}")
        for i in range(2):
            a(f"buffer_store_dwordx4 {vr(A+4*i,4)}, v{VL16}, s[{SWS}:{SWS+3}], s{T0} offen offset:{(2048*aa+1024*i) & 4095} sc1")
        if aa == 1:
            a(f"s_add_u32 s{T0}, s{T0}, 4096")
        a(f"s_branch {Ld}")
        a(f"{Lk}:")
        if aa == 2:
            a(f"s_cmp_eq_u32 s{T2}, 18")
            a(f"s_cbranch_scc0 {Ld}")
            for j in range(0, 12, 2):
                a(f"v_pk_mul_f32 {vr(A+j,2)}, {vr(A+j,2)}, v[26:27] op_sel_hi:[1,0]")
            for q in range(6):
                a(f"v_cvt_pk_bf16_f32 v{A+q}, v{A+2*q}, v{A+2*q+1}")
            a(f"buffer_store_dwordx4 {vr(A,4)}, v{VL16}, s[{SWS}:{SWS+3}], s{T1} offen sc1")
            a(f"buffer_store_dwordx2 {vr(A+4,2)}, v{VL8}, s[{SWS}:{SWS+3}], s{T1} offen offset:1024 sc1")
        elif aa == 0:
            for j in range(0, 12, 2):
                a(f"v_pk_mul_f32 {vr(A+j,2)}, {vr(A+j,2)}, v[26:27] op_sel_hi:[1,0]")
            a(f"s_mul_i32 s{T3}, s{S_ROT}, 2304")
            a(f"s_add_u32 s{T3}, s{T3}, {VT_OFF}")
            a(f"v_mul_u32_u24 v1, {4*72}, v{VH}")
            a(f"v_lshl_add_u32 v1, v{VT}, 1, v1")
            a(f"v_add_u32 v1, s{T3}, v1")
            a(f"v_mul_u32_u24 v2, 72, v{VT}")
            a(f"v_lshl_add_u32 v2, v{VH}, 3, v2")
            a(f"v_add_u32 v2, s{T3}, v2")
            a(f"v_cndmask_b32 v{A+8}, v{A+8}, 1.0, s[{S_UP}:{S_UP+1}]")
            for j in (9, 10, 11):
                a(f"v_cndmask_b32 v{A+j}, v{A+j}, 0, s[{S_UP}:{S_UP+1}]")
            for q in range(6):
                a(f"v_cvt_pk_bf16_f32 v{A+q}, v{A+2*q}, v{A+2*q+1}")
            for j in range(12):
                row = 8*(j >> 2) + (j & 3)
                op = "ds_write_b16_d16_hi" if j & 1 else "ds_write_b16"
                a(f"{op} v1, v{A+(j>>1)} offset:{row*72}")
            for f in range(2):
                a(f"ds_read2_b64 {vr(A+8+4*f,4)}, v2 offset0:{4*f} offset1:{4*f+2}")
            a("s_waitcnt lgkmcnt(0)")
            for f in range(2):
                a(f"buffer_store_dwordx4 {vr(A+8+4*f,4)}, v{VLV}, s[{SWS}:{SWS+3}], s{T1} offen offset:{1280+672*f} sc1")
        a(f"{Ld}:")

    a(f"s_cmp_lg_u32 s{S_ISH}, 0")
    a(f"s_cbranch_scc1 L_q_lh")
    emit(bg_L())
    a("s_branch L_q_lx")
    a("L_q_lh:")
    emit(bg_H(late=True))
    a("L_q_lx:")
    a("s_waitcnt vmcnt(0)")
    a("s_barrier")
    a(f"s_cmp_eq_u32 s{S_ISH}, 0")
    a(f"s_cbranch_scc1 L_p2")
    a("s_mov_b64 exec, 1")
    a(f"v_mov_b32 v2, s{S_NON}")
    a(f"buffer_store_dword v2, v244, s[{SWS}:{SWS+3}], s{S_OFL} offen sc1")
    a("s_mov_b64 exec, -1")
    a(f"s_cmp_lg_u32 s{S_W}, 4")
    a(f"s_cbranch_scc1 L_p2")
    a(f"s_lshl_b32 s{T0}, s{S_TOK}, 2")
    a(f"s_lshl_b32 s{T1}, s{S_COL}, 7")
    a(f"s_add_u32 s{T0}, s{T0}, s{T1}")
    a(f"s_add_u32 s{T0}, s{T0}, {QFL_OFF}")
    a("s_mov_b64 exec, 1")
    a(f"v_mov_b32 v2, s{S_NON}")
    a(f"buffer_store_dword v2, v244, s[{SWS}:{SWS+3}], s{T0} offen sc1")
    a("s_mov_b64 exec, -1")
    def h_stores():
        Lx = lab("hs")
        a(f"s_cmp_ge_u32 s{S_IDX}, 24")
        a(f"s_cbranch_scc1 {Lx}")
        for b in range(2):
            for aa in range(2):
                a(f"buffer_store_dwordx4 {vr(64 + 16*(2*aa+b),4)}, v{VL16}, s[{SWS}:{SWS+3}], s{88+b} offen offset:{1024*aa} sc1")
        a(f"{Lx}:")
    a("L_p2:")
    if not SP: stamp(a, 3)
    a(f"v_mov_b32 v15, 1")
    a(f"v_mov_b32 v14, s{S_NON}")
    a(f"s_cmp_lg_u32 s{S_ISH}, 0")
    a(f"s_cbranch_scc1 L_attn")
    KQ = S_WQ
    S_OA, S_OB, S_M, S_IT = 78, 82, 80, 81
    VXR = 180
    ACC = lambda m: 64 + 16*m
    FA0 = 144
    FB = lambda s: 192 + 4*s
    make_srd(a, SA, P_WD, 1536*1280)
    make_srd(a, SB2, P_WS, WS_SIZE)
    make_srd(a, SC, P_OUT, 2048*1280)
    a(f"s_mul_i32 s{S_OA}, s{KQ}, {24*16*1280}")
    a(f"s_mul_i32 s{S_M}, s{KQ}, {RSZ}")
    a(f"s_mul_i32 s{S_OB}, s{S_TB}, 96")
    a(f"s_mul_i32 s{T0}, s{KQ}, 24")
    a(f"s_add_u32 s{S_OB}, s{S_OB}, s{T0}")
    a(f"s_lshl_b32 s{S_OB}, s{S_OB}, 10")
    a(f"s_add_u32 s{S_OB}, s{S_OB}, {HF_OFF}")
    S_RT = 83
    a(f"s_and_b32 s{S_RT}, s{S_TB}, 3")
    a(f"s_mul_i32 s{T0}, s{S_RT}, {6*16*1280}")
    a(f"s_add_u32 s{S_OA}, s{S_OA}, s{T0}")
    a(f"s_mul_i32 s{T0}, s{S_RT}, {6*1024}")
    a(f"s_add_u32 s{S_OB}, s{S_OB}, s{T0}")
    def dma_a(slot):
        a(f"s_add_u32 m0, s{S_M}, {slot*5120}")
        a(f"s_add_u32 s{T2}, s{S_M}, {slot*5120+4096}")
        for j in range(4):
            a(f"buffer_load_dwordx4 v{VD[j]}, s[{SA}:{SA+3}], s{S_OA} offen offset:{1024*j} lds")
        a(f"s_mov_b32 m0, s{T2}")
        a("s_nop 0")
        a(f"buffer_load_dwordx4 v{VD[4]}, s[{SA}:{SA+3}], s{S_OA} offen lds")
        a(f"s_add_u32 s{S_OA}, s{S_OA}, {16*1280}")
    def dma_a_list(slot):
        o = [[f"s_add_u32 m0, s{S_M}, {slot*5120}", f"s_add_u32 s{T2}, s{S_M}, {slot*5120+4096}",
              f"buffer_load_dwordx4 v{VD[0]}, s[{SA}:{SA+3}], s{S_OA} offen lds"]]
        for j in range(1, 4):
            o.append([f"buffer_load_dwordx4 v{VD[j]}, s[{SA}:{SA+3}], s{S_OA} offen offset:{1024*j} lds"])
        o.append([f"s_mov_b32 m0, s{T2}", "s_nop 0", f"buffer_load_dwordx4 v{VD[4]}, s[{SA}:{SA+3}], s{S_OA} offen lds", f"s_add_u32 s{S_OA}, s{S_OA}, {16*1280}"])
        return o
    def load_b(reg):
        a(f"buffer_load_dwordx4 {vr(reg,4)}, v{VL16}, s[{SB2}:{SB2+3}], s{S_OB} offen sc1")
        a(f"s_add_u32 s{S_OB}, s{S_OB}, 1024")
    if LATEH:
        lds_wait(28, 4, sleep=2)
        h_stores()
        a("s_nop 1")
        for m in range(5):
            zero_mfma(ACC(m), VZ)
    a("s_waitcnt vmcnt(0)")
    a(f"ds_write_b32 v{VFL}, v15")
    if SB: stamp(a, 1)
    for s_ in range(PRE0):
        dma_a(s_)
    if not LATEH:
        for m in range(5):
            zero_mfma(ACC(m), VZ)
    a(f"s_cmp_lg_u32 s{S_W}, 0")
    a(f"s_cbranch_scc1 L_l_ring")
    a(f"s_cmp_ge_u32 s{S_IDX}, 24")
    a(f"s_cbranch_scc1 L_l_ring")
    lds_wait(0, 8, sleep=1)
    if SB: stamp(a, 2)
    a(f"s_lshl_b32 s{T0}, s{S_TOK}, 4")
    a(f"s_lshl_b32 s{T1}, s{S_COL}, 7")
    a(f"s_add_u32 s{T0}, s{T0}, s{T1}")
    a(f"s_add_u32 s{T0}, s{T0}, {HFL_OFF}")
    a("s_mov_b64 exec, 1")
    a(f"buffer_store_dword v14, v{VZ}, s[{SWS}:{SWS+3}], s{T0} offen sc1")
    a("s_mov_b64 exec, -1")
    a("L_l_ring:")
    if "G" in ABL: endpgm(a, 0)
    lds_wait(28, 4, sleep=2)
    for s in range(PRE0, PD):
        dma_a(s)
        if PACE > 1: a("s_waitcnt vmcnt(2)")
    for m in range(5):
        a(f"buffer_load_dwordx2 {vr(VXR+2*m,2)}, v{VXO}, s[{SX}:{SX+3}], 0 offen offset:{64*m}")
        if PACE > 1: a("s_waitcnt vmcnt(1)")
    a(f"s_cmp_lg_u32 s{S_W}, 0")
    a(f"s_cbranch_scc1 L_l_pub")
    mbx_wait(1, 10)
    lds_set(18)
    a("L_l_pub:")
    lds_wait(18, sleep=8)
    for s in range(PD):
        load_b(FB(s))
    a(f"s_mov_b32 s{S_IT}, 0")
    a("s_waitcnt vmcnt(0)")
    if not SP: stamp(a, 4)
    a(".p2align 6")
    a("L_gloop:")
    def switch():
        a(f"s_add_u32 s{S_RT}, s{S_RT}, 1")
        a(f"s_cmp_eq_u32 s{S_RT}, 4")
        a(f"s_cselect_b32 s{T0}, {24*16*1280}, 0")
        a(f"s_cselect_b32 s{T1}, {24*1024}, 0")
        a(f"s_sub_u32 s{S_OA}, s{S_OA}, s{T0}")
        a(f"s_sub_u32 s{S_OB}, s{S_OB}, s{T1}")
        a(f"s_cmp_lt_u32 s{S_IT}, 3")
        a(f"s_cbranch_scc1 L_gl1")
        a(f"s_mov_b64 s[{SA}:{SA+1}], s[{P_WO}:{P_WO+1}]")
        a(f"s_mov_b32 s{SA+2}, {640*1280}")
        a(f"s_mov_b32 s{SB2+2}, 0")
        a(f"s_mul_i32 s{S_OA}, s{KQ}, {160*1280}")
        a("L_gl1:")
    def rd_a(dst, slot, va, nrow):
        for m in range(5):
            for n in range(2):
                a(f"ds_read_b64_tr_b16 {vr(dst+4*m+2*n,2)}, v{va} offset:{slot*5120 + n*nrow + m*64}")
    def mm(fa, fb):
        for m in range(5):
            a(f"v_mfma_f32_32x32x16_bf16 {vr(ACC(m),16)}, {vr(fa+4*m,4)}, {vr(fb,4)}, {vr(ACC(m),16)}")
    for s in range(RING):
        if s == RING - PD: switch()
        a(f"s_waitcnt vmcnt({6*(PD-1)})")
        if "R" not in ABL: rd_a(FA0, s, VAR, 2560)
        a("s_waitcnt lgkmcnt(0)")
        if PACE:
            dl = dma_a_list((s + PD) % RING)
            for m in range(5):
                a(f"v_mfma_f32_32x32x16_bf16 {vr(ACC(m),16)}, {vr(FA0+4*m,4)}, {vr(FB(s),4)}, {vr(ACC(m),16)}")
                emit([dl[m]])
            load_b(FB((s + PD) % RING))
            continue
        if "D" not in ABL: dma_a(s)
        if "M" not in ABL: mm(FA0, FB(s))
        if "D" not in ABL: load_b(FB(s))
    a(f"s_add_u32 s{S_IT}, s{S_IT}, 1")
    a(f"s_cmp_lt_u32 s{S_IT}, 4")
    a(f"s_cbranch_scc1 L_gloop")
    PRE = [144, 2, 22, 42]
    OB = lambda k: 192 + 4*k
    a(f"s_mov_b32 s{SB2+2}, {WS_SIZE}")
    a(f"s_mul_i32 s{S_OB}, s{S_TB}, 40")
    a(f"s_mul_i32 s{T0}, s{KQ}, 10")
    a(f"s_add_u32 s{S_OB}, s{S_OB}, s{T0}")
    a(f"s_lshl_b32 s{S_OB}, s{S_OB}, 10")
    a(f"s_add_u32 s{S_OB}, s{S_OB}, {OF_OFF}")
    a(f"s_add_u32 s{T0}, s{S_OB}, 4096")
    a(f"s_add_u32 s{T1}, s{S_OB}, 8192")
    for k in range(PD, RING):
        a("s_waitcnt vmcnt(2)")
        dma_a(k)
    a(f"s_waitcnt vmcnt({12 if PD == 6 else 0})")
    for k in range(4):
        rd_a(PRE[k], k, VAR2, 1280)
    a("s_waitcnt lgkmcnt(0)")
    for k in range(4):
        dma_a(k)
        if PACE > 1: a("s_waitcnt vmcnt(2)")
    for m in range(5):
        for q in range(2):
            a(f"v_lshlrev_b32 v{232+0}, 16, v{VXR+2*m+q}")
            a(f"v_and_b32 v{233}, 0xffff0000, v{VXR+2*m+q}")
            a(f"v_add_f32 v{ACC(m)+2*q}, v{ACC(m)+2*q}, v232")
            a(f"v_add_f32 v{ACC(m)+2*q+1}, v{ACC(m)+2*q+1}, v233")
    a(f"v_mov_b32 v232, {FL_OFF + 80}")
    a("L_ow:")
    a("ds_read_b128 v[236:239], v232")
    a("s_waitcnt lgkmcnt(0)")
    a(f"v_bitop3_b32 v236, v236, v237, v238 bitop3:{'0x80' if HINT == 2 else '0xfe'}")
    a(f"{'v_and_b32' if HINT == 2 else 'v_or_b32'} v236, v236, v239")
    a("s_nop 0")
    a(f"v_readfirstlane_b32 s{T4}, v236")
    a("s_nop 0")
    a(f"s_cmp_eq_u32 s{T4}, 1")
    a(f"s_cbranch_scc1 L_owd")
    a("s_sleep 4")
    a(f"s_branch L_ow")
    a("L_owd:")
    a(f"s_mov_b32 s{T5}, 0")
    def ld_o(k):
        a(f"buffer_load_dwordx4 {vr(OB(k),4)}, v{VL16}, s[{SB2}:{SB2+3}], s{[S_OB, T0, T1][k >> 2]} offen offset:{1024*(k & 3)} sc1")
    for k in range(10):
        ld_o(k)
    for k in range(10):
        a(f"s_waitcnt vmcnt({9-k})")
        a(f"L_oc{k}:")
        a(f"v_max3_u32 v232, v{OB(k)}, v{OB(k)+1}, v{OB(k)+2}")
        a(f"v_max_u32 v232, v232, v{OB(k)+3}")
        a(f"v_cmp_eq_u32 vcc, -1, v232")
        if k >= 4:
            a(f"s_waitcnt lgkmcnt({min(15, 10*min(3, 9-k))})")
        a("s_cmp_lg_u64 vcc, 0")
        a(f"s_cbranch_scc1 L_or{k}")
        a(f"L_og{k}:")
        if k == 0 and STAMPS and not SB and not SP: a("s_memtime s[6:7]")
        mm(PRE[k & 3], OB(k))
        if k + 4 < 10:
            kk = k + 4
            rd_a(PRE[k & 3], kk if kk < 6 else kk - 6, VAR2, 1280)
    if STAMPS and not SB and not SP: a("s_memtime s[8:9]")
    a(f"v_mov_b32 v15, 1")
    a(f"v_mov_b32 v12, {FL_OFF+48}")
    a("s_nop 5")
    for m in range(5):
        for i in range(1, 4):
            a(f"ds_write_b128 v{VRW}, {vr(ACC(m)+4*i,4)} offset:{((i-1)*5+m)*1024}")
    a("s_waitcnt lgkmcnt(0)")
    a(f"ds_write_b32 v{VFL}, v15 offset:48")
    a("L_gpoll:")
    a(f"ds_read_b128 v[4:7], v12")
    a("s_waitcnt lgkmcnt(0)")
    a("v_bitop3_b32 v4, v4, v5, v6 bitop3:0x80")
    a("v_and_b32 v4, v4, v7")
    a("s_nop 0")
    a(f"v_readfirstlane_b32 s{T0}, v4")
    a("s_nop 0")
    a(f"s_cmp_eq_u32 s{T0}, 1")
    a(f"s_cbranch_scc0 L_gpoll")
    for m in range(5):
        for i in range(1, 4):
            a(f"ds_read_b128 {vr(ACC(m)+4*i,4)}, v{VRD[i]} offset:{((i-1)*5+m)*1024}")
    for m in range(5):
        A = ACC(m)
        a(f"s_waitcnt lgkmcnt({12-3*m})")
        for h2 in range(2):
            a(f"v_pk_add_f32 {vr(A+2*h2,2)}, {vr(A+2*h2,2)}, {vr(A+4+2*h2,2)}")
            a(f"v_pk_add_f32 {vr(A+8+2*h2,2)}, {vr(A+8+2*h2,2)}, {vr(A+12+2*h2,2)}")
        for h2 in range(2):
            a(f"v_pk_add_f32 {vr(A+2*h2,2)}, {vr(A+2*h2,2)}, {vr(A+8+2*h2,2)}")
        a(f"v_cvt_pk_bf16_f32 v{A}, v{A}, v{A+1}")
        a(f"v_cvt_pk_bf16_f32 v{A+1}, v{A+2}, v{A+3}")
        a(f"buffer_store_dwordx2 {vr(A,2)}, v{VXO}, s[{SC}:{SC+3}], 0 offen offset:{64*m}")
    endpgm(a, 0)

    for k in range(10):
        a(f"L_or{k}:")
        a("s_waitcnt vmcnt(0)")
        if RSL: a(f"s_sleep {RSL}")
        for j in range(k, 10): ld_o(j)
        a(f"s_add_u32 s{T5}, s{T5}, 1")
        a(f"s_cmp_lt_u32 s{T5}, {SPIN_MAX}")
        a(f"s_waitcnt vmcnt({9-k})")
        a(f"s_cbranch_scc1 L_oc{k}")
        a(f"s_branch L_og{k}")

    S_IT = 78
    def load_kv(r):
        a(f"buffer_load_dwordx4 {vr(K1(r),4)}, v{VL16}, s[{SWS}:{SWS+3}], s{S_KV} offen sc1")
        a(f"buffer_load_dwordx2 {vr(K2(r),2)}, v{VL8}, s[{SWS}:{SWS+3}], s{S_KV} offen offset:1024 sc1")
        a(f"buffer_load_dwordx4 {vr(V1(r),4)}, v{VLV}, s[{SWS}:{SWS+3}], s{S_KV} offen offset:1280 sc1")
        a(f"buffer_load_dwordx4 {vr(V2(r),4)}, v{VLV}, s[{SWS}:{SWS+3}], s{S_KV} offen offset:1952 sc1")
        a(f"s_add_u32 s{S_KV}, s{S_KV}, {KVS}")
    a("L_attn_loads:")
    a(f"s_mul_i32 s{T0}, s{S_TB}, 40960")
    for d in (Q1(0), Q1(0)+2, Q2(0)):
        a(f"buffer_load_dwordx2 {vr(d,2)}, v{d}, s[{SWS}:{SWS+3}], s{T0} offen sc1")
    load_kv(0)
    for q in range(1, 4):
        for d in (Q1(q), Q1(q)+2, Q2(q)):
            a(f"buffer_load_dwordx2 {vr(d,2)}, v{d}, s[{SWS}:{SWS+3}], s{T0} offen sc1")
    for r in range(1, 3):
        load_kv(r)
    a(f"s_setpc_b64 s[{T4}:{T5}]")

    a("L_attn:")
    for q in range(4):
        zero_mfma(O(q), V2(3))
    a(f"s_cmp_eq_u32 s{S_EARLY}, 1")
    a(f"s_cbranch_scc1 L_attn_go")
    if not LATEH:
        a("s_waitcnt vmcnt(0)")
        a(f"ds_write_b32 v{VFL}, v15")
    if SB: stamp(a, 1)
    a(f"s_cmp_lg_u32 s{S_W}, 4")
    a(f"s_cbranch_scc1 L_attn_w")
    mbx_wait(0, 1)
    lds_set(17)
    a("L_attn_w:")
    lds_wait(17, sleep=1)
    if SB: stamp(a, 2)
    a(f"s_call_b64 s[{T4}:{T5}], L_attn_loads")
    a("L_attn_go:")
    if LATEH: h_stores()
    a(f"s_lshl_b32 s{T0}, s2, 3")
    a(f"s_add_u32 s{T0}, s{T0}, s{S_WQ}")
    a(f"s_cmp_lg_u32 s{T0}, 0")
    a(f"s_cbranch_scc1 L_attn_g2")
    a(f"s_mov_b32 s{T0}, {EPOCH_OFF}")
    a("v_mov_b32 v2, 0")
    a("s_mov_b64 exec, 1")
    a(f"buffer_store_dword v14, v2, s[{SWS}:{SWS+3}], s{T0} offen sc1")
    a("s_mov_b64 exec, -1")
    a("L_attn_g2:")
    for r in range(P1, P1+4):
        a(f"v_mov_b32 v{r}, 0")
    a(f"s_mov_b32 s{S_IT}, 0")
    a("s_waitcnt vmcnt(17)")
    a(f"ds_write_b32 v{VFL}, v15 offset:96")
    if not SP: stamp(a, 4)
    def qk1(buf, r, q): a(f"v_mfma_f32_32x32x16_bf16 {vr(S(buf),16)}, {vr(K1(r),4)}, {vr(Q1(q),4)}, 0")
    def qk2(buf, r, q): a(f"v_mfma_f32_32x32x8_bf16 {vr(S(buf),16)}, {vr(K2(r),2)}, {vr(Q2(q),2)}, {vr(S(buf),16)}")
    def pv(q, vreg, preg): a(f"v_mfma_f32_32x32x16_bf16 {vr(O(q),16)}, {vr(vreg,4)}, {vr(preg,4)}, {vr(O(q),16)}")
    def E(buf, i0):
        for i in range(i0, i0+4): a(f"v_exp_f32 v{S(buf)+i}, v{S(buf)+i}")
    def C(dst, buf, i): a(f"v_cvt_pk_bf16_f32 v{dst}, v{S(buf)+i}, v{S(buf)+i+1}")
    qk1(0, 0, 0); qk2(0, 0, 0)
    a("s_nop 10")
    a(".p2align 6")
    a("L_aloop:")
    for r in [x & 3 for x in range(4*AUN)]:
        for q in range(4):
            buf = q & 1; nb = buf ^ 1
            nr, nq = (r, q+1) if q < 3 else ((r+1) & 3, 0)
            pr, pq = (r, q-1) if q > 0 else ((r-1) & 3, 3)
            if r == 0 and q < 3:
                a(f"s_waitcnt vmcnt({[14, 15, 12][q]})")
            if q == 3:
                a("s_waitcnt vmcnt(8)")
                if r == 1:
                    a(f"ds_write_b32 v{VFL}, v15")
            qk1(nb, nr, nq); E(buf, 0)
            pv(pq, V2(pr), P1); C(P0, buf, 0); C(P0+1, buf, 2)
            if q == 0:
                load_kv((r+3) & 3)
            E(buf, 4)
            qk2(nb, nr, nq); C(P0+2, buf, 4); C(P0+3, buf, 6); E(buf, 8)
            pv(q, V1(r), P0); C(P1, buf, 8); C(P1+1, buf, 10); E(buf, 12); C(P1+2, buf, 12); C(P1+3, buf, 14)
    a(f"s_add_u32 s{S_IT}, s{S_IT}, 1")
    a(f"s_cmp_lt_u32 s{S_IT}, {8//AUN}")
    a(f"s_cbranch_scc1 L_aloop")
    if HINT == 0: a(f"ds_write_b32 v{VFL}, v15 offset:64")
    else: a("s_nop 0")
    pv(3, V2(3), P1)
    if STAMPS and not SB and not SP: a("s_memtime s[6:7]")
    for i in range(3):
        a(f"ds_write_b128 v{VCW}, {vr(O(2)+4*i,4)} offset:{1024*i}")
    a("s_nop 9")
    for i in range(3):
        a(f"ds_write_b128 v{VCW}, {vr(O(3)+4*i,4)} offset:{4096+1024*i}")
    a("s_waitcnt lgkmcnt(0)")
    a(f"ds_write_b32 v{VFL}, v15 offset:16")
    a("L_apoll:")
    a(f"ds_read_b32 v2, v{VFR} offset:16")
    a("s_waitcnt lgkmcnt(0)")
    a(f"v_readfirstlane_b32 s{T0}, v2")
    a("s_nop 0")
    a(f"s_cmp_eq_u32 s{T0}, 1")
    a(f"s_cbranch_scc0 L_apoll")
    for q in range(2):
        for i in range(3):
            a(f"ds_read_b128 {vr(O(2+q)+4*i,4)}, v{VCR} offset:{4096*q+1024*i}")
    for q in range(2):
        a(f"s_waitcnt lgkmcnt({3-3*q})")
        for j in range(0, 12, 2):
            a(f"v_pk_add_f32 {vr(O(q)+j,2)}, {vr(O(q)+j,2)}, {vr(O(2+q)+j,2)}")
    def get_l():
        for q in range(2):
            a(f"v_mov_b32 v{4+2*q}, v{O(q)+8}")
            a(f"v_mov_b32 v{5+2*q}, v{O(q)+8}")
        a("s_nop 0")
        for q in range(2):
            a(f"v_permlane32_swap_b32 v{5+2*q}, v{4+2*q}")
    get_l()
    a(f"v_mov_b32 v2, 0")
    a(f"v_mov_b32 v3, 0")
    a(f"v_mov_b32 v8, 0")
    for q in range(2):
        for j in range(0, 12, 2):
            a(f"v_pk_fma_f32 v[2:3], {vr(O(q)+j,2)}, v[8:9], v[2:3] op_sel_hi:[1,0,1]")
    a(f"v_min_f32 v10, v4, v6")
    a(f"v_max_f32 v11, v4, v6")
    a(f"v_fmac_f32 v2, 0, v4")
    a(f"v_fmac_f32 v3, 0, v6")
    a(f"v_cmp_le_f32 vcc, 0x1f800000, v10")
    a(f"s_mov_b64 s[{T0}:{T1}], vcc")
    a(f"v_cmp_ge_f32 vcc, 0x5f800000, v11")
    a(f"s_and_b64 s[{T0}:{T1}], s[{T0}:{T1}], vcc")
    a(f"v_cmp_o_f32 vcc, v2, v3")
    a(f"s_and_b64 s[{T0}:{T1}], s[{T0}:{T1}], vcc")
    a(f"s_cmp_eq_u64 s[{T0}:{T1}], exec")
    a("s_branch L_fb" if force_fallback else "s_cbranch_scc0 L_fb")
    a("L_norm:")
    for q in range(2):
        a(f"v_rcp_f32 v{4+2*q}, v{4+2*q}")
    a("s_nop 0")
    for q in range(2):
        for j in range(0, 12, 2):
            a(f"v_pk_mul_f32 {vr(O(q)+j,2)}, {vr(O(q)+j,2)}, {vr(4+2*q,2)} op_sel_hi:[1,0]")
    A_, B_ = O(0), O(1)
    def cvs(d, x):
        a(f"v_cvt_pk_bf16_f32 v{d}, v{x}, v{x+1}")
    for k in range(4): cvs(A_+k, A_+2*k)
    for k in range(4): a(f"v_min_u32 v{A_+k}, -2, v{A_+k}")
    for k in (4, 5): cvs(A_+k, A_+2*k)
    a(f"v_permlane32_swap_b32 v{A_}, v{A_+2}")
    a(f"v_permlane32_swap_b32 v{A_+1}, v{A_+3}")
    cvs(A_+6, B_); cvs(A_+7, B_+2)
    a(f"buffer_store_dwordx4 {vr(A_,4)}, v{VL16}, s[{SWS}:{SWS+3}], s{S_OO} offen sc1")
    cvs(B_, B_+4); cvs(B_+1, B_+6); cvs(B_+4, B_+8); cvs(B_+5, B_+10)
    for r in (A_+4, A_+5, A_+6, A_+7, B_, B_+1, B_+4, B_+5):
        a(f"v_min_u32 v{r}, -2, v{r}")
    a(f"v_cndmask_b32 v{A_+4}, v{A_+4}, v{A_+6}, s[{S_UP}:{S_UP+1}]")
    a(f"v_cndmask_b32 v{A_+5}, v{A_+5}, v{A_+7}, s[{S_UP}:{S_UP+1}]")
    a(f"v_permlane32_swap_b32 v{A_+6}, v{B_}")
    a(f"v_permlane32_swap_b32 v{A_+7}, v{B_+1}")
    a(f"v_permlane32_swap_b32 v{B_+2}, v{B_+4}")
    a(f"v_permlane32_swap_b32 v{B_+3}, v{B_+5}")
    a(f"buffer_store_dwordx4 {vr(A_+4,4)}, v{VL16}, s[{SWS}:{SWS+3}], s{S_OO} offen offset:1024 sc1")
    a("s_mov_b32 exec_lo, 0")
    a(f"buffer_store_dwordx4 {vr(B_,4)}, v{VL16}, s[{SWS}:{SWS+3}], s{S_OO} offen offset:1536 sc1")
    a("s_mov_b64 exec, -1")
    if HINT: a(f"ds_write_b32 v{VFL}, v15 offset:64")
    endpgm(a, 0)
    a("L_fb:")
    a("s_waitcnt vmcnt(0)")
    a(f"v_mov_b32 v4, 0xff800000")
    a(f"v_mov_b32 v5, 0xff800000")
    a(f"s_mov_b32 s{S_KV}, {KVF_OFF}")
    a(f"s_mov_b32 s{S_IT}, 0")
    a("L_fb1:")
    load_kv(0)
    a("s_waitcnt vmcnt(0)")
    for q in range(2):
        qk1(q, 0, q); qk2(q, 0, q)
    a("s_nop 15")
    for q in range(2):
        for j in range(0, 16, 2):
            a(f"v_max3_f32 v{4+q}, v{S(q)+j}, v{S(q)+j+1}, v{4+q}")
    a(f"s_add_u32 s{S_IT}, s{S_IT}, 1")
    a(f"s_cmp_lt_u32 s{S_IT}, 64")
    a(f"s_cbranch_scc1 L_fb1")
    for q in range(2):
        a(f"v_mov_b32 v6, v{4+q}")
        a("s_nop 1")
        a(f"v_permlane32_swap_b32 v6, v{4+q}")
        a("s_nop 1")
        a(f"v_max_f32 v6, v6, v{4+q}")
        a(f"v_sub_f32 v6, 0, v6")
        a(f"v_cvt_pk_bf16_f32 v7, v6, v6")
        a(f"v_lshlrev_b32 v7, 16, v7")
        a(f"v_sub_f32 v8, v6, v7")
        a(f"v_cvt_pk_bf16_f32 v7, v7, v8")
        a(f"v_cndmask_b32 v{Q2(q)}, v{Q2(q)}, v7, s[{S_UP}:{S_UP+1}]")
        for j in range(16):
            a(f"v_mov_b32 v{O(q)+j}, 0")
    a(f"s_mov_b32 s{S_KV}, {KVF_OFF}")
    a(f"s_mov_b32 s{S_IT}, 0")
    a("v_mov_b32 v9, 0x3f803f80")
    a("L_fb2:")
    load_kv(0)
    a("s_waitcnt vmcnt(0)")
    a(f"v_cndmask_b32 v{K2(0)}, v{K2(0)}, v9, s[{S_UP}:{S_UP+1}]")
    a("s_nop 1")
    for q in range(2):
        qk1(q, 0, q); qk2(q, 0, q)
    a("s_nop 15")
    for q in range(2):
        for i0 in range(0, 16, 4): E(q, i0)
        a("s_nop 0")
        for k in range(4): C(P0+k, q, 2*k)
        for k in range(4): C(P1+k, q, 8+2*k)
        a("s_nop 1")
        pv(q, V1(0), P0); pv(q, V2(0), P1)
    a(f"s_add_u32 s{S_IT}, s{S_IT}, 1")
    a(f"s_cmp_lt_u32 s{S_IT}, 64")
    a(f"s_cbranch_scc1 L_fb2")
    a("s_nop 15")
    get_l()
    a("s_nop 1")
    a("s_branch L_norm")
    a("L_end:")
    a("s_endpgm")
    return a, kernel_desc(name, 256)

def build(force_fallback=False):
    hdr = open("cdna_kernels/%s.s.ref" % NAME).read().split("\n")
    hdr = [l for l in hdr if l.startswith(";") and "@launch" not in l and "Override" not in l and "grid=ceil" not in l]
    body, desc = gen(NAME + "_kernel", force_fallback)
    out = "\n".join(hdr) + "\n"
    out += f"; @launch grid=(256,1,1) block=(512,1,1) lds={LDS_BYTES}\n"
    out += '.amdgcn_target "amdgcn-amd-amdhsa--gfx950"\n.text\n'
    out += body.text()
    out += '.section .rodata,"a"\n' + desc
    return out

if __name__ == "__main__":
    out = sys.argv[1] if len(sys.argv) > 1 else "cdna_kernels/%s.s" % NAME
    open(out, "w").write(build("fb" in sys.argv[2:]))
    print("wrote", out)
```

```python
from common import *
import math, sys

STF_OFF = 0x2F0000
QFL_OFF, HFL_OFF = 0x2D0000, 0x2D4000
MBX_OFF = 0x2D0000
EPOCH_OFF = 0x2FF000
OFL_OFF = 0x2F8000
STG = 49408
RING = 6
RSZ = RING * 5120
CB_OFF = 4 * RSZ
CS_OFF = CB_OFF
ST_OFF = 3 * STG
VT_OFF = CB_OFF + 8192
FL_OFF = CB_OFF + 32768
LDS_BYTES = FL_OFF + 256
G_OFF, U_REL = 32768, 8256
KVS = 2688 if os.environ.get("KVC", "1") == "1" else 3584
QSCALE = math.log2(math.e) / math.sqrt(20.0)
SPIN_MAX = 1 << 18
ABL = os.environ.get("ABL", "")
SB = "B" in ABL
SP = "P" in ABL
PACE = int(os.environ.get("PACE", "2"))
PRE0 = int(os.environ.get("PRE0", "0"))
LATEH = int(os.environ.get("LATEH", "1"))
PGT = int(os.environ.get("PGT", "0"))
QF1 = int(os.environ.get("QF1", "1"))
PD = int(os.environ.get("PD", "6"))
PW1 = int(os.environ.get("PW1", "2"))
DBA = int(os.environ.get("DBA", "0"))
KVW = int(os.environ.get("KVW", "8"))
LPRIO = int(os.environ.get("LPRIO", "0"))
COAL = int(os.environ.get("COAL", "1"))
GENTLE = int(os.environ.get("GENTLE", "1"))
TW = [int(x) for x in os.environ.get("TW", "").split(",") if x]
A3 = int(os.environ.get("A3", "1"))
AUN = int(os.environ.get("AUN", "1"))
KVC = int(os.environ.get("KVC", "1"))
HINT = int(os.environ.get("HINT", "2"))
RSL = int(os.environ.get("RSL", "4"))

S_W = 3
SX, SWS, SDBG, SA, SB2, SC, SD = 40, 44, 48, 52, 56, 60, 88
S_TH, S_CG, S_IDX, S_WQ, S_ISH, S_TB, S_G, S_TOK = 64, 65, 66, 67, 68, 69, 70, 71
T0, T1, T2, T3, T4, T5 = 72, 73, 74, 75, 76, 77
S_I, S_DB, S_RB, S_OX, S_OW, S_O2, S_O3, S_ST2 = 78, 79, 80, 81, 82, 83, 84, 85
S_EARLY, S_COL = 86, 87
S_UP = 92
S_MBX, S_ROT, S_MH, S_DL = 99, 100, 101, 98
S_NON = 79
S_OO = 56
S_OFL, S_KV, S_H0, S_K2 = 52, 53, 54, 55
VL, VT, VH, VL16, VL8, VF, VFL = 250, 251, 252, 253, 254, 249, 248
VLV = 0
VZ = 244
FBASE = [32, 48, 128, 144]
CSA = 26

def gen(name, force_fallback=False):
    a = Asm()
    kernel_begin(a, name)
    uid = [0]
    def lab(s):
        uid[0] += 1
        return f"L{uid[0]}_{s}"
    def emit(ch):
        for c in ch:
            for l in c: a(l)
    def lds_set(idx):
        a(f"v_mov_b32 v2, {FL_OFF + 4*idx}")
        a(f"v_mov_b32 v3, 1")
        a(f"ds_write_b32 v2, v3")
    def lds_wait(idx, n=1, sleep=1):
        L = lab("lw")
        a(f"v_mov_b32 v2, {FL_OFF + 4*idx}")
        a(f"{L}:")
        if n == 1:
            a("ds_read_b32 v4, v2")
            a("s_waitcnt lgkmcnt(0)")
        else:
            a("ds_read_b128 v[4:7], v2")
            if n == 8: a("ds_read_b128 v[8:11], v2 offset:16")
            a("s_waitcnt lgkmcnt(0)")
            a("v_bitop3_b32 v4, v4, v5, v6 bitop3:0x80")
            if n == 8:
                a("v_bitop3_b32 v8, v8, v9, v10 bitop3:0x80")
                a("v_bitop3_b32 v4, v4, v8, v11 bitop3:0x80")
            a("v_and_b32 v4, v4, v7")
            a("s_nop 0")
        a(f"v_readfirstlane_b32 s{T4}, v4")
        a("s_nop 0")
        a(f"s_cmp_eq_u32 s{T4}, 1")
        a(f"s_cbranch_scc1 {L}_d")
        a(f"s_sleep {sleep}")
        a(f"s_branch {L}")
        a(f"{L}_d:")
    def mbx_load(line):
        if line == 0:
            a(f"s_lshr_b32 s{T1}, s{S_TB}, 2")
            a(f"s_lshl_b32 s{T1}, s{T1}, 9")
            a(f"v_and_b32 v2, 3, v{VL}")
            a(f"v_lshl_add_u32 v2, v2, 7, s{T1}")
            a(f"v_and_b32 v3, 15, v{VL}")
            a(f"v_lshlrev_b32 v3, 9, v3")
            a(f"v_add_u32 v3, 384, v3")
            a(f"s_mov_b32 s{T0}, {QFL_OFF}")
            a(f"v_cndmask_b32 v2, v3, v2, s[{S_UP}:{S_UP+1}]")
        else:
            a(f"s_and_b32 s{T0}, s2, 7")
            a(f"s_lshl_b32 s{T0}, s{T0}, 12")
            a(f"s_add_u32 s{T0}, s{T0}, {HFL_OFF}")
            a(f"s_lshl_b32 s{T1}, s{S_TB}, 7")
            a(f"s_add_u32 s{T1}, s{T1}, {OFL_OFF}")
            a(f"s_sub_u32 s{T1}, s{T1}, s{T0}")
            a(f"v_and_b32 v2, 15, v{VL}")
            a(f"v_lshl_add_u32 v2, v2, 2, s{T1}")
            a(f"v_min_u32 v3, 23, v{VL}")
            a(f"v_lshlrev_b32 v3, 7, v3")
            a(f"v_cndmask_b32 v2, v3, v2, s[{S_UP}:{S_UP+1}]")
        a(f"buffer_load_dword v{VF}, v2, s[{SWS}:{SWS+3}], s{T0} offen sc1")
    def mbx_test():
        a(f"v_cmp_ne_u32 vcc, s{S_NON}, v{VF}")
        a("s_cmp_eq_u64 vcc, 0")
    def mbx_wait(line, sleep):
        L, D = lab("spin"), lab("done")
        a(f"s_mov_b32 s{T5}, 0")
        mbx_load(line)
        a(f"{L}:")
        a(f"s_add_u32 s{T5}, s{T5}, 1")
        a("s_waitcnt vmcnt(0)")
        mbx_test()
        a(f"s_cbranch_scc1 {D}")
        a(f"s_sleep {sleep}")
        a(f"buffer_load_dword v{VF}, v2, s[{SWS}:{SWS+3}], s{T0} offen sc1")
        a(f"s_cmp_lt_u32 s{T5}, {SPIN_MAX}")
        a(f"s_cbranch_scc1 {L}")
        a(f"{D}:")
    def zero_mfma(dst, z):
        a(f"v_mfma_f32_32x32x16_bf16 {vr(dst,16)}, {vr(z,4)}, {vr(z,4)}, 0")

    O = lambda q: [32, 48, 128, 144][q]
    S = lambda p: 64 + 16*p
    P0, P1 = 96, 100
    Q1 = lambda q: 168 + 4*q
    Q2 = lambda q: 184 + 2*q
    KVB = lambda r: 192 + 14*r
    K1 = lambda r: KVB(r); V1 = lambda r: KVB(r)+4; V2 = lambda r: KVB(r)+8; K2 = lambda r: KVB(r)+12
    VCW, VCR, VCW4, VCR4, VFR = 22, 23, 24, 25, 255
    VD = [168, 169, 170, 171, 172]
    VAR, VAR2, VR0, VR1, VXO, VRW = 173, 174, 175, 176, 177, 178
    VX = [22, 23]; VW, VW2, VW3 = 24, 25, 190

    a("s_cmp_ge_u32 s2, 256")
    a("s_cbranch_scc1 L_end")
    load_kernargs(a)
    a(f"s_getpc_b64 s[{T0}:{T1}]")
    a("L_pc:")
    a(f"v_lshlrev_b32 v1, 7, v0")
    a(f"v_min_u32 v1, L_end-L_pc, v1")
    a(f"global_load_dword v{VF}, v1, s[{T0}:{T1}]")
    a("v_lshrrev_b32 v1, 6, v0")
    a(f"v_and_b32 v{VL}, 63, v0")
    a(f"v_readfirstlane_b32 s{S_W}, v1")
    a(f"s_and_b32 s{T0}, s2, 7")
    a(f"s_lshr_b32 s{S_IDX}, s2, 3")
    if QF1:
        a(f"s_add_u32 s{S_IDX}, s{S_IDX}, 24")
        a(f"s_and_b32 s{S_IDX}, s{S_IDX}, 31")
    a(f"s_and_b32 s{S_TH}, s{T0}, 1")
    a(f"s_lshr_b32 s{S_CG}, s{T0}, 1")
    a(f"s_and_b32 s{S_WQ}, s{S_W}, 3")
    a(f"s_lshr_b32 s{S_ISH}, s{S_W}, 2")
    a(f"s_lshl_b32 s{S_TOK}, s{S_TH}, 2")
    a(f"s_and_b32 s{T1}, s{S_IDX}, 3")
    a(f"s_add_u32 s{S_TOK}, s{S_TOK}, s{T1}")
    a(f"s_lshl_b32 s{S_TOK}, s{S_TOK}, 8")
    a(f"s_mul_i32 s{S_COL}, s{S_CG}, 6")
    a(f"s_lshr_b32 s{T1}, s{S_IDX}, 2")
    a(f"s_add_u32 s{S_COL}, s{S_COL}, s{T1}")
    a(f"s_lshl_b32 s{T1}, s{S_TH}, 3")
    a(f"s_add_u32 s{T1}, s{T1}, s{S_IDX}")
    a(f"s_sub_u32 s{T1}, s{T1}, 24")
    a(f"s_lshl_b32 s{T1}, s{T1}, 7")
    a(f"s_cmp_lt_u32 s{S_IDX}, 24")
    a(f"s_cselect_b32 s{S_TOK}, s{S_TOK}, s{T1}")
    a(f"s_cselect_b32 s{S_COL}, s{S_COL}, s{S_CG}")
    a(f"s_cselect_b32 s{T1}, 6, 5")
    a(f"v_and_b32 v{VT}, 31, v0")
    a(f"v_bfe_u32 v{VH}, v0, 5, 1")
    a(f"s_cmp_lg_u32 s{S_ISH}, 0")
    a(f"s_cbranch_scc1 L_p0_h")
    a(f"v_lshrrev_b32 v1, 3, v{VL}")
    a(f"v_lshrrev_b32 v2, 4, v{VL}")
    a(f"v_and_b32 v4, 7, v{VL}")
    a(f"v_xor_b32 v3, v2, v4")
    a(f"s_lshl_b32 s{T2}, s{S_WQ}, s{T1}")
    a(f"s_add_u32 s{T2}, s{T2}, s{S_TOK}")
    a(f"v_add_u32 v5, s{T2}, v1")
    a(f"v_mul_u32_u24 v5, 1280, v5")
    a(f"v_lshl_add_u32 v{VX[0]}, v3, 4, v5")
    a(f"v_xor_b32 v3, 4, v3")
    a(f"v_lshl_add_u32 v{VX[1]}, v3, 4, v5")
    S_MX, S_MW = S_OX, S_RB
    S_RX, S_RW = 86, 99
    a(f"s_mul_i32 s{T2}, s{S_IDX}, 3")
    a(f"s_mul_i32 s{T3}, s{T2}, 205")
    a(f"s_lshr_b32 s{T3}, s{T3}, 11")
    a(f"s_mul_i32 s{T3}, s{T3}, 10")
    a(f"s_sub_u32 s{S_RW}, s{T2}, s{T3}")
    if "0" not in ABL: a(f"s_mov_b32 s{S_RW}, 0")
    if "1" not in ABL and "0" not in ABL:
        a(f"s_lshr_b32 s{T2}, s{S_IDX}, 2")
        a(f"s_xor_b32 s{T2}, s{T2}, s{S_IDX}")
        a(f"s_and_b32 s{T2}, s{T2}, 1")
        a(f"s_mul_i32 s{S_RW}, s{T2}, 5")
    S_RX = 82
    a(f"s_lshl_b32 s{S_RX}, s{S_RW}, 7")
    a(f"s_cmp_lt_u32 s{S_IDX}, 24")
    a(f"s_cbranch_scc0 L_q_l")
    a(f"v_and_b32 v2, 1, v2")
    a(f"v_lshlrev_b32 v2, 1, v2")
    a(f"v_xor_b32 v4, v4, v2")
    a(f"s_lshl_b32 s{T2}, s{S_WQ}, 4")
    a(f"v_add_u32 v1, s{T2}, v1")
    a(f"v_mul_u32_u24 v1, 3072, v1")
    a(f"v_lshl_add_u32 v1, v4, 4, v1")
    a(f"s_lshl_b32 s{T2}, s{S_COL}, 7")
    a(f"v_add_u32 v{VW}, s{T2}, v1")
    a(f"s_lshl_b32 s{S_MX}, s{S_WQ}, 13")
    a(f"s_lshl_b32 s{S_MW}, s{S_WQ}, 11")
    a(f"s_mul_i32 s{S_RW}, s{S_RW}, {64*3072}")
    a("s_waitcnt lgkmcnt(0)")
    make_srd(a, SX, P_X, 2048*1280)
    make_srd(a, SA, P_WG, 640*3072)
    make_srd(a, SB2, P_WU, 640*3072)
    if TW:
        make_srd(a, SC, P_WO, 640*1280)
        a(f"v_lshlrev_b32 v190, 7, v{VL}")
    def dma_gu(st):
        db = (st % 3) * STG
        ch = []
        for j in (0, 1, 2, 3, 8, 9, 4, 5, 6, 7, 10, 11):
            c = []
            if j < 8:
                if j in (0, 4):
                    c += [f"s_add_u32 m0, s{S_MX}, {db + 4096*(j>>2)}"]
                c += [f"s_add_u32 s{T3}, s{S_RX}, {j*10240 - 1024*(j&3)}",
                      f"buffer_load_dwordx4 v{VX[j&1]}, s[{SX}:{SX+3}], s{T3} offen offset:{1024*(j&3)} lds"]
            else:
                srd = SA if j < 10 else SB2
                if j in (8, 10):
                    c += [f"s_add_u32 m0, s{S_MW}, {db + G_OFF + (U_REL if j == 10 else 0)}"]
                c += [f"s_add_u32 s{T3}, s{S_RW}, {(j&1)*(8*3072-1024)}",
                      f"buffer_load_dwordx4 v{VW}, s[{srd}:{srd+3}], s{T3} offen offset:{1024*(j&1)} lds"]
                if j == 11:
                    c += [f"s_add_u32 s{S_RX}, s{S_RX}, 128", f"s_add_u32 s{S_RW}, s{S_RW}, {64*3072}", f"s_cmp_eq_u32 s{S_RX}, 1280",
                          f"s_cselect_b32 s{S_RX}, 0, s{S_RX}", f"s_cselect_b32 s{S_RW}, 0, s{S_RW}"]
            ch.append(c)
        return ch
    if SP: stamp(a, 1)
    emit(dma_gu(0))
    if SP: stamp(a, 2)
    a("s_branch L_common")
    a("L_q_l:")
    EX1, EX2, S_M2 = 60, 62, 79
    a(f"s_cmp_eq_u32 s{S_COL}, 3")
    a(f"s_cselect_b32 s{T0}, 40, 1280")
    a(f"s_lshl_b32 s{S_ST2}, s{T0}, 6")
    a(f"v_and_b32 v2, 1, v2")
    a(f"v_lshlrev_b32 v2, 2, v2")
    a(f"v_xor_b32 v4, v4, v2")
    a(f"s_lshl_b32 s{T1}, s{S_WQ}, 4")
    a(f"v_add_u32 v1, s{T1}, v1")
    a(f"v_mul_u32_u24 v3, 1280, v1")
    a(f"v_lshl_add_u32 v3, v4, 4, v3")
    a(f"s_mul_i32 s{T2}, s{S_COL}, 384")
    a(f"v_add_u32 v{VW}, s{T2}, v3")
    a(f"v_add_u32 v{VW2}, 128, v{VW}")
    a(f"v_add_u32 v{VW3}, 256, v{VW}")
    a(f"s_lshl_b32 s{S_MX}, s{S_WQ}, 12")
    a(f"s_lshl_b32 s{S_MW}, s{S_WQ}, 11")
    a(f"s_add_u32 s{S_M2}, s{S_MW}, 8192")
    a(f"s_mov_b64 s[{EX1}:{EX1+1}], -1")
    a(f"s_mov_b64 s[{EX2}:{EX2+1}], -1")
    a(f"s_mul_i32 s{S_O2}, s{S_RW}, s{S_ST2}")
    a(f"s_mul_i32 s{S_RW}, s{S_RW}, {64*1280}")
    a(f"s_lshr_b32 s{S_O3}, s{S_ST2}, 3")
    a(f"s_sub_u32 s{S_O3}, s{S_O3}, 1024")
    a("s_waitcnt lgkmcnt(0)")
    make_srd(a, SX, P_X, 2048*1280)
    for r in (SA, SB2, SD):
        make_srd(a, r, P_WQ, 640*1280)
    a(f"s_cmp_eq_u32 s{S_COL}, 3")
    a(f"s_cbranch_scc0 L_q_l1")
    a(f"s_mov_b64 s[{SB2}:{SB2+1}], s[{P_WK}:{P_WK+1}]")
    a(f"s_mov_b64 s[{SD}:{SD+1}], s[{P_WV}:{P_WV+1}]")
    a(f"s_mov_b32 s{SB2+2}, {640*40}")
    a(f"s_mov_b32 s{SD+2}, {640*40}")
    a(f"s_mov_b32 s{S_M2}, s{S_MW}")
    a(f"v_mul_u32_u24 v3, 40, v1")
    a(f"v_and_b32 v2, 3, v4")
    a(f"v_lshl_add_u32 v{VW2}, v2, 4, v3")
    a(f"v_mov_b32 v{VW3}, v{VW2}")
    a(f"v_cmp_gt_u32 s[{EX1}:{EX1+1}], 4, v4")
    a(f"v_cmp_le_u32 s[{EX2}:{EX2+1}], 4, v4")
    a("L_q_l1:")
    def dma_q(st):
        db = (st % 3) * STG
        ch = []
        for j in range(4):
            c = []
            if j == 0:
                c += [f"s_add_u32 m0, s{S_MX}, {db}"]
            c += [f"s_add_u32 s{T3}, s{S_RX}, {j*(10240-1024)}",
                  f"buffer_load_dwordx4 v{VX[j&1]}, s[{SX}:{SX+3}], s{T3} offen offset:{1024*j} lds"]
            ch.append(c)
        ch.append([f"s_add_u32 m0, s{S_MW}, {db + 16384}", f"s_add_u32 s{T3}, s{S_RW}, {8*1280-1024}",
                   f"buffer_load_dwordx4 v{VW}, s[{SA}:{SA+3}], s{S_RW} offen lds"])
        ch.append([f"buffer_load_dwordx4 v{VW}, s[{SA}:{SA+3}], s{T3} offen offset:1024 lds"])
        for sm, srd, vo, ex in ((S_MW, SB2, VW2, EX1), (S_M2, SD, VW3, EX2)):
            ch.append([f"s_add_u32 m0, s{sm}, {db + 16384 + 8192}", f"s_mov_b64 exec, s[{ex}:{ex+1}]",
                       f"buffer_load_dwordx4 v{vo}, s[{srd}:{srd+3}], s{S_O2} offen lds", "s_mov_b64 exec, -1"])
            ch.append([f"s_add_u32 m0, s{sm}, {db + 16384 + 8192 + 1024}", f"s_add_u32 s{T3}, s{S_O2}, s{S_O3}", f"s_add_u32 s{T3}, s{T3}, 1024", f"s_mov_b64 exec, s[{ex}:{ex+1}]",
                       f"buffer_load_dwordx4 v{vo}, s[{srd}:{srd+3}], s{T3} offen lds", "s_mov_b64 exec, -1"])
        ch[-1] += [f"s_add_u32 s{S_RX}, s{S_RX}, 128", f"s_add_u32 s{S_RW}, s{S_RW}, {64*1280}", f"s_add_u32 s{S_O2}, s{S_O2}, s{S_ST2}", f"s_cmp_eq_u32 s{S_RX}, 1280",
                   f"s_cselect_b32 s{S_RX}, 0, s{S_RX}", f"s_cselect_b32 s{S_RW}, 0, s{S_RW}", f"s_cselect_b32 s{S_O2}, 0, s{S_O2}"]
        return ch
    if SP: stamp(a, 1)
    emit(dma_q(0))
    if SP: stamp(a, 2)
    a("s_branch L_common")

    a("L_p0_h:")
    a(f"s_lshl_b32 s{T0}, s2, 3")
    a(f"s_lshl_b32 s{T1}, s{S_WQ}, 1")
    a(f"s_add_u32 s{T0}, s{T0}, s{T1}")
    a(f"v_add_u32 v4, s{T0}, v{VH}")
    a(f"v_mul_u32_u24 v5, 1280, v4")
    a(f"v_lshl_add_u32 v5, v{VT}, 3, v5")
    a(f"v_lshlrev_b32 v255, 3, v4")
    a(f"v_mov_b32 v242, 0")
    a(f"s_mov_b32 s{T1}, {EPOCH_OFF}")
    a("s_waitcnt lgkmcnt(0)")
    make_srd(a, SX, P_X, 2048*1280)
    make_srd(a, SWS, P_WS, WS_SIZE)
    a(f"buffer_load_dword v203, v242, s[{SWS}:{SWS+3}], s{T1} offen sc1")
    for j in range(5):
        a(f"buffer_load_dwordx2 {vr(192+2*j,2)}, v5, s[{SX}:{SX+3}], 0 offen offset:{256*j}")

    if PGT:
        make_srd(a, SD, P_OUT, 2048*1280)
        a(f"s_cmp_eq_u32 s{S_WQ}, 1")
        a(f"s_cselect_b64 s[{SD}:{SD+1}], s[{P_WD}:{P_WD+1}], s[{SD}:{SD+1}]")
        a(f"s_cselect_b32 s{SD+2}, {1536*1280}, s{SD+2}")
        a(f"s_cmp_eq_u32 s{S_WQ}, 2")
        a(f"s_cselect_b64 s[{SD}:{SD+1}], s[{P_WO}:{P_WO+1}], s[{SD}:{SD+1}]")
        a(f"s_cselect_b32 s{SD+2}, {640*1280}, s{SD+2}")
        a(f"s_cmp_eq_u32 s{S_WQ}, 3")
        a(f"s_cselect_b64 s[{SD}:{SD+1}], s[{P_WS}:{P_WS+1}], s[{SD}:{SD+1}]")
        a(f"s_cselect_b32 s{SD+2}, {0xC00000}, s{SD+2}")
        a(f"v_lshlrev_b32 v1, 19, v{VL}")
        a(f"s_lshl_b32 s{T0}, s2, 7")
        a(f"buffer_load_dword v246, v1, s[{SD}:{SD+3}], s{T0} offen")

    a("L_common:")
    make_srd(a, SWS, P_WS, WS_SIZE)
    make_srd(a, SDBG, P_DBG, 256)
    a(f"s_and_b32 s{S_MH}, s{S_W}, 1")
    a(f"s_lshr_b32 s{S_ROT}, s{S_W}, 1")
    a(f"s_mov_b32 s{S_UP}, 0")
    a(f"s_mov_b32 s{S_UP+1}, -1")
    a(f"v_lshlrev_b32 v{VL16}, 4, v{VL}")
    a(f"v_bfe_u32 v1, v{VT}, 1, 3")
    a(f"v_xor_b32 v1, v1, v{VH}")
    a(f"s_lshl_b32 s{T1}, s{S_ROT}, 1")
    a(f"v_xor_b32 v1, s{T1}, v1")
    a(f"v_lshlrev_b32 v2, 7, v{VT}")
    a(f"s_cmp_lt_u32 s{S_IDX}, 24")
    a(f"s_cselect_b32 s{T0}, 13, 12")
    a(f"s_lshl_b32 s{T0}, s{S_ROT}, s{T0}")
    a(f"v_add_u32 v2, s{T0}, v2")
    VB = lambda sg: 18 + sg
    for sg in range(4):
        a(f"v_xor_b32 v3, {2*sg}, v1")
        a(f"v_lshl_add_u32 v{VB(sg)}, v3, 4, v2")
    for r in range(CSA, CSA+6):
        a(f"v_mov_b32 v{r}, 0")
    a(f"s_and_b32 s{T0}, s2, 7")
    a(f"s_lshl_b32 s{S_TB}, s{T0}, 3")
    a(f"s_and_b32 s{T1}, s{S_IDX}, 7")
    a(f"s_add_u32 s{S_TB}, s{S_TB}, s{T1}")
    a(f"s_lshr_b32 s{S_G}, s{S_IDX}, 3")
    a(f"s_mov_b32 s{S_EARLY}, 0")
    a(f"s_mov_b32 s{S_DL}, {STG}")
    a(f"s_mov_b32 s{S_I}, {-2*STG & 0xffffffff}")
    a(f"v_bfe_u32 v1, v{VL}, 2, 2")
    a(f"v_lshl_add_u32 v2, v{VH}, 3, v1")
    a(f"v_bfe_u32 v3, v{VL}, 4, 1")
    a(f"s_cmp_lt_u32 s{S_IDX}, 24")
    a(f"s_cbranch_scc0 L_q_rd")
    VAg = lambda sg, aa: 10 + 2*sg + aa
    a(f"v_lshlrev_b32 v2, 7, v2")
    a(f"v_mul_u32_u24 v3, {U_REL}, v3")
    a(f"v_add_u32 v2, v2, v3")
    a(f"v_and_b32 v1, 2, v1")
    a(f"v_bfe_u32 v3, v{VL}, 1, 1")
    a(f"v_add_u32 v1, v1, v3")
    a(f"v_lshl_add_u32 v2, v1, 4, v2")
    a(f"v_and_b32 v3, 1, v{VL}")
    a(f"v_lshl_add_u32 v2, v3, 3, v2")
    a(f"s_lshl_b32 s{T0}, s{S_MH}, 6")
    a(f"s_add_u32 s{T0}, s{T0}, {G_OFF}")
    for sg in range(4):
        a(f"s_xor_b32 s{T1}, s{S_ROT}, {sg}")
        a(f"s_lshl_b32 s{T1}, s{T1}, 11")
        a(f"s_add_u32 s{T1}, s{T1}, s{T0}")
        a(f"v_add_u32 v{VAg(sg,0)}, s{T1}, v2")
        a(f"v_xor_b32 v{VAg(sg,1)}, 32, v{VAg(sg,0)}")

    def one(lst): return [[x] for x in lst]
    def bg_common():
        o = [f"v_lshlrev_b32 v{VL8}, 3, v{VL}", "v_mov_b32 v4, 0x80000000", f"v_cndmask_b32 v{VL8}, v{VL8}, v4, s[{S_UP}:{S_UP+1}]",
             f"v_mul_u32_u24 v5, 21, v{VH}", f"v_add_lshl_u32 v5, v5, v{VT}, 4", f"v_cmp_gt_u32 vcc, 21, v{VT}", "s_nop 1", f"v_cndmask_b32 v{VLV}, v4, v5, vcc", f"s_lshl_b32 s{T0}, s{S_W}, 2", f"s_add_u32 s{T0}, s{T0}, {FL_OFF}", f"v_mov_b32 v{VFL}, s{T0}"]
        o += [f"v_mov_b32 v{r}, 0" for r in (243, 244, 245)]
        return one(o)
    def bg_L():
        o = [f"v_mov_b32 v246, 0", f"v_mov_b32 v247, 0", f"s_mul_i32 s{T0}, s{S_G}, 320"]
        for j in range(5):
            o += [f"v_add_u32 v6, {64*j}, v{VL}", f"v_mul_u32_u24 v4, 3277, v6", f"v_lshrrev_b32 v4, 16, v4", f"v_mul_u32_u24 v5, 20, v4",
                  f"v_sub_u32 v5, v6, v5", f"v_mul_u32_u24 v4, 1280, v4", f"v_lshl_add_u32 v4, v5, 4, v4", f"v_add_u32 v{VD[j]}, s{T0}, v4"]
            if 0 < j < 4: o += [f"v_subrev_u32 v{VD[j]}, {1024*j}, v{VD[j]}"]
        o += [
              f"s_mul_i32 s{T0}, s{S_WQ}, {RSZ}", f"v_bfe_u32 v6, v{VL}, 2, 2", f"v_bfe_u32 v4, v{VL}, 4, 1", f"v_and_b32 v5, 3, v{VL}",
              f"v_lshl_add_u32 v4, v4, 2, v5", f"s_lshl_b32 s{T1}, s{S_WQ}, 1", f"v_xor_b32 v4, s{T1}, v4", f"v_lshl_add_u32 v4, v4, 3, s{T0}",
              f"v_lshl_add_u32 v5, v{VH}, 2, v6", f"v_mul_u32_u24 v5, 320, v5", f"v_add_u32 v{VAR}, v4, v5",
              f"v_lshl_add_u32 v5, v{VH}, 3, v6", f"v_mul_u32_u24 v5, 320, v5", f"v_add_u32 v{VAR2}, v4, v5", f"v_add_u32 v{VRW}, s{T0}, v{VL16}"]
        for i, vv in ((1, VR0), (2, VR1), (3, VRW+1)):
            o += [f"s_xor_b32 s{T1}, s{S_WQ}, {i}", f"s_mul_i32 s{T1}, s{T1}, {RSZ}", f"v_add_u32 v{vv}, s{T1}, v{VL16}"]
        return one(o)
    VRD = {1: VR0, 2: VR1, 3: VRW+1}
    def touches():
        a(f"s_lshl_b32 s{T0}, s{S_TH}, 10")
        a(f"s_lshl_b32 s{T1}, s{S_IDX}, 5")
        a(f"s_add_u32 s{T0}, s{T0}, s{T1}")
        a(f"v_add_u32 v1, s{T0}, v{VT}")
        a(f"v_mul_u32_u24 v1, 1280, v1")
        a(f"v_mov_b32 v2, 128")
        a(f"v_mov_b32 v3, s{P_X}")
        a(f"v_mov_b32 v4, s{P_X+1}")
        a(f"v_min_u32 v5, 29, v{VT}")
        a(f"v_cmp_le_u32 vcc, 15, v5")
        a(f"s_lshl_b32 s{T0}, s{S_IDX}, 1")
        a(f"v_mov_b32 v6, s{T0}")
        a(f"v_subrev_u32 v7, 15, v5")
        a(f"v_addc_co_u32 v6, s[{T2}:{T3}], 0, v6, vcc")
        a(f"v_cndmask_b32 v5, v5, v7, vcc")
        a(f"v_cmp_le_u32 vcc, 6, v5")
        a(f"v_subrev_u32 v7, 6, v5")
        a(f"v_mov_b32 v8, s{P_WG}")
        a(f"v_cndmask_b32 v7, v5, v7, vcc")
        a(f"v_mov_b32 v9, s{P_WU}")
        a(f"v_cndmask_b32 v8, v8, v9, vcc")
        a(f"v_mov_b32 v9, s{P_WG+1}")
        a(f"v_mov_b32 v32, s{P_WU+1}")
        a(f"v_cndmask_b32 v9, v9, v32, vcc")
        a(f"s_mul_i32 s{T0}, s{S_CG}, 768")
        a(f"v_mul_u32_u24 v32, 3072, v6")
        a(f"v_lshl_add_u32 v32, v7, 7, v32")
        a(f"v_add_u32 v32, s{T0}, v32")
        a(f"v_mov_b32 v33, {64*3072}")
        a(f"v_cmp_le_u32 vcc, 12, v5")
        a(f"s_mul_i32 s{T0}, s{S_CG}, 384")
        a(f"s_sub_u32 s{T0}, s{T0}, {12*128}")
        a(f"v_lshl_add_u32 v7, v5, 7, s{T0}")
        a(f"v_min_u32 v7, 1152, v7")
        a(f"v_mul_u32_u24 v6, 1280, v6")
        a(f"v_add_u32 v7, v7, v6")
        a(f"v_cndmask_b32 v32, v32, v7, vcc")
        a(f"v_mov_b32 v7, {64*1280}")
        a(f"v_cndmask_b32 v33, v33, v7, vcc")
        a(f"v_mov_b32 v7, s{P_WQ}")
        a(f"v_cndmask_b32 v8, v8, v7, vcc")
        a(f"v_mov_b32 v7, s{P_WQ+1}")
        a(f"v_cndmask_b32 v9, v9, v7, vcc")
        for d, s_ in ((1, 32), (2, 33), (3, 8), (4, 9)):
            a(f"v_cndmask_b32 v{d}, v{d}, v{s_}, s[{S_UP}:{S_UP+1}]")
        a(f"s_add_u32 s{T0}, s{S_WQ}, 3")
        a(f"v_mul_lo_u32 v5, v2, s{T0}")
        a(f"v_add_u32 v1, v1, v5")
        a(f"v_add_co_u32 v6, vcc, v3, v1")
        a(f"s_cmp_eq_u32 s{S_WQ}, 3")
        a(f"s_cselect_b32 s{T0}, 3, 4")
        a(f"v_addc_co_u32 v7, vcc, 0, v4, vcc")
        a(f"global_load_dword v246, v[6:7], off")
        a(f"v_mul_lo_u32 v2, v2, s{T0}")
        a(f"v_add_co_u32 v8, vcc, v6, v2")
        a(f"s_nop 1")
        a(f"v_addc_co_u32 v9, vcc, 0, v7, vcc")
        a(f"global_load_dword v247, v[8:9], off")
    NT_ = 2 if "T" in ABL else PGT
    def bg_H(full=True, late=False):
        d = {i: [] for i in range(10)}
        d[0].append([f"s_waitcnt vmcnt({NT_})"])
        st = ["v_mov_b32 v8, 0", "v_mov_b32 v9, 0"]
        for j in range(10):
            st += [f"v_lshlrev_b32 v4, 16, v{192+j}", f"v_and_b32 v5, 0xffff0000, v{192+j}", "v_add_f32 v8, v8, v4", "v_fmac_f32 v9, v4, v4",
                   "v_add_f32 v8, v8, v5", "v_fmac_f32 v9, v5, v5"]
        for rr in (8, 4, 2, 1):
            st += ["s_nop 0", f"v_add_f32_dpp v8, v8, v8 row_ror:{rr} row_mask:0xf bank_mask:0xf", f"v_add_f32_dpp v9, v9, v9 row_ror:{rr} row_mask:0xf bank_mask:0xf"]
        st += ["v_mov_b32 v4, v8", "v_mov_b32 v5, v9", "s_nop 1", "v_permlane16_swap_b32 v4, v8", "v_permlane16_swap_b32 v5, v9", "s_nop 1",
               "v_add_f32 v4, v4, v8", "v_add_f32 v5, v5, v9", f"v_mul_f32 v4, {f32bits(-1.0/640)}, v4", f"v_mul_f32 v5, {f32bits(1.0/640)}, v5",
               "v_fma_f32 v5, -v4, v4, v5", "v_max_f32 v5, 0, v5", "v_cvt_pk_bf16_f32 v5, v5, v5", "v_lshlrev_b32 v5, 16, v5",
               f"v_add_f32 v5, {f32bits(1e-5)}, v5", "v_cvt_pk_bf16_f32 v5, v5, v5", "v_lshlrev_b32 v5, 16, v5", "v_sqrt_f32 v5, v5", "s_nop 0",
               "v_cvt_pk_bf16_f32 v202, v4, v5"]
        h = len(st)//2
        d[0] += one(st[:24]); d[1] += one(st[24:])
        d[0].insert(1, ["v_add_u32 v203, 1, v203"]); d[0].insert(2, ["v_or_b32 v203, 0x80000000, v203"])
        d[0].insert(3, [f"v_mov_b32 v4, {FL_OFF + 128}", "ds_write_b32 v4, v203", f"v_readfirstlane_b32 s{S_NON}, v203"])
        d[1] += [["s_mov_b32 exec_lo, 1", "s_mov_b32 exec_hi, 1", f"s_mov_b32 s{T0}, {STF_OFF}",
                  f"buffer_store_dwordx2 v[202:203], v255, s[{SWS}:{SWS+3}], s{T0} offen sc1", "s_mov_b64 exec, -1"]]
        o = [f"s_lshl_b32 s{T0}, s{S_TB}, 5", f"s_lshl_b32 s{T1}, s{S_G}, 2", f"s_add_u32 s{T0}, s{T0}, s{T1}", f"s_add_u32 s{T0}, s{T0}, s{S_WQ}",
             f"s_lshl_b32 s{T0}, s{T0}, 2", f"s_add_u32 s{S_OFL}, s{T0}, {OFL_OFF}",
             f"s_and_b32 s{S_K2}, s{S_WQ}, 2", f"s_mul_i32 s{S_KV}, s{S_K2}, {16*KVS}", f"s_add_u32 s{S_KV}, s{S_KV}, {KVF_OFF}",
             f"s_lshl_b32 s{S_H0}, s{S_G}, 3", f"s_and_b32 s{T0}, s{S_WQ}, 1", f"s_lshl_b32 s{T0}, s{T0}, 2", f"s_add_u32 s{S_H0}, s{S_H0}, s{T0}",
             f"v_lshlrev_b32 v7, 4, v{VT}", f"v_mov_b32 v8, 0x80000000"]
        for q in range(4):
            o += [f"s_xor_b32 s{T0}, s{S_K2}, {q}", f"s_add_u32 s{T0}, s{T0}, s{S_H0}", f"s_mul_i32 s{T0}, s{T0}, 5"]
            for j, dst in enumerate((Q1(q), Q1(q)+2, Q2(q))):
                o += [f"v_add_u32 v4, s{T0}, v{VH}"]
                if j: o += [f"v_add_u32 v4, {2*j}, v4"]
                o += [f"v_lshrrev_b32 v5, 2, v4", f"v_lshl_add_u32 v5, v5, 10, v7", f"v_and_b32 v6, 1, v4", f"v_lshl_add_u32 v5, v6, 9, v5",
                      f"v_and_b32 v6, 2, v4", f"v_lshl_add_u32 v{dst}, v6, 2, v5"]
                if j == 2: o += [f"v_cndmask_b32 v{dst}, v{dst}, v8, s[{S_UP}:{S_UP+1}]"]
        o += [f"s_lshl_b32 s{T0}, s{S_WQ}, 13", f"s_add_u32 s{T0}, s{T0}, {CB_OFF}", f"s_xor_b32 s{T1}, s{S_WQ}, 2", f"s_lshl_b32 s{T1}, s{T1}, 13",
              f"s_add_u32 s{T1}, s{T1}, {CB_OFF}", f"v_add_u32 v{VCW}, s{T0}, v{VL16}", f"v_add_u32 v{VCR}, s{T1}, v{VL16}",
              ]
        n3 = (len(o) + 2)//3
        pois = [f"s_add_u32 s{T1}, s{S_H0}, s{S_K2}", f"s_mul_i32 s{T1}, s{T1}, 5", f"s_mul_i32 s{S_OO}, s{S_TB}, 160", f"s_add_u32 s{S_OO}, s{S_OO}, s{T1}",
                f"s_lshl_b32 s{S_OO}, s{S_OO}, 8", f"s_add_u32 s{S_OO}, s{S_OO}, {OF_OFF}"] + [f"v_mov_b32 v{r}, -1" for r in range(204, 208)] + \
               [f"buffer_store_dwordx4 v[204:207], v{VL16}, s[{SWS}:{SWS+3}], s{S_OO} offen sc1",
                f"buffer_store_dwordx4 v[204:207], v{VL16}, s[{SWS}:{SWS+3}], s{S_OO} offen offset:1024 sc1",
                f"buffer_store_dwordx4 v[204:207], v{VL16}, s[{SWS}:{SWS+3}], s{S_OO} offen offset:1536 sc1"]
        if late: return one(o[:13] + pois + o[13:])
        if full: d[5] += one(o[:n3]); d[6] += one(o[n3:2*n3]); d[7] += one(o[2*n3:])

        if full: d[6].insert(0, pois)
        d[2] += bg_common()
        return d

    def p1_phase(tag, nA, nB, ND, dma, reads, FA, FB, ACC, addr_regs, early):
        nR = 2*nA + nB
        nm = nA*nB
        dw = [(aa, i) for aa in range(nA) for i in range(4)]
        hd = len(dw)//2; qd = hd//2
        def cs_ops(p, lst):
            o = []
            if "c" in ABL: return o
            for aa, i in lst:
                o += [f"v_lshlrev_b32 v2, 16, v{FA(p,aa)+i}", f"v_and_b32 v3, 0xffff0000, v{FA(p,aa)+i}",
                      f"v_add_f32 v{CSA+2*aa}, v{CSA+2*aa}, v2", f"v_add_f32 v{CSA+2*aa+1}, v{CSA+2*aa+1}, v3"]
            return o
        sets3 = A3 and not early
        cur = [0]
        def group(p, rd_sg, extra=(), dma_ch=(), bg=(), first=False, skip=False):
            extra = list(extra); bg = list(bg)
            rd = reads(rd_sg) if (rd_sg is not None and "r" not in ABL) else []
            if sets3 and cur[0] % 3:
                for r in addr_regs(rd_sg) if rd_sg is not None else []:
                    rd = [x.replace(f", v{r} ", f", v{196 + 12*(cur[0] % 3) + r - 10} ") if f", v{r} " in x + " " else x for x in [y + " " for y in rd]]
                    rd = [x.strip() for x in rd]
            per = (len(extra) + nm - 1)//nm
            bper = (len(bg) + nm - 1)//nm
            rper = (len(rd) + 1)//2
            dch = list(dma_ch)
            k = 0
            for aa in range(nA):
                for b in range(nB):
                    if "m" not in ABL and not skip:
                        a(f"v_mfma_f32_32x32x16_bf16 {vr(ACC(aa,b),16)}, {vr(FA(p,aa),4)}, {vr(FB(p,b),4)}, {'0' if first else vr(ACC(aa,b),16)}")
                    for e in rd[rper*k:rper*(k+1)]: a(e)
                    ndc = (len(dch) + (nm - k) - 1)//(nm - k)
                    emit(dch[:ndc]); dch = dch[ndc:]
                    for e in extra[per*k:per*(k+1)]: a(e)
                    emit(bg[bper*k:bper*(k+1)])
                    k += 1
        def upd(sg, st):
            if sets3: return []
            sreg = S_I if st % 3 == 2 else S_DL
            return [f"v_add_u32 v{r}, s{sreg}, v{r}" for r in addr_regs(sg)] if st < 9 else []
        def run(role):
            bgd = bg_H(early) if role == "H" else {i: [] for i in range(10)}
            if role == "L":
                o = bg_common() + (bg_L() if early else []); n = (len(o) + 4)//5
                for i in range(5): bgd[1+i] = o[n*i:n*(i+1)]
            for it in range(10):
                cur[0] = it
                if it == 0 and sets3:
                    for k3 in (1, 2):
                        for r in range(10, 22):
                            a(f"v_add_u32 v{196 + 12*k3 + r - 10}, {k3*STG}, v{r}")
                if role == "L":
                    if it == 0: emit(dma(1))
                    a(f"s_waitcnt vmcnt({ND if it < 9 else ((4 // len(TW)) if (early and 8 in TW) else 0)})")
                if SP and it == 0: stamp(a, 3)
                a("s_barrier")
                if SP and it == 0: stamp(a, 4)
                if "I" in ABL:
                    a(f"v_writelane_b32 v241, s12, {it}"); a("s_memtime s[12:13]")
                pre = []
                if role == "H":
                    if it == 4:
                        pre = [[f"v_xor_b32 v{VFR}, 8, v{VFL}"]]
                    if it == 8 and early:
                        a("s_waitcnt vmcnt(0)")
                        a("s_mov_b64 exec, 1")
                        a(f"buffer_store_dword v203, v242, s[{SWS}:{SWS+3}], s{S_OFL} offen sc1")
                        a("s_mov_b64 exec, -1")
                    if it == 8 or it == 9:
                        Lx = lab("hk")
                        a(f"s_cmp_lg_u32 s{S_W}, 4")
                        a(f"s_cbranch_scc1 {Lx}")
                        if it == 8:
                            a(f"s_lshl_b32 s{T0}, s{S_TOK}, 3")
                            a(f"s_add_u32 s{S_O2}, s{T0}, {STF_OFF}")
                            a(f"buffer_load_dwordx4 v[160:163], v{VL16}, s[{SWS}:{SWS+3}], s{S_O2} offen sc1")
                            a(f"buffer_load_dwordx4 v[164:167], v{VL16}, s[{SWS}:{SWS+3}], s{S_O2} offen offset:{1024 if nB == 2 else 0} sc1")
                        if it == 9:
                            a(f"s_call_b64 s[{T4}:{T5}], L_stats")
                            if early: mbx_load(0)
                        a(f"{Lx}:")
                elif it == 9:
                    a(f"v_mov_b32 v4, {FL_OFF + 128}"); a("ds_read_b32 v5, v4")
                    pre = [[f"v_readfirstlane_b32 s{S_NON}, v5"]]
                xl = 1 if ((role == "H" and it == 3) or (role == "L" and it == 9)) else 0
                ch = dma(it + 2) if (role == "L" and it < 8 and "g" not in ABL) else []
                if role == "L" and early and it in TW:
                    t_ = TW.index(it); per = 4 // len(TW) if len(TW) <= 4 else 1
                    tl = []
                    for u in range(per):
                        tl += [f"s_lshl_b32 s{T3}, s{S_IDX}, 2", f"s_add_u32 s{T3}, s{T3}, s{S_WQ}", f"s_lshl_b32 s{T3}, s{T3}, 2", f"s_add_u32 s{T3}, s{T3}, {t_*per+u}",
                               f"s_cmp_lt_u32 s{T3}, 240", f"s_cselect_b64 s[{SC}:{SC+1}], s[{P_WD}:{P_WD+1}], s[{P_WO}:{P_WO+1}]",
                               f"s_cselect_b32 s{SC+2}, {1536*1280}, s{SC+2}", f"s_cselect_b32 s{T2}, 0, 240", f"s_sub_u32 s{T3}, s{T3}, s{T2}", f"s_lshl_b32 s{T3}, s{T3}, 13",
                               f"buffer_load_dword v191, v190, s[{SC}:{SC+3}], s{T3} offen", f"s_mov_b32 s{SC+2}, {640*1280}"]
                    ch = [tl] + ch
                q = (len(ch) + 3)//4
                bg = bgd[it]; bq = (len(bg) + 3)//4
                if it == 0: bq = (len(bg) + 1)//2; b0, b1, b2, b3 = [], [], bg[:bq], bg[bq:]
                else: b0, b1, b2, b3 = bg[:bq], bg[bq:2*bq], bg[2*bq:3*bq], bg[3*bq:]
                group(2, 0, extra=(upd(3, it-1) + cs_ops(2, dw[hd:hd+qd])) if it else [], dma_ch=ch[0:q], bg=b0, skip=(it == 0))
                group(3, 1, extra=upd(0, it) + (cs_ops(2, dw[hd+qd:]) if it else []), dma_ch=ch[q:2*q], bg=b1, skip=(it == 0))
                a(f"s_waitcnt lgkmcnt({nR})")
                group(0, 2, extra=upd(1, it) + cs_ops(0, dw[:qd]), dma_ch=ch[2*q:3*q], bg=pre + b2, first=(it == 0))
                a(f"s_waitcnt lgkmcnt({nR})")
                group(1, 3, extra=upd(2, it) + cs_ops(0, dw[qd:hd]), dma_ch=ch[3*q:], bg=b3)
                a("s_waitcnt lgkmcnt(0)")
        if not SP: stamp(a, 1)
        a(f"s_cmp_lg_u32 s{S_ISH}, 0")
        a(f"s_cbranch_scc1 L_{tag}_h")
        run("L")
        a(f"s_branch L_{tag}_fin")
        a(f"L_{tag}_h:")
        if "T" in ABL: touches()
        a(f"v_lshlrev_b32 v1, 2, v{VL}")
        a(f"v_add_u32 v1, {FL_OFF}, v1")
        a(f"ds_write_b32 v1, v242")
        a("s_waitcnt lgkmcnt(0)")
        run("H")
        a(f"L_{tag}_fin:")
        group(2, None, extra=cs_ops(2, dw[hd:]))
        group(3, None)
        if not SP: stamp(a, 2)
        if "I" in ABL:
            a(f"v_writelane_b32 v241, s12, 10")
            a("s_waitcnt lgkmcnt(0)")
            a(f"v_writelane_b32 v241, s4, 0")
            a(f"v_writelane_b32 v241, s8, 11")
            a(f"s_lshl_b32 s{T0}, s2, 3"); a(f"s_add_u32 s{T0}, s{T0}, s3"); a(f"s_lshl_b32 s{T0}, s{T0}, 8"); a(f"s_add_u32 s{T0}, s{T0}, 0x1000000")
            a(f"v_lshlrev_b32 v2, 2, v{VL}")
            a(f"buffer_store_dword v241, v2, s[{SWS}:{SWS+3}], s{T0} offen")
        if "X" in ABL: endpgm(a, 0)
        a(f"s_mul_i32 s{T2}, s{S_MH}, {nA}")
        a(f"s_lshl_b32 s{T0}, s{T2}, 10")
        a(f"s_add_u32 s{T0}, s{T0}, {CS_OFF}")
        a(f"v_add_u32 v1, s{T0}, v{VL16}")
        a(f"s_lshl_b32 s{T1}, s{S_ROT}, 2")
        a(f"v_add_u32 v9, s{T1}, v1")
        for aa in range(nA):
            a(f"v_add_f32 v{2+aa}, v{CSA+2*aa}, v{CSA+2*aa+1}")
        for aa in range(nA):
            a(f"v_cvt_pk_bf16_f32 v{5+aa}, v{2+aa}, v{2+aa}")
        for aa in range(nA):
            a(f"v_lshlrev_b32 v{5+aa}, 16, v{5+aa}")
        for aa in range(nA):
            a(f"v_sub_f32 v{5+aa}, v{2+aa}, v{5+aa}")
        for aa in range(nA):
            a(f"v_cvt_pk_bf16_f32 v{5+aa}, v{2+aa}, v{5+aa}")
            a(f"ds_write_b32 v9, v{5+aa} offset:{1024*aa}")
        if early:
            Lx = lab("nost")
            a(f"s_cmp_lg_u32 s{S_W}, 4")
            a(f"s_cbranch_scc1 {Lx}")
            a("s_waitcnt vmcnt(0)")
            mbx_test()
            a(f"s_cbranch_scc0 {Lx}")
            lds_set(16)
            a(f"{Lx}:")
        a(f"s_lshl_b32 s{T1}, s{S_ROT}, {8 + (nB-1)}")
        a(f"s_add_u32 s{T1}, s{T1}, {ST_OFF}")
        a(f"v_lshl_add_u32 v5, v{VT}, 3, s{T1}")
        a(f"v_mov_b32 v6, {FL_OFF + 64}")
        a("s_waitcnt lgkmcnt(0)")
        a("s_barrier")
        for b in range(nB):
            a(f"ds_read_b64 {vr(160+4*b,2)}, v5 offset:{256*b}")
        for aa in range(nA):
            a(f"ds_read_b128 {vr(10+4*aa,4)}, v1 offset:{1024*aa}")
        if early:
            a("ds_read_b32 v4, v6")
        a(f"s_cmp_eq_u32 s{S_ISH}, 0")
        a(f"s_cbranch_scc1 L_{tag}_np")
        a("s_setprio 2")
        a(f"L_{tag}_np:")
        a(f"s_waitcnt lgkmcnt({nA + (1 if early else 0)})")
        for b in range(nB):
            a(f"v_mov_b32 v{26+b}, v{161+4*b}")
            for j in (1, 2, 3):
                a(f"v_mov_b32 v{160+4*b+j}, v{160+4*b}")
        a("s_waitcnt lgkmcnt(0)")
        a("s_nop 0")
        for b in range(nB):
            for aa in range(nA):
                a(f"v_mfma_f32_32x32x16_bf16 {vr(ACC(aa,b),16)}, {vr(10+4*aa,4)}, {vr(160+4*b,4)}, {vr(ACC(aa,b),16)}")

    FA = lambda p, aa: FBASE[p] + 4*aa
    FB = lambda p, b: FBASE[p] + 8 + 4*b
    ACC = lambda aa, b: 64 + 16*(2*aa + b)
    def reads_gu(sg):
        o = []
        for aa in range(2):
            for n in range(2):
                o.append(f"ds_read_b64_tr_b16 {vr(FA(sg,aa)+2*n,2)}, v{VAg(sg,aa)} offset:{512*n}")
            o.append(f"ds_read_b128 {vr(FB(sg,aa),4)}, v{VB(sg)} offset:{4096*aa}")
        return o
    p1_phase("gu", 2, 2, 12, dma_gu, reads_gu, FA, FB, ACC, lambda sg: [VAg(sg,0), VAg(sg,1), VB(sg)], True)
    a(f"v_readfirstlane_b32 s{S_EARLY}, v4")
    a(f"v_mul_f32 v26, v26, v26")
    a(f"v_mul_f32 v28, v27, v27")
    a(f"s_and_b32 s{S_EARLY}, s{S_EARLY}, s{S_ISH}")
    a(f"s_cmp_eq_u32 s{S_EARLY}, 1")
    a(f"s_cbranch_scc0 L_gu_ne")
    a(f"s_call_b64 s[{T4}:{T5}], L_attn_loads")
    a("L_gu_ne:")
    a(f"s_lshr_b32 s{T0}, s{S_TOK}, 5")
    a(f"s_lshl_b32 s{T1}, s{S_ROT}, 1")
    a(f"s_add_u32 s{T0}, s{T0}, s{T1}")
    a(f"s_mul_i32 s{T0}, s{T0}, 96")
    a(f"s_lshl_b32 s{T1}, s{S_COL}, 2")
    a(f"s_add_u32 s{T0}, s{T0}, s{T1}")
    a(f"s_add_u32 s{T0}, s{T0}, s{T2}")
    a(f"s_lshl_b32 s{T0}, s{T0}, 10")
    a(f"s_add_u32 s{T0}, s{T0}, {HF_OFF}")
    a(f"s_add_u32 s{T1}, s{T0}, {96*1024}")
    a(f"s_mov_b64 s[88:89], s[{T0}:{T1}]")
    a("s_nop 0")
    for b in range(2):
        for aa in range(2):
            A = ACC(aa, b)
            for j in range(0, 8, 2):
                a(f"v_pk_mul_f32 {vr(A+j,2)}, {vr(A+j,2)}, {vr(26+2*b,2)} op_sel_hi:[1,0]")
            for j in range(0, 8, 2):
                a(f"v_pk_mul_f32 {vr(A+j,2)}, {vr(A+j,2)}, {vr(A+8+j,2)}")
            for q in range(4):
                a(f"v_cvt_pk_bf16_f32 v{A+q}, v{A+2*q}, v{A+2*q+1}")
            if not LATEH: a(f"buffer_store_dwordx4 {vr(A,4)}, v{VL16}, s[{SWS}:{SWS+3}], s{T0 if b == 0 else T1} offen offset:{1024*aa} sc1")
    a("s_branch L_p2")

    a("L_stats:")
    a(f"s_mov_b32 s{T1}, 0")
    a("L_stats_l:")
    a("s_waitcnt vmcnt(0)")
    a(f"v_xor_b32 v4, s{S_NON}, v161")
    a(f"v_xor_b32 v5, s{S_NON}, v163")
    a(f"v_xor_b32 v6, s{S_NON}, v165")
    a(f"v_xor_b32 v7, s{S_NON}, v167")
    a("v_or3_b32 v4, v4, v5, v6")
    a("v_or_b32 v4, v4, v7")
    a("v_cmp_ne_u32 vcc, 0, v4")
    a(f"s_add_u32 s{T1}, s{T1}, 1")
    a("s_cmp_eq_u64 vcc, 0")
    a("s_cbranch_scc1 L_stats_d")
    a("s_sleep 8")
    a(f"s_cmp_lt_u32 s{S_IDX}, 24")
    a(f"s_cselect_b32 s{T0}, 1024, 0")
    a(f"s_add_u32 s{T0}, s{T0}, s{S_O2}")
    a(f"buffer_load_dwordx4 v[160:163], v{VL16}, s[{SWS}:{SWS+3}], s{S_O2} offen sc1")
    a(f"buffer_load_dwordx4 v[164:167], v{VL16}, s[{SWS}:{SWS+3}], s{T0} offen sc1")
    a(f"s_cmp_lt_u32 s{T1}, {SPIN_MAX}")
    a("s_cbranch_scc1 L_stats_l")
    a("L_stats_d:")
    a(f"s_mov_b32 s{T0}, 0x01000100")
    for r in (160, 162, 164, 166):
        a(f"v_and_b32 v{r+1}, 0xffff0000, v{r}")
        a(f"v_rcp_f32 v{r+1}, v{r+1}")
        a(f"v_perm_b32 v{r}, v{r}, v{r}, s{T0}")
    a(f"v_add_u32 v4, {ST_OFF}, v{VL16}")
    a(f"ds_write_b128 v4, v[160:163]")
    a(f"ds_write_b128 v4, v[164:167] offset:1024")
    a(f"s_setpc_b64 s[{T4}:{T5}]")

    a("L_q_rd:")
    VAq = lambda sg, par: 10 + 2*sg + par
    a(f"v_lshlrev_b32 v2, 7, v2")
    a(f"v_lshl_add_u32 v2, v3, 5, v2")
    a(f"v_and_b32 v3, 3, v{VL}")
    a(f"v_lshl_add_u32 v2, v3, 3, v2")
    a(f"v_and_b32 v1, 2, v1")
    a(f"v_lshl_add_u32 v2, v1, 5, v2")
    a(f"s_lshl_b32 s{T0}, s{S_MH}, 6")
    a(f"v_xor_b32 v2, s{T0}, v2")
    a(f"s_lshl_b32 s{T0}, s{S_MH}, 13")
    a(f"s_add_u32 s{T2}, s{T0}, 16384")
    for sg in range(4):
        a(f"s_xor_b32 s{T1}, s{S_ROT}, {sg}")
        a(f"s_lshl_b32 s{T1}, s{T1}, 11")
        a(f"s_add_u32 s{T1}, s{T1}, s{T2}")
        a(f"v_add_u32 v{VAq(sg,0)}, s{T1}, v2")
        a(f"v_xor_b32 v{VAq(sg,1)}, 64, v{VAq(sg,0)}")
        a(f"v_add_u32 v{VAq(sg,1)}, s{T0}, v{VAq(sg,1)}")
    FA = lambda p, aa: FBASE[p] + 4*aa
    FB = lambda p, b: FBASE[p] + 12
    ACC = lambda aa, b: 64 + 16*aa
    def reads_q(sg):
        o = [f"ds_read_b128 {vr(FB(sg,0),4)}, v{VB(sg)}"]
        for aa in range(3):
            for n in range(2):
                o.append(f"ds_read_b64_tr_b16 {vr(FA(sg,aa)+2*n,2)}, v{VAq(sg, aa & 1)} offset:{8192*(aa >> 1)+512*n}")
        return o
    p1_phase("q", 3, 1, 10, dma_q, reads_q, FA, FB, ACC, lambda sg: [VAq(sg,0), VAq(sg,1), VB(sg)], False)
    a(f"s_lshr_b32 s{T0}, s{S_TOK}, 5")
    a(f"s_add_u32 s{T0}, s{T0}, s{S_ROT}")
    a(f"s_mul_i32 s{T1}, s{T0}, {KVS}")
    a(f"s_add_u32 s{T1}, s{T1}, {KVF_OFF}")
    a(f"s_mul_i32 s{T0}, s{T0}, 40960")
    a(f"s_mul_i32 s{T3}, s{S_COL}, 6")
    a(f"s_add_u32 s{T2}, s{T2}, s{T3}")
    a(f"s_lshl_b32 s{T3}, s{T2}, 11")
    a(f"s_add_u32 s{T0}, s{T0}, s{T3}")
    a(f"v_mul_f32 v28, {f32bits(QSCALE)}, v26")
    a("s_nop 1")
    for aa in range(3):
        A = ACC(aa, 0)
        Lk, Ld = lab("kv"), lab("sd")
        a(f"s_cmp_lt_u32 s{T2}, {20-aa}")
        a(f"s_cbranch_scc0 {Lk}")
        for j in range(0, 16, 2):
            a(f"v_pk_mul_f32 {vr(A+j,2)}, {vr(A+j,2)}, v[28:29] op_sel_hi:[1,0]")
        for q in range(8):
            a(f"v_cvt_pk_bf16_f32 v{A+q}, v{A+2*q}, v{A+2*q+1}")
        for i in range(2):
            a(f"buffer_store_dwordx4 {vr(A+4*i,4)}, v{VL16}, s[{SWS}:{SWS+3}], s{T0} offen offset:{(2048*aa+1024*i) & 4095} sc1")
        if aa == 1:
            a(f"s_add_u32 s{T0}, s{T0}, 4096")
        a(f"s_branch {Ld}")
        a(f"{Lk}:")
        if aa == 2:
            a(f"s_cmp_eq_u32 s{T2}, 18")
            a(f"s_cbranch_scc0 {Ld}")
            for j in range(0, 12, 2):
                a(f"v_pk_mul_f32 {vr(A+j,2)}, {vr(A+j,2)}, v[26:27] op_sel_hi:[1,0]")
            for q in range(6):
                a(f"v_cvt_pk_bf16_f32 v{A+q}, v{A+2*q}, v{A+2*q+1}")
            a(f"buffer_store_dwordx4 {vr(A,4)}, v{VL16}, s[{SWS}:{SWS+3}], s{T1} offen sc1")
            a(f"buffer_store_dwordx2 {vr(A+4,2)}, v{VL8}, s[{SWS}:{SWS+3}], s{T1} offen offset:1024 sc1")
        elif aa == 0:
            for j in range(0, 12, 2):
                a(f"v_pk_mul_f32 {vr(A+j,2)}, {vr(A+j,2)}, v[26:27] op_sel_hi:[1,0]")
            a(f"s_mul_i32 s{T3}, s{S_ROT}, 2304")
            a(f"s_add_u32 s{T3}, s{T3}, {VT_OFF}")
            a(f"v_mul_u32_u24 v1, {4*72}, v{VH}")
            a(f"v_lshl_add_u32 v1, v{VT}, 1, v1")
            a(f"v_add_u32 v1, s{T3}, v1")
            a(f"v_mul_u32_u24 v2, 72, v{VT}")
            a(f"v_lshl_add_u32 v2, v{VH}, 3, v2")
            a(f"v_add_u32 v2, s{T3}, v2")
            a(f"v_cndmask_b32 v{A+8}, v{A+8}, 1.0, s[{S_UP}:{S_UP+1}]")
            for j in (9, 10, 11):
                a(f"v_cndmask_b32 v{A+j}, v{A+j}, 0, s[{S_UP}:{S_UP+1}]")
            for q in range(6):
                a(f"v_cvt_pk_bf16_f32 v{A+q}, v{A+2*q}, v{A+2*q+1}")
            for j in range(12):
                row = 8*(j >> 2) + (j & 3)
                op = "ds_write_b16_d16_hi" if j & 1 else "ds_write_b16"
                a(f"{op} v1, v{A+(j>>1)} offset:{row*72}")
            for f in range(2):
                a(f"ds_read2_b64 {vr(A+8+4*f,4)}, v2 offset0:{4*f} offset1:{4*f+2}")
            a("s_waitcnt lgkmcnt(0)")
            for f in range(2):
                a(f"buffer_store_dwordx4 {vr(A+8+4*f,4)}, v{VLV}, s[{SWS}:{SWS+3}], s{T1} offen offset:{1280+672*f} sc1")
        a(f"{Ld}:")

    a(f"s_cmp_lg_u32 s{S_ISH}, 0")
    a(f"s_cbranch_scc1 L_q_lh")
    emit(bg_L())
    a("s_branch L_q_lx")
    a("L_q_lh:")
    emit(bg_H(late=True))
    a("L_q_lx:")
    a("s_waitcnt vmcnt(0)")
    a("s_barrier")
    a(f"s_cmp_eq_u32 s{S_ISH}, 0")
    a(f"s_cbranch_scc1 L_p2")
    a("s_mov_b64 exec, 1")
    a(f"v_mov_b32 v2, s{S_NON}")
    a(f"buffer_store_dword v2, v244, s[{SWS}:{SWS+3}], s{S_OFL} offen sc1")
    a("s_mov_b64 exec, -1")
    a(f"s_cmp_lg_u32 s{S_W}, 4")
    a(f"s_cbranch_scc1 L_p2")
    a(f"s_lshl_b32 s{T0}, s{S_TOK}, 2")
    a(f"s_lshl_b32 s{T1}, s{S_COL}, 7")
    a(f"s_add_u32 s{T0}, s{T0}, s{T1}")
    a(f"s_add_u32 s{T0}, s{T0}, {QFL_OFF}")
    a("s_mov_b64 exec, 1")
    a(f"v_mov_b32 v2, s{S_NON}")
    a(f"buffer_store_dword v2, v244, s[{SWS}:{SWS+3}], s{T0} offen sc1")
    a("s_mov_b64 exec, -1")
    def h_stores():
        Lx = lab("hs")
        a(f"s_cmp_ge_u32 s{S_IDX}, 24")
        a(f"s_cbranch_scc1 {Lx}")
        for b in range(2):
            for aa in range(2):
                a(f"buffer_store_dwordx4 {vr(64 + 16*(2*aa+b),4)}, v{VL16}, s[{SWS}:{SWS+3}], s{88+b} offen offset:{1024*aa} sc1")
        a(f"{Lx}:")
    a("L_p2:")
    if not SP: stamp(a, 3)
    a(f"v_mov_b32 v15, 1")
    a(f"v_mov_b32 v14, s{S_NON}")
    a(f"s_cmp_lg_u32 s{S_ISH}, 0")
    a(f"s_cbranch_scc1 L_attn")
    KQ = S_WQ
    S_OA, S_OB, S_M, S_IT = 78, 82, 80, 81
    VXR = 180
    VXL, S_XO = 191, 84
    ACC = lambda m: 64 + 16*m
    FA0 = 144
    FB = lambda s: 192 + 4*s
    make_srd(a, SA, P_WD, 1536*1280)
    make_srd(a, SB2, P_WS, WS_SIZE)
    make_srd(a, SC, P_OUT, 2048*1280)
    a(f"s_mul_i32 s{S_OA}, s{KQ}, {24*16*1280}")
    a(f"s_mul_i32 s{S_M}, s{KQ}, {RSZ}")
    a(f"s_mul_i32 s{S_OB}, s{S_TB}, 96")
    a(f"s_mul_i32 s{T0}, s{KQ}, 24")
    a(f"s_add_u32 s{S_OB}, s{S_OB}, s{T0}")
    a(f"s_lshl_b32 s{S_OB}, s{S_OB}, 10")
    a(f"s_add_u32 s{S_OB}, s{S_OB}, {HF_OFF}")
    S_RT = 83
    a(f"s_and_b32 s{S_RT}, s{S_TB}, {0 if '3' in ABL else 3}")
    a(f"s_mul_i32 s{T0}, s{S_RT}, {6*16*1280}")
    a(f"s_add_u32 s{S_OA}, s{S_OA}, s{T0}")
    a(f"s_mul_i32 s{T0}, s{S_RT}, {6*1024}")
    a(f"s_add_u32 s{S_OB}, s{S_OB}, s{T0}")
    def dma_a(slot):
        a(f"s_add_u32 m0, s{S_M}, {slot*5120}")
        a(f"s_add_u32 s{T2}, s{S_M}, {slot*5120+4096}")
        for j in range(4):
            a(f"buffer_load_dwordx4 v{VD[j]}, s[{SA}:{SA+3}], s{S_OA} offen offset:{1024*j} lds")
        a(f"s_mov_b32 m0, s{T2}")
        a("s_nop 0")
        a(f"buffer_load_dwordx4 v{VD[4]}, s[{SA}:{SA+3}], s{S_OA} offen lds")
        a(f"s_add_u32 s{S_OA}, s{S_OA}, {16*1280}")
    def dma_a_list(slot):
        o = [[f"s_add_u32 m0, s{S_M}, {slot*5120}", f"s_add_u32 s{T2}, s{S_M}, {slot*5120+4096}",
              f"buffer_load_dwordx4 v{VD[0]}, s[{SA}:{SA+3}], s{S_OA} offen lds"]]
        for j in range(1, 4):
            o.append([f"buffer_load_dwordx4 v{VD[j]}, s[{SA}:{SA+3}], s{S_OA} offen offset:{1024*j} lds"])
        o.append([f"s_mov_b32 m0, s{T2}", "s_nop 0", f"buffer_load_dwordx4 v{VD[4]}, s[{SA}:{SA+3}], s{S_OA} offen lds", f"s_add_u32 s{S_OA}, s{S_OA}, {16*1280}"])
        return o
    def load_b(reg):
        a(f"buffer_load_dwordx4 {vr(reg,4)}, v{VL16}, s[{SB2}:{SB2+3}], s{S_OB} offen sc1")
        a(f"s_add_u32 s{S_OB}, s{S_OB}, 1024")
    def h_flag():
        lds_wait(0, 8, sleep=1)
        if SB: stamp(a, 2)
        a(f"s_lshl_b32 s{T0}, s{S_TOK}, 4")
        a(f"s_lshl_b32 s{T1}, s{S_COL}, 7")
        a(f"s_add_u32 s{T0}, s{T0}, s{T1}")
        a(f"s_add_u32 s{T0}, s{T0}, {HFL_OFF}")
        a("s_mov_b64 exec, 1")
        a(f"buffer_store_dword v14, v{VZ}, s[{SWS}:{SWS+3}], s{T0} offen sc1")
        a("s_mov_b64 exec, -1")
    if "G" in ABL: endpgm(a, 0)
    XP = 320
    lds_wait(28, 4, sleep=2)
    h_stores()
    a(f"s_lshl_b32 s{T0}, s{S_TB}, 5")
    a(f"s_lshl_b32 s{T1}, s{KQ}, 3")
    a(f"s_add_u32 s{T0}, s{T0}, s{T1}")
    a(f"s_mul_i32 s{S_XO}, s{T0}, 1280")
    a(f"s_mul_i32 s{T0}, s{KQ}, {8*XP}")
    a(f"s_add_u32 m0, s{T0}, {CB_OFF}")
    a(f"v_add_u32 v{VXL}, s{T0}, v{VL16}")
    a(f"v_add_u32 v{VXL}, {CB_OFF}, v{VXL}")
    for j in range(3):
        if j == 2: a("s_mov_b32 exec_hi, 0")
        a(f"buffer_load_dwordx4 v{VD[j]}, s[{SX}:{SX+3}], s{S_XO} offen offset:{1024*j} lds")
    a("s_mov_b32 exec_hi, -1")
    for m in range(5):
        zero_mfma(ACC(m), VZ)
    a(f"v_mul_u32_u24 v{VXO}, {XP}, v{VT}")
    a(f"v_lshl_add_u32 v{VXO}, v{VH}, 3, v{VXO}")
    a(f"s_lshl_b32 s{T0}, s{KQ}, 4")
    a(f"s_add_u32 s{T0}, s{T0}, {CB_OFF}")
    a(f"v_add_u32 v{VXO}, s{T0}, v{VXO}")
    a("s_waitcnt vmcnt(0)")
    a(f"ds_write_b32 v{VFL}, v15")
    if SB: stamp(a, 1)
    a(f"s_cmp_lg_u32 s{S_W}, 0")
    a(f"s_cbranch_scc1 L_l_ring")
    a(f"s_cmp_ge_u32 s{S_IDX}, 24")
    a(f"s_cbranch_scc1 L_l_ring")
    h_flag()
    a("L_l_ring:")
    for s_ in range(PD):
        dma_a(s_)
        a(f"s_waitcnt vmcnt({PW1})")
    lds_wait(0, 4, sleep=1)
    for m in range(5):
        a(f"ds_read_b64 {vr(VXR+2*m,2)}, v{VXO} offset:{64*m}")
    a("s_waitcnt lgkmcnt(0)")
    for m in range(5):
        for q in range(2):
            a(f"v_lshlrev_b32 v{ACC(m)+2*q}, 16, v{VXR+2*m+q}")
            a(f"v_and_b32 v{ACC(m)+2*q+1}, 0xffff0000, v{VXR+2*m+q}")
    if SB: stamp(a, 3)
    a(f"s_cmp_lg_u32 s{S_W}, 0")
    a(f"s_cbranch_scc1 L_l_pub")
    mbx_wait(1, 6)
    if SB: stamp(a, 0)
    lds_set(18)
    a("L_l_pub:")
    lds_wait(18, sleep=4)
    for s in range(PD):
        load_b(FB(s))
    a(f"s_mov_b32 s{S_IT}, 0")
    a("s_waitcnt vmcnt(0)")
    if not SP: stamp(a, 4)
    def rd_a(dst, slot, va, nrow):
        for m in range(5):
            for n in range(2):
                a(f"ds_read_b64_tr_b16 {vr(dst+4*m+2*n,2)}, v{va} offset:{slot*5120 + n*nrow + m*64}")
    if LPRIO: a(f"s_setprio {LPRIO}")
    if DBA: rd_a(144, 0, VAR, 2560)
    a(".p2align 6")
    a("L_gloop:")
    def switch():
        a(f"s_add_u32 s{S_RT}, s{S_RT}, 1")
        a(f"s_cmp_eq_u32 s{S_RT}, 4")
        a(f"s_cselect_b32 s{T0}, {24*16*1280}, 0")
        a(f"s_cselect_b32 s{T1}, {24*1024}, 0")
        a(f"s_sub_u32 s{S_OA}, s{S_OA}, s{T0}")
        a(f"s_sub_u32 s{S_OB}, s{S_OB}, s{T1}")
        a(f"s_cmp_lt_u32 s{S_IT}, 3")
        a(f"s_cbranch_scc1 L_gl1")
        a(f"s_mov_b64 s[{SA}:{SA+1}], s[{P_WO}:{P_WO+1}]")
        a(f"s_mov_b32 s{SA+2}, {640*1280}")
        a(f"s_mov_b32 s{SB2+2}, 0")
        a(f"s_mul_i32 s{S_OA}, s{KQ}, {160*1280}")
        a("L_gl1:")
    def rd_a(dst, slot, va, nrow):
        for m in range(5):
            for n in range(2):
                a(f"ds_read_b64_tr_b16 {vr(dst+4*m+2*n,2)}, v{va} offset:{slot*5120 + n*nrow + m*64}")
    def mm(fa, fb):
        for m in range(5):
            a(f"v_mfma_f32_32x32x16_bf16 {vr(ACC(m),16)}, {vr(fa+4*m,4)}, {vr(fb,4)}, {vr(ACC(m),16)}")
    for s in range(RING):
        if DBA:
            FAD = [144, 2]
            if s == RING - PD: switch()
            a(f"s_waitcnt vmcnt({6*(PD-2)}) lgkmcnt(0)")
            rd_a(FAD[(s+1) & 1], (s+1) % RING, VAR, 2560)
            dl = dma_a_list((s + PD) % RING)
            for m in range(5):
                a(f"v_mfma_f32_32x32x16_bf16 {vr(ACC(m),16)}, {vr(FAD[s & 1]+4*m,4)}, {vr(FB(s),4)}, {vr(ACC(m),16)}")
                emit([dl[m]])
            if "b" in ABL: a(f"buffer_load_dword v{FB((s + PD) % RING)}, v{VZ}, s[{SX}:{SX+3}], 0 offen")
            else: load_b(FB((s + PD) % RING))
            continue
        if s == RING - PD: switch()
        a(f"s_waitcnt vmcnt({6*(PD-1)})")
        if "R" not in ABL: rd_a(FA0, s, VAR, 2560)
        a("s_waitcnt lgkmcnt(0)")
        if PACE:
            dl = dma_a_list((s + PD) % RING)
            for m in range(5):
                a(f"v_mfma_f32_32x32x16_bf16 {vr(ACC(m),16)}, {vr(FA0+4*m,4)}, {vr(FB(s),4)}, {vr(ACC(m),16)}")
                emit([dl[m]])
            load_b(FB((s + PD) % RING))
            continue
        if "D" not in ABL: dma_a(s)
        if "M" not in ABL: mm(FA0, FB(s))
        if "D" not in ABL: load_b(FB(s))
    a(f"s_add_u32 s{S_IT}, s{S_IT}, 1")
    a(f"s_cmp_lt_u32 s{S_IT}, 4")
    a(f"s_cbranch_scc1 L_gloop")
    PRE = [144, 2, 22, 42]
    OB = lambda k: 192 + 4*k
    a(f"s_mov_b32 s{SB2+2}, {WS_SIZE}")
    a(f"s_mul_i32 s{S_OB}, s{S_TB}, 40")
    a(f"s_mul_i32 s{T0}, s{KQ}, 10")
    a(f"s_add_u32 s{S_OB}, s{S_OB}, s{T0}")
    a(f"s_lshl_b32 s{S_OB}, s{S_OB}, 10")
    a(f"s_add_u32 s{S_OB}, s{S_OB}, {OF_OFF}")
    a(f"s_add_u32 s{T0}, s{S_OB}, 4096")
    a(f"s_add_u32 s{T1}, s{S_OB}, 8192")
    for k in range(PD, RING):
        a("s_waitcnt vmcnt(2)")
        dma_a(k)
    a(f"s_waitcnt vmcnt({12 if PD == 6 else 0})")
    for k in range(4):
        rd_a(PRE[k], k, VAR2, 1280)
    a("s_waitcnt lgkmcnt(0)")
    for k in range(4):
        dma_a(k)
        if PACE > 1: a(f"s_waitcnt vmcnt({PW1})")
    a(f"v_mov_b32 v232, {FL_OFF + 80}")
    if STAMPS and not SB and not SP: stamp(a, 3)
    a("L_ow:")
    a("ds_read_b128 v[236:239], v232")
    a("s_waitcnt lgkmcnt(0)")
    a(f"v_bitop3_b32 v236, v236, v237, v238 bitop3:{'0x80' if HINT == 2 else '0xfe'}")
    a(f"{'v_and_b32' if HINT == 2 else 'v_or_b32'} v236, v236, v239")
    a("s_nop 0")
    a(f"v_readfirstlane_b32 s{T4}, v236")
    a("s_nop 0")
    a(f"s_cmp_eq_u32 s{T4}, 1")
    a(f"s_cbranch_scc1 L_owd")
    a("s_sleep 4")
    a(f"s_branch L_ow")
    a("L_owd:")
    a(f"s_mov_b32 s{T5}, 0")
    def ld_o(k):
        a(f"buffer_load_dwordx4 {vr(OB(k),4)}, v{VL16}, s[{SB2}:{SB2+3}], s{[S_OB, T0, T1][k >> 2]} offen offset:{1024*(k & 3)} sc1")
    for k in range(10):
        ld_o(k)
    for k in range(10):
        a(f"s_waitcnt vmcnt({9-k})")
        a(f"L_oc{k}:")
        a(f"v_max3_u32 v232, v{OB(k)}, v{OB(k)+1}, v{OB(k)+2}")
        a(f"v_max_u32 v232, v232, v{OB(k)+3}")
        a(f"v_cmp_eq_u32 vcc, -1, v232")
        if k >= 4:
            a(f"s_waitcnt lgkmcnt({min(15, 10*min(3, 9-k))})")
        a("s_cmp_lg_u64 vcc, 0")
        a(f"s_cbranch_scc1 L_or{k}")
        a(f"L_og{k}:")
        if k == 0 and STAMPS and not SB and not SP: a("s_memtime s[6:7]")
        mm(PRE[k & 3], OB(k))
        if k + 4 < 10:
            kk = k + 4
            rd_a(PRE[k & 3], kk if kk < 6 else kk - 6, VAR2, 1280)
    if STAMPS and not SB and not SP: a("s_memtime s[8:9]")
    a(f"v_mov_b32 v15, 1")
    a(f"v_mov_b32 v12, {FL_OFF+48}")
    a("s_nop 5")
    for m in range(5):
        for i in range(1, 4):
            a(f"ds_write_b128 v{VRW}, {vr(ACC(m)+4*i,4)} offset:{((i-1)*5+m)*1024}")
    a("s_waitcnt lgkmcnt(0)")
    a(f"ds_write_b32 v{VFL}, v15 offset:48")
    a("L_gpoll:")
    a(f"ds_read_b128 v[4:7], v12")
    a("s_waitcnt lgkmcnt(0)")
    a("v_bitop3_b32 v4, v4, v5, v6 bitop3:0x80")
    a("v_and_b32 v4, v4, v7")
    a("s_nop 0")
    a(f"v_readfirstlane_b32 s{T0}, v4")
    a("s_nop 0")
    a(f"s_cmp_eq_u32 s{T0}, 1")
    a(f"s_cbranch_scc0 L_gpoll")
    for m in range(5):
        for i in range(1, 4):
            a(f"ds_read_b128 {vr(ACC(m)+4*i,4)}, v{VRD[i]} offset:{((i-1)*5+m)*1024}")
    for m in range(5):
        A = ACC(m)
        a(f"s_waitcnt lgkmcnt({12-3*m})")
        for h2 in range(2):
            a(f"v_pk_add_f32 {vr(A+2*h2,2)}, {vr(A+2*h2,2)}, {vr(A+4+2*h2,2)}")
            a(f"v_pk_add_f32 {vr(A+8+2*h2,2)}, {vr(A+8+2*h2,2)}, {vr(A+12+2*h2,2)}")
        for h2 in range(2):
            a(f"v_pk_add_f32 {vr(A+2*h2,2)}, {vr(A+2*h2,2)}, {vr(A+8+2*h2,2)}")
        a(f"v_cvt_pk_bf16_f32 v{A}, v{A}, v{A+1}")
        a(f"v_cvt_pk_bf16_f32 v{A+1}, v{A+2}, v{A+3}")
        a(f"ds_write_b64 v{VXO}, {vr(A,2)} offset:{64*m}")
    a("s_waitcnt lgkmcnt(0)")
    a(f"ds_write_b32 v{VFL}, v15 offset:144")
    a("L_gpoll2:")
    a(f"ds_read_b128 v[4:7], v12 offset:96")
    a("s_waitcnt lgkmcnt(0)")
    a("v_bitop3_b32 v4, v4, v5, v6 bitop3:0x80")
    a("v_and_b32 v4, v4, v7")
    a("s_nop 0")
    a(f"v_readfirstlane_b32 s{T0}, v4")
    a("s_nop 0")
    a(f"s_cmp_eq_u32 s{T0}, 1")
    a(f"s_cbranch_scc0 L_gpoll2")
    for j in range(3):
        a(f"ds_read_b128 {vr(64+4*j,4)}, v{VXL} offset:{1024*j}")
    for j in range(3):
        a(f"s_waitcnt lgkmcnt({2-j})")
        if j == 2: a("s_mov_b32 exec_hi, 0")
        a(f"buffer_store_dwordx4 {vr(64+4*j,4)}, v{VD[j]}, s[{SC}:{SC+3}], s{S_XO} offen offset:{1024*j}")
    a("s_mov_b32 exec_hi, -1")
    endpgm(a, 0)

    for k in range(10):
        a(f"L_or{k}:")
        a("s_waitcnt vmcnt(0)")
        if RSL: a(f"s_sleep {RSL}")
        for j in range(k, 10): ld_o(j)
        a(f"s_add_u32 s{T5}, s{T5}, 1")
        a(f"s_cmp_lt_u32 s{T5}, {SPIN_MAX}")
        a(f"s_waitcnt vmcnt({9-k})")
        a(f"s_cbranch_scc1 L_oc{k}")
        a(f"s_branch L_og{k}")

    S_IT = 78
    def load_kv(r):
        a(f"buffer_load_dwordx4 {vr(K1(r),4)}, v{VL16}, s[{SWS}:{SWS+3}], s{S_KV} offen sc1")
        a(f"buffer_load_dwordx2 {vr(K2(r),2)}, v{VL8}, s[{SWS}:{SWS+3}], s{S_KV} offen offset:1024 sc1")
        a(f"buffer_load_dwordx4 {vr(V1(r),4)}, v{VLV}, s[{SWS}:{SWS+3}], s{S_KV} offen offset:1280 sc1")
        a(f"buffer_load_dwordx4 {vr(V2(r),4)}, v{VLV}, s[{SWS}:{SWS+3}], s{S_KV} offen offset:1952 sc1")
        a(f"s_add_u32 s{S_KV}, s{S_KV}, {KVS}")
    a("L_attn_loads:")
    a(f"s_mul_i32 s{T0}, s{S_TB}, 40960")
    for d in (Q1(0), Q1(0)+2, Q2(0)):
        a(f"buffer_load_dwordx2 {vr(d,2)}, v{d}, s[{SWS}:{SWS+3}], s{T0} offen sc1")
    load_kv(0)
    for q in range(1, 4):
        for d in (Q1(q), Q1(q)+2, Q2(q)):
            a(f"buffer_load_dwordx2 {vr(d,2)}, v{d}, s[{SWS}:{SWS+3}], s{T0} offen sc1")
    for r in range(1, 3):
        load_kv(r)
    a(f"s_setpc_b64 s[{T4}:{T5}]")

    a("L_attn:")
    for q in range(4):
        zero_mfma(O(q), V2(3))
    a(f"s_cmp_eq_u32 s{S_EARLY}, 1")
    a(f"s_cbranch_scc1 L_attn_go")
    if not LATEH:
        a("s_waitcnt vmcnt(0)")
        a(f"ds_write_b32 v{VFL}, v15")
    if SB: stamp(a, 1)
    a(f"s_cmp_lg_u32 s{S_W}, 4")
    a(f"s_cbranch_scc1 L_attn_w")
    mbx_wait(0, 1)
    lds_set(17)
    a("L_attn_w:")
    lds_wait(17, sleep=1)
    if SB: stamp(a, 2)
    a(f"s_call_b64 s[{T4}:{T5}], L_attn_loads")
    a("L_attn_go:")
    h_stores()
    a(f"s_lshl_b32 s{T0}, s2, 3")
    a(f"s_add_u32 s{T0}, s{T0}, s{S_WQ}")
    a(f"s_cmp_lg_u32 s{T0}, 0")
    a(f"s_cbranch_scc1 L_attn_g2")
    a(f"s_mov_b32 s{T0}, {EPOCH_OFF}")
    a("v_mov_b32 v2, 0")
    a("s_mov_b64 exec, 1")
    a(f"buffer_store_dword v14, v2, s[{SWS}:{SWS+3}], s{T0} offen sc1")
    a("s_mov_b64 exec, -1")
    a("L_attn_g2:")
    for r in range(P1, P1+4):
        a(f"v_mov_b32 v{r}, 0")
    a(f"s_mov_b32 s{S_IT}, 0")
    a("s_waitcnt vmcnt(17)")
    a(f"ds_write_b32 v{VFL}, v15 offset:96")
    if not SP: stamp(a, 4)
    def qk1(buf, r, q): a(f"v_mfma_f32_32x32x16_bf16 {vr(S(buf),16)}, {vr(K1(r),4)}, {vr(Q1(q),4)}, 0")
    def qk2(buf, r, q): a(f"v_mfma_f32_32x32x8_bf16 {vr(S(buf),16)}, {vr(K2(r),2)}, {vr(Q2(q),2)}, {vr(S(buf),16)}")
    def pv(q, vreg, preg): a(f"v_mfma_f32_32x32x16_bf16 {vr(O(q),16)}, {vr(vreg,4)}, {vr(preg,4)}, {vr(O(q),16)}")
    def E(buf, i0):
        for i in range(i0, i0+4): a(f"v_exp_f32 v{S(buf)+i}, v{S(buf)+i}")
    def C(dst, buf, i): a(f"v_cvt_pk_bf16_f32 v{dst}, v{S(buf)+i}, v{S(buf)+i+1}")
    qk1(0, 0, 0); qk2(0, 0, 0)
    a("s_nop 10")
    a(".p2align 6")
    a("L_aloop:")
    for r in [x & 3 for x in range(4*AUN)]:
        for q in range(4):
            buf = q & 1; nb = buf ^ 1
            nr, nq = (r, q+1) if q < 3 else ((r+1) & 3, 0)
            pr, pq = (r, q-1) if q > 0 else ((r-1) & 3, 3)
            if r == 0 and q < 3:
                a(f"s_waitcnt vmcnt({[14, 15, 12][q]})")
            if q == 3:
                a(f"s_waitcnt vmcnt({KVW})")
                if r == 1:
                    a(f"ds_write_b32 v{VFL}, v15")
            qk1(nb, nr, nq); E(buf, 0)
            pv(pq, V2(pr), P1); C(P0, buf, 0); C(P0+1, buf, 2)
            if q == 0:
                load_kv((r+3) & 3)
            E(buf, 4)
            qk2(nb, nr, nq); C(P0+2, buf, 4); C(P0+3, buf, 6); E(buf, 8)
            pv(q, V1(r), P0); C(P1, buf, 8); C(P1+1, buf, 10); E(buf, 12); C(P1+2, buf, 12); C(P1+3, buf, 14)
    a(f"s_add_u32 s{S_IT}, s{S_IT}, 1")
    a(f"s_cmp_lt_u32 s{S_IT}, {1 if 'H' in ABL else 8//AUN}")
    a(f"s_cbranch_scc1 L_aloop")
    if HINT == 0: a(f"ds_write_b32 v{VFL}, v15 offset:64")
    else: a("s_nop 0")
    pv(3, V2(3), P1)
    if STAMPS and not SB and not SP: a("s_memtime s[6:7]")
    for i in range(3):
        a(f"ds_write_b128 v{VCW}, {vr(O(2)+4*i,4)} offset:{1024*i}")
    a("s_nop 9")
    for i in range(3):
        a(f"ds_write_b128 v{VCW}, {vr(O(3)+4*i,4)} offset:{4096+1024*i}")
    a("s_waitcnt lgkmcnt(0)")
    a(f"ds_write_b32 v{VFL}, v15 offset:16")
    a("L_apoll:")
    a(f"ds_read_b32 v2, v{VFR} offset:16")
    a("s_waitcnt lgkmcnt(0)")
    a(f"v_readfirstlane_b32 s{T0}, v2")
    a("s_nop 0")
    a(f"s_cmp_eq_u32 s{T0}, 1")
    a(f"s_cbranch_scc0 L_apoll")
    for q in range(2):
        for i in range(3):
            a(f"ds_read_b128 {vr(O(2+q)+4*i,4)}, v{VCR} offset:{4096*q+1024*i}")
    for q in range(2):
        a(f"s_waitcnt lgkmcnt({3-3*q})")
        for j in range(0, 12, 2):
            a(f"v_pk_add_f32 {vr(O(q)+j,2)}, {vr(O(q)+j,2)}, {vr(O(2+q)+j,2)}")
    def get_l():
        for q in range(2):
            a(f"v_mov_b32 v{4+2*q}, v{O(q)+8}")
            a(f"v_mov_b32 v{5+2*q}, v{O(q)+8}")
        a("s_nop 0")
        for q in range(2):
            a(f"v_permlane32_swap_b32 v{5+2*q}, v{4+2*q}")
    get_l()
    a(f"v_mov_b32 v2, 0")
    a(f"v_mov_b32 v3, 0")
    a(f"v_mov_b32 v8, 0")
    for q in range(2):
        for j in range(0, 12, 2):
            a(f"v_pk_fma_f32 v[2:3], {vr(O(q)+j,2)}, v[8:9], v[2:3] op_sel_hi:[1,0,1]")
    a(f"v_min_f32 v10, v4, v6")
    a(f"v_max_f32 v11, v4, v6")
    a(f"v_fmac_f32 v2, 0, v4")
    a(f"v_fmac_f32 v3, 0, v6")
    a(f"v_cmp_le_f32 vcc, 0x1f800000, v10")
    a(f"s_mov_b64 s[{T0}:{T1}], vcc")
    a(f"v_cmp_ge_f32 vcc, 0x5f800000, v11")
    a(f"s_and_b64 s[{T0}:{T1}], s[{T0}:{T1}], vcc")
    a(f"v_cmp_o_f32 vcc, v2, v3")
    a(f"s_and_b64 s[{T0}:{T1}], s[{T0}:{T1}], vcc")
    a(f"s_cmp_eq_u64 s[{T0}:{T1}], exec")
    a("s_branch L_fb" if force_fallback else "s_cbranch_scc0 L_fb")
    a("L_norm:")
    for q in range(2):
        a(f"v_rcp_f32 v{4+2*q}, v{4+2*q}")
    a("s_nop 0")
    for q in range(2):
        for j in range(0, 12, 2):
            a(f"v_pk_mul_f32 {vr(O(q)+j,2)}, {vr(O(q)+j,2)}, {vr(4+2*q,2)} op_sel_hi:[1,0]")
    A_, B_ = O(0), O(1)
    def cvs(d, x):
        a(f"v_cvt_pk_bf16_f32 v{d}, v{x}, v{x+1}")
    for k in range(4): cvs(A_+k, A_+2*k)
    for k in range(4): a(f"v_min_u32 v{A_+k}, -2, v{A_+k}")
    for k in (4, 5): cvs(A_+k, A_+2*k)
    a(f"v_permlane32_swap_b32 v{A_}, v{A_+2}")
    a(f"v_permlane32_swap_b32 v{A_+1}, v{A_+3}")
    cvs(A_+6, B_); cvs(A_+7, B_+2)
    a(f"buffer_store_dwordx4 {vr(A_,4)}, v{VL16}, s[{SWS}:{SWS+3}], s{S_OO} offen sc1")
    cvs(B_, B_+4); cvs(B_+1, B_+6); cvs(B_+4, B_+8); cvs(B_+5, B_+10)
    for r in (A_+4, A_+5, A_+6, A_+7, B_, B_+1, B_+4, B_+5):
        a(f"v_min_u32 v{r}, -2, v{r}")
    a(f"v_cndmask_b32 v{A_+4}, v{A_+4}, v{A_+6}, s[{S_UP}:{S_UP+1}]")
    a(f"v_cndmask_b32 v{A_+5}, v{A_+5}, v{A_+7}, s[{S_UP}:{S_UP+1}]")
    a(f"v_permlane32_swap_b32 v{A_+6}, v{B_}")
    a(f"v_permlane32_swap_b32 v{A_+7}, v{B_+1}")
    a(f"v_permlane32_swap_b32 v{B_+2}, v{B_+4}")
    a(f"v_permlane32_swap_b32 v{B_+3}, v{B_+5}")
    a(f"buffer_store_dwordx4 {vr(A_+4,4)}, v{VL16}, s[{SWS}:{SWS+3}], s{S_OO} offen offset:1024 sc1")
    a("s_mov_b32 exec_lo, 0")
    a(f"buffer_store_dwordx4 {vr(B_,4)}, v{VL16}, s[{SWS}:{SWS+3}], s{S_OO} offen offset:1536 sc1")
    a("s_mov_b64 exec, -1")
    if HINT: a(f"ds_write_b32 v{VFL}, v15 offset:64")
    endpgm(a, 0)
    a("L_fb:")
    a("s_waitcnt vmcnt(0)")
    a(f"v_mov_b32 v4, 0xff800000")
    a(f"v_mov_b32 v5, 0xff800000")
    a(f"s_mov_b32 s{S_KV}, {KVF_OFF}")
    a(f"s_mov_b32 s{S_IT}, 0")
    a("L_fb1:")
    load_kv(0)
    a("s_waitcnt vmcnt(0)")
    for q in range(2):
        qk1(q, 0, q); qk2(q, 0, q)
    a("s_nop 15")
    for q in range(2):
        for j in range(0, 16, 2):
            a(f"v_max3_f32 v{4+q}, v{S(q)+j}, v{S(q)+j+1}, v{4+q}")
    a(f"s_add_u32 s{S_IT}, s{S_IT}, 1")
    a(f"s_cmp_lt_u32 s{S_IT}, 64")
    a(f"s_cbranch_scc1 L_fb1")
    for q in range(2):
        a(f"v_mov_b32 v6, v{4+q}")
        a("s_nop 1")
        a(f"v_permlane32_swap_b32 v6, v{4+q}")
        a("s_nop 1")
        a(f"v_max_f32 v6, v6, v{4+q}")
        a(f"v_sub_f32 v6, 0, v6")
        a(f"v_cvt_pk_bf16_f32 v7, v6, v6")
        a(f"v_lshlrev_b32 v7, 16, v7")
        a(f"v_sub_f32 v8, v6, v7")
        a(f"v_cvt_pk_bf16_f32 v7, v7, v8")
        a(f"v_cndmask_b32 v{Q2(q)}, v{Q2(q)}, v7, s[{S_UP}:{S_UP+1}]")
        for j in range(16):
            a(f"v_mov_b32 v{O(q)+j}, 0")
    a(f"s_mov_b32 s{S_KV}, {KVF_OFF}")
    a(f"s_mov_b32 s{S_IT}, 0")
    a("v_mov_b32 v9, 0x3f803f80")
    a("L_fb2:")
    load_kv(0)
    a("s_waitcnt vmcnt(0)")
    a(f"v_cndmask_b32 v{K2(0)}, v{K2(0)}, v9, s[{S_UP}:{S_UP+1}]")
    a("s_nop 1")
    for q in range(2):
        qk1(q, 0, q); qk2(q, 0, q)
    a("s_nop 15")
    for q in range(2):
        for i0 in range(0, 16, 4): E(q, i0)
        a("s_nop 0")
        for k in range(4): C(P0+k, q, 2*k)
        for k in range(4): C(P1+k, q, 8+2*k)
        a("s_nop 1")
        pv(q, V1(0), P0); pv(q, V2(0), P1)
    a(f"s_add_u32 s{S_IT}, s{S_IT}, 1")
    a(f"s_cmp_lt_u32 s{S_IT}, 64")
    a(f"s_cbranch_scc1 L_fb2")
    a("s_nop 15")
    get_l()
    a("s_nop 1")
    a("s_branch L_norm")
    a("L_end:")
    a("s_endpgm")
    return a, kernel_desc(name, 256)

def build(force_fallback=False):
    hdr = open("cdna_kernels/%s.s.ref" % NAME).read().split("\n")
    hdr = [l for l in hdr if l.startswith(";") and "@launch" not in l and "Override" not in l and "grid=ceil" not in l]
    body, desc = gen(NAME + "_kernel", force_fallback)
    out = "\n".join(hdr) + "\n"
    out += f"; @launch grid=(256,1,1) block=(512,1,1) lds={LDS_BYTES}\n"
    out += '.amdgcn_target "amdgcn-amd-amdhsa--gfx950"\n.text\n'
    out += body.text()
    out += '.section .rodata,"a"\n' + desc
    return out

if __name__ == "__main__":
    out = sys.argv[1] if len(sys.argv) > 1 else "cdna_kernels/%s.s" % NAME
    open(out, "w").write(build("fb" in sys.argv[2:]))
    print("wrote", out)
```

```python
from common import *
import math, sys

STF_OFF = 0x2F0000
QFL_OFF, HFL_OFF = 0x2D0000, 0x2D4000
MBX_OFF = 0x2D0000
EPOCH_OFF = 0x2FF000
OFL_OFF = 0x2F8000
STG = 49408
RING = 6
RSZ = RING * 5120
CB_OFF = 4 * RSZ
CS_OFF = CB_OFF
ST_OFF = 3 * STG
VT_OFF = CB_OFF + 8192
FL_OFF = CB_OFF + 32768
LDS_BYTES = FL_OFF + 256
G_OFF, U_REL = 32768, 8256
KVS = 2688 if os.environ.get("KVC", "1") == "1" else 3584
QSCALE = math.log2(math.e) / math.sqrt(20.0)
SPIN_MAX = 1 << 18
ABL = os.environ.get("ABL", "")
SB = "B" in ABL
SP = "P" in ABL
PACE = int(os.environ.get("PACE", "2"))
PRE0 = int(os.environ.get("PRE0", "0"))
LATEH = int(os.environ.get("LATEH", "1"))
PGT = int(os.environ.get("PGT", "0"))
QF1 = int(os.environ.get("QF1", "1"))
PD = int(os.environ.get("PD", "6"))
PW1 = int(os.environ.get("PW1", "2"))
DBA = int(os.environ.get("DBA", "0"))
KVW = int(os.environ.get("KVW", "8"))
LPRIO = int(os.environ.get("LPRIO", "0"))
COAL = int(os.environ.get("COAL", "1"))
GENTLE = int(os.environ.get("GENTLE", "1"))
TW = [int(x) for x in os.environ.get("TW", "").split(",") if x]
S0H = int(os.environ.get("S0H", "0"))
CPF = int(os.environ.get("CPF", "8"))
A3 = int(os.environ.get("A3", "2"))
AUN = int(os.environ.get("AUN", "1"))
KVC = int(os.environ.get("KVC", "1"))
HINT = int(os.environ.get("HINT", "2"))
RSL = int(os.environ.get("RSL", "4"))

S_W = 3
SX, SWS, SDBG, SA, SB2, SC, SD = 40, 44, 48, 52, 56, 60, 88
S_TH, S_CG, S_IDX, S_WQ, S_ISH, S_TB, S_G, S_TOK = 64, 65, 66, 67, 68, 69, 70, 71
T0, T1, T2, T3, T4, T5 = 72, 73, 74, 75, 76, 77
S_I, S_DB, S_RB, S_OX, S_OW, S_O2, S_O3, S_ST2 = 78, 79, 80, 81, 82, 83, 84, 85
S_EARLY, S_COL = 86, 87
S_UP = 92
S_MBX, S_ROT, S_MH, S_DL = 99, 100, 101, 98
S_NON = 79
S_OO = 56
S_OFL, S_KV, S_H0, S_K2 = 52, 53, 54, 55
VL, VT, VH, VL16, VL8, VF, VFL = 250, 251, 252, 253, 254, 249, 248
VLV = 0
VZ = 244
FBASE = [32, 48, 128, 144]
CSA = 26

def gen(name, force_fallback=False):
    a = Asm()
    kernel_begin(a, name)
    uid = [0]
    def lab(s):
        uid[0] += 1
        return f"L{uid[0]}_{s}"
    def emit(ch):
        for c in ch:
            for l in c: a(l)
    def lds_set(idx):
        a(f"v_mov_b32 v2, {FL_OFF + 4*idx}")
        a(f"v_mov_b32 v3, 1")
        a(f"ds_write_b32 v2, v3")
    def lds_wait(idx, n=1, sleep=1):
        L = lab("lw")
        a(f"v_mov_b32 v2, {FL_OFF + 4*idx}")
        a(f"{L}:")
        if n == 1:
            a("ds_read_b32 v4, v2")
            a("s_waitcnt lgkmcnt(0)")
        else:
            a("ds_read_b128 v[4:7], v2")
            if n == 8: a("ds_read_b128 v[8:11], v2 offset:16")
            a("s_waitcnt lgkmcnt(0)")
            a("v_bitop3_b32 v4, v4, v5, v6 bitop3:0x80")
            if n == 8:
                a("v_bitop3_b32 v8, v8, v9, v10 bitop3:0x80")
                a("v_bitop3_b32 v4, v4, v8, v11 bitop3:0x80")
            a("v_and_b32 v4, v4, v7")
            a("s_nop 0")
        a(f"v_readfirstlane_b32 s{T4}, v4")
        a("s_nop 0")
        a(f"s_cmp_eq_u32 s{T4}, 1")
        a(f"s_cbranch_scc1 {L}_d")
        a(f"s_sleep {sleep}")
        a(f"s_branch {L}")
        a(f"{L}_d:")
    def mbx_load(line):
        if line == 0:
            a(f"s_lshr_b32 s{T1}, s{S_TB}, 2")
            a(f"s_lshl_b32 s{T1}, s{T1}, 9")
            a(f"v_and_b32 v2, 3, v{VL}")
            a(f"v_lshl_add_u32 v2, v2, 7, s{T1}")
            a(f"v_and_b32 v3, 15, v{VL}")
            a(f"v_lshlrev_b32 v3, 9, v3")
            a(f"v_add_u32 v3, 384, v3")
            a(f"s_mov_b32 s{T0}, {QFL_OFF}")
            a(f"v_cndmask_b32 v2, v3, v2, s[{S_UP}:{S_UP+1}]")
        else:
            a(f"s_and_b32 s{T0}, s2, 7")
            a(f"s_lshl_b32 s{T0}, s{T0}, 12")
            a(f"s_add_u32 s{T0}, s{T0}, {HFL_OFF}")
            a(f"s_lshl_b32 s{T1}, s{S_TB}, 7")
            a(f"s_add_u32 s{T1}, s{T1}, {OFL_OFF}")
            a(f"s_sub_u32 s{T1}, s{T1}, s{T0}")
            a(f"v_and_b32 v2, 15, v{VL}")
            a(f"v_lshl_add_u32 v2, v2, 2, s{T1}")
            a(f"v_min_u32 v3, 23, v{VL}")
            a(f"v_lshlrev_b32 v3, 7, v3")
            a(f"v_cndmask_b32 v2, v3, v2, s[{S_UP}:{S_UP+1}]")
        a(f"buffer_load_dword v{VF}, v2, s[{SWS}:{SWS+3}], s{T0} offen sc1")
    def mbx_test():
        a(f"v_cmp_ne_u32 vcc, s{S_NON}, v{VF}")
        a("s_cmp_eq_u64 vcc, 0")
    def mbx_wait(line, sleep):
        L, D = lab("spin"), lab("done")
        a(f"s_mov_b32 s{T5}, 0")
        mbx_load(line)
        a(f"{L}:")
        a(f"s_add_u32 s{T5}, s{T5}, 1")
        a("s_waitcnt vmcnt(0)")
        mbx_test()
        a(f"s_cbranch_scc1 {D}")
        a(f"s_sleep {sleep}")
        a(f"buffer_load_dword v{VF}, v2, s[{SWS}:{SWS+3}], s{T0} offen sc1")
        a(f"s_cmp_lt_u32 s{T5}, {SPIN_MAX}")
        a(f"s_cbranch_scc1 {L}")
        a(f"{D}:")
    def zero_mfma(dst, z):
        a(f"v_mfma_f32_32x32x16_bf16 {vr(dst,16)}, {vr(z,4)}, {vr(z,4)}, 0")

    O = lambda q: [32, 48, 128, 144][q]
    S = lambda p: 64 + 16*p
    P0, P1 = 96, 100
    Q1 = lambda q: 168 + 4*q
    Q2 = lambda q: 184 + 2*q
    KVB = lambda r: 192 + 14*r
    K1 = lambda r: KVB(r); V1 = lambda r: KVB(r)+4; V2 = lambda r: KVB(r)+8; K2 = lambda r: KVB(r)+12
    VCW, VCR, VCW4, VCR4, VFR = 22, 23, 24, 25, 255
    VD = [168, 169, 170, 171, 172]
    VAR, VAR2, VR0, VR1, VXO, VRW = 173, 174, 175, 176, 177, 178
    VX = [22, 23]; VW, VW2, VW3 = 24, 25, 190

    a("s_cmp_ge_u32 s2, 256")
    a("s_cbranch_scc1 L_end")
    load_kernargs(a)
    a(f"s_getpc_b64 s[{T0}:{T1}]")
    a("L_pc:")
    if CPF == 0:
        a(f"v_lshlrev_b32 v1, 7, v0")
    else:
        a(f"s_lshr_b32 s{T2}, s2, 3")
        a(f"s_and_b32 s{T2}, s{T2}, {CPF-1}")
        a(f"s_mul_i32 s{T2}, s{T2}, {49152//CPF}")
        a(f"v_subrev_u32 v1, {512 - 384//CPF}, v0")
        a(f"v_cmp_gt_u32 vcc, {384//CPF}, v1")
        a(f"v_lshl_add_u32 v1, v1, 7, s{T2}")
        a("s_nop 0")
        a(f"v_cndmask_b32 v1, 0, v1, vcc")
    a(f"v_min_u32 v1, L_end-L_pc, v1")
    a(f"global_load_dword v{VF}, v1, s[{T0}:{T1}]")
    a("v_lshrrev_b32 v1, 6, v0")
    a(f"v_and_b32 v{VL}, 63, v0")
    a(f"v_readfirstlane_b32 s{S_W}, v1")
    a(f"s_and_b32 s{T0}, s2, 7")
    a(f"s_lshr_b32 s{S_IDX}, s2, 3")
    if QF1:
        a(f"s_add_u32 s{S_IDX}, s{S_IDX}, 24")
        a(f"s_and_b32 s{S_IDX}, s{S_IDX}, 31")
    a(f"s_and_b32 s{S_TH}, s{T0}, 1")
    a(f"s_lshr_b32 s{S_CG}, s{T0}, 1")
    a(f"s_and_b32 s{S_WQ}, s{S_W}, 3")
    a(f"s_lshr_b32 s{S_ISH}, s{S_W}, 2")
    a(f"s_lshl_b32 s{S_TOK}, s{S_TH}, 2")
    a(f"s_and_b32 s{T1}, s{S_IDX}, 3")
    a(f"s_add_u32 s{S_TOK}, s{S_TOK}, s{T1}")
    a(f"s_lshl_b32 s{S_TOK}, s{S_TOK}, 8")
    a(f"s_mul_i32 s{S_COL}, s{S_CG}, 6")
    a(f"s_lshr_b32 s{T1}, s{S_IDX}, 2")
    a(f"s_add_u32 s{S_COL}, s{S_COL}, s{T1}")
    a(f"s_lshl_b32 s{T1}, s{S_TH}, 3")
    a(f"s_add_u32 s{T1}, s{T1}, s{S_IDX}")
    a(f"s_sub_u32 s{T1}, s{T1}, 24")
    a(f"s_lshl_b32 s{T1}, s{T1}, 7")
    a(f"s_cmp_lt_u32 s{S_IDX}, 24")
    a(f"s_cselect_b32 s{S_TOK}, s{S_TOK}, s{T1}")
    a(f"s_cselect_b32 s{S_COL}, s{S_COL}, s{S_CG}")
    a(f"s_cselect_b32 s{T1}, 6, 5")
    a(f"v_and_b32 v{VT}, 31, v0")
    a(f"v_bfe_u32 v{VH}, v0, 5, 1")
    if not S0H:
        a(f"s_cmp_lg_u32 s{S_ISH}, 0")
        a(f"s_cbranch_scc1 L_p0_h")
    a(f"v_lshrrev_b32 v1, 3, v{VL}")
    a(f"v_lshrrev_b32 v2, 4, v{VL}")
    a(f"v_and_b32 v4, 7, v{VL}")
    a(f"v_xor_b32 v3, v2, v4")
    a(f"s_lshl_b32 s{T2}, s{S_WQ}, s{T1}")
    a(f"s_add_u32 s{T2}, s{T2}, s{S_TOK}")
    a(f"v_add_u32 v5, s{T2}, v1")
    a(f"v_mul_u32_u24 v5, 1280, v5")
    a(f"v_lshl_add_u32 v{VX[0]}, v3, 4, v5")
    a(f"v_xor_b32 v3, 4, v3")
    a(f"v_lshl_add_u32 v{VX[1]}, v3, 4, v5")
    S_MX, S_MW = S_OX, S_RB
    S_RX, S_RW = 86, 99
    a(f"s_mul_i32 s{T2}, s{S_IDX}, 3")
    a(f"s_mul_i32 s{T3}, s{T2}, 205")
    a(f"s_lshr_b32 s{T3}, s{T3}, 11")
    a(f"s_mul_i32 s{T3}, s{T3}, 10")
    a(f"s_sub_u32 s{S_RW}, s{T2}, s{T3}")
    if "0" not in ABL: a(f"s_mov_b32 s{S_RW}, 0")
    if "1" not in ABL and "0" not in ABL:
        a(f"s_lshr_b32 s{T2}, s{S_IDX}, 2")
        a(f"s_xor_b32 s{T2}, s{T2}, s{S_IDX}")
        a(f"s_and_b32 s{T2}, s{T2}, 1")
        a(f"s_mul_i32 s{S_RW}, s{T2}, 5")
    S_RX = 82
    a(f"s_lshl_b32 s{S_RX}, s{S_RW}, 7")
    a(f"s_cmp_lt_u32 s{S_IDX}, 24")
    a(f"s_cbranch_scc0 L_q_l")
    a(f"v_and_b32 v2, 1, v2")
    a(f"v_lshlrev_b32 v2, 1, v2")
    a(f"v_xor_b32 v4, v4, v2")
    a(f"s_lshl_b32 s{T2}, s{S_WQ}, 4")
    a(f"v_add_u32 v1, s{T2}, v1")
    a(f"v_mul_u32_u24 v1, 3072, v1")
    a(f"v_lshl_add_u32 v1, v4, 4, v1")
    a(f"s_lshl_b32 s{T2}, s{S_COL}, 7")
    a(f"v_add_u32 v{VW}, s{T2}, v1")
    a(f"s_lshl_b32 s{S_MX}, s{S_WQ}, 13")
    a(f"s_lshl_b32 s{S_MW}, s{S_WQ}, 11")
    a(f"s_mul_i32 s{S_RW}, s{S_RW}, {64*3072}")
    a("s_waitcnt lgkmcnt(0)")
    make_srd(a, SX, P_X, 2048*1280)
    make_srd(a, SA, P_WG, 640*3072)
    make_srd(a, SB2, P_WU, 640*3072)
    if TW:
        make_srd(a, SC, P_WO, 640*1280)
        a(f"v_lshlrev_b32 v190, 7, v{VL}")
    def dma_gu(st):
        db = (st % 3) * STG
        ch = []
        for j in (0, 1, 2, 3, 8, 9, 4, 5, 6, 7, 10, 11):
            c = []
            if j < 8:
                if j in (0, 4):
                    c += [f"s_add_u32 m0, s{S_MX}, {db + 4096*(j>>2)}"]
                c += [f"s_add_u32 s{T3}, s{S_RX}, {j*10240 - 1024*(j&3)}",
                      f"buffer_load_dwordx4 v{VX[j&1]}, s[{SX}:{SX+3}], s{T3} offen offset:{1024*(j&3)} lds"]
            else:
                srd = SA if j < 10 else SB2
                if j in (8, 10):
                    c += [f"s_add_u32 m0, s{S_MW}, {db + G_OFF + (U_REL if j == 10 else 0)}"]
                c += [f"s_add_u32 s{T3}, s{S_RW}, {(j&1)*(8*3072-1024)}",
                      f"buffer_load_dwordx4 v{VW}, s[{srd}:{srd+3}], s{T3} offen offset:{1024*(j&1)} lds"]
                if j == 11:
                    c += [f"s_add_u32 s{S_RX}, s{S_RX}, 128", f"s_add_u32 s{S_RW}, s{S_RW}, {64*3072}", f"s_cmp_eq_u32 s{S_RX}, 1280",
                          f"s_cselect_b32 s{S_RX}, 0, s{S_RX}", f"s_cselect_b32 s{S_RW}, 0, s{S_RW}"]
            ch.append(c)
        return ch
    if SP: stamp(a, 1)
    if S0H:
        ch0 = dma_gu(0)
        upd0, ch0[-1] = ch0[-1][-5:], ch0[-1][:-5]
        a(f"s_cmp_lg_u32 s{S_ISH}, 0")
        a(f"s_cbranch_scc1 L_s0h_g")
        emit(ch0[:6] + [upd0])
        a("s_branch L_common")
        a("L_s0h_g:")
        emit(ch0[6:])
        a("s_branch L_p0_h")
    else:
        emit(dma_gu(0))
    if SP: stamp(a, 2)
    a("s_branch L_common")
    a("L_q_l:")
    EX1, EX2, S_M2 = 60, 62, 79
    a(f"s_cmp_eq_u32 s{S_COL}, 3")
    a(f"s_cselect_b32 s{T0}, 40, 1280")
    a(f"s_lshl_b32 s{S_ST2}, s{T0}, 6")
    a(f"v_and_b32 v2, 1, v2")
    a(f"v_lshlrev_b32 v2, 2, v2")
    a(f"v_xor_b32 v4, v4, v2")
    a(f"s_lshl_b32 s{T1}, s{S_WQ}, 4")
    a(f"v_add_u32 v1, s{T1}, v1")
    a(f"v_mul_u32_u24 v3, 1280, v1")
    a(f"v_lshl_add_u32 v3, v4, 4, v3")
    a(f"s_mul_i32 s{T2}, s{S_COL}, 384")
    a(f"v_add_u32 v{VW}, s{T2}, v3")
    a(f"v_add_u32 v{VW2}, 128, v{VW}")
    a(f"v_add_u32 v{VW3}, 256, v{VW}")
    a(f"s_lshl_b32 s{S_MX}, s{S_WQ}, 12")
    a(f"s_lshl_b32 s{S_MW}, s{S_WQ}, 11")
    a(f"s_add_u32 s{S_M2}, s{S_MW}, 8192")
    a(f"s_mov_b64 s[{EX1}:{EX1+1}], -1")
    a(f"s_mov_b64 s[{EX2}:{EX2+1}], -1")
    a(f"s_mul_i32 s{S_O2}, s{S_RW}, s{S_ST2}")
    a(f"s_mul_i32 s{S_RW}, s{S_RW}, {64*1280}")
    a(f"s_lshr_b32 s{S_O3}, s{S_ST2}, 3")
    a(f"s_sub_u32 s{S_O3}, s{S_O3}, 1024")
    a("s_waitcnt lgkmcnt(0)")
    make_srd(a, SX, P_X, 2048*1280)
    for r in (SA, SB2, SD):
        make_srd(a, r, P_WQ, 640*1280)
    a(f"s_cmp_eq_u32 s{S_COL}, 3")
    a(f"s_cbranch_scc0 L_q_l1")
    a(f"s_mov_b64 s[{SB2}:{SB2+1}], s[{P_WK}:{P_WK+1}]")
    a(f"s_mov_b64 s[{SD}:{SD+1}], s[{P_WV}:{P_WV+1}]")
    a(f"s_mov_b32 s{SB2+2}, {640*40}")
    a(f"s_mov_b32 s{SD+2}, {640*40}")
    a(f"s_mov_b32 s{S_M2}, s{S_MW}")
    a(f"v_mul_u32_u24 v3, 40, v1")
    a(f"v_and_b32 v2, 3, v4")
    a(f"v_lshl_add_u32 v{VW2}, v2, 4, v3")
    a(f"v_mov_b32 v{VW3}, v{VW2}")
    a(f"v_cmp_gt_u32 s[{EX1}:{EX1+1}], 4, v4")
    a(f"v_cmp_le_u32 s[{EX2}:{EX2+1}], 4, v4")
    a("L_q_l1:")
    def dma_q(st):
        db = (st % 3) * STG
        ch = []
        for j in range(4):
            c = []
            if j == 0:
                c += [f"s_add_u32 m0, s{S_MX}, {db}"]
            c += [f"s_add_u32 s{T3}, s{S_RX}, {j*(10240-1024)}",
                  f"buffer_load_dwordx4 v{VX[j&1]}, s[{SX}:{SX+3}], s{T3} offen offset:{1024*j} lds"]
            ch.append(c)
        ch.append([f"s_add_u32 m0, s{S_MW}, {db + 16384}", f"s_add_u32 s{T3}, s{S_RW}, {8*1280-1024}",
                   f"buffer_load_dwordx4 v{VW}, s[{SA}:{SA+3}], s{S_RW} offen lds"])
        ch.append([f"buffer_load_dwordx4 v{VW}, s[{SA}:{SA+3}], s{T3} offen offset:1024 lds"])
        for sm, srd, vo, ex in ((S_MW, SB2, VW2, EX1), (S_M2, SD, VW3, EX2)):
            ch.append([f"s_add_u32 m0, s{sm}, {db + 16384 + 8192}", f"s_mov_b64 exec, s[{ex}:{ex+1}]",
                       f"buffer_load_dwordx4 v{vo}, s[{srd}:{srd+3}], s{S_O2} offen lds", "s_mov_b64 exec, -1"])
            ch.append([f"s_add_u32 m0, s{sm}, {db + 16384 + 8192 + 1024}", f"s_add_u32 s{T3}, s{S_O2}, s{S_O3}", f"s_add_u32 s{T3}, s{T3}, 1024", f"s_mov_b64 exec, s[{ex}:{ex+1}]",
                       f"buffer_load_dwordx4 v{vo}, s[{srd}:{srd+3}], s{T3} offen lds", "s_mov_b64 exec, -1"])
        ch[-1] += [f"s_add_u32 s{S_RX}, s{S_RX}, 128", f"s_add_u32 s{S_RW}, s{S_RW}, {64*1280}", f"s_add_u32 s{S_O2}, s{S_O2}, s{S_ST2}", f"s_cmp_eq_u32 s{S_RX}, 1280",
                   f"s_cselect_b32 s{S_RX}, 0, s{S_RX}", f"s_cselect_b32 s{S_RW}, 0, s{S_RW}", f"s_cselect_b32 s{S_O2}, 0, s{S_O2}"]
        return ch
    if SP: stamp(a, 1)
    if S0H:
        ch0 = dma_q(0)
        upd0, ch0[-1] = ch0[-1][-7:], ch0[-1][:-7]
        a(f"s_cmp_lg_u32 s{S_ISH}, 0")
        a(f"s_cbranch_scc1 L_s0h_q")
        emit(ch0[:6] + [upd0])
        a("s_branch L_common")
        a("L_s0h_q:")
        emit(ch0[6:])
        a("s_branch L_p0_h")
    else:
        emit(dma_q(0))
    if SP: stamp(a, 2)
    a("s_branch L_common")

    a("L_p0_h:")
    a(f"s_lshl_b32 s{T0}, s2, 3")
    a(f"s_lshl_b32 s{T1}, s{S_WQ}, 1")
    a(f"s_add_u32 s{T0}, s{T0}, s{T1}")
    a(f"v_add_u32 v4, s{T0}, v{VH}")
    a(f"v_mul_u32_u24 v5, 1280, v4")
    a(f"v_lshl_add_u32 v5, v{VT}, 3, v5")
    a(f"v_lshlrev_b32 v255, 3, v4")
    a(f"v_mov_b32 v242, 0")
    a(f"s_mov_b32 s{T1}, {EPOCH_OFF}")
    a("s_waitcnt lgkmcnt(0)")
    make_srd(a, SX, P_X, 2048*1280)
    make_srd(a, SWS, P_WS, WS_SIZE)
    a(f"buffer_load_dword v203, v242, s[{SWS}:{SWS+3}], s{T1} offen sc1")
    for j in range(5):
        a(f"buffer_load_dwordx2 {vr(192+2*j,2)}, v5, s[{SX}:{SX+3}], 0 offen offset:{256*j}")

    if PGT:
        make_srd(a, SD, P_OUT, 2048*1280)
        a(f"s_cmp_eq_u32 s{S_WQ}, 1")
        a(f"s_cselect_b64 s[{SD}:{SD+1}], s[{P_WD}:{P_WD+1}], s[{SD}:{SD+1}]")
        a(f"s_cselect_b32 s{SD+2}, {1536*1280}, s{SD+2}")
        a(f"s_cmp_eq_u32 s{S_WQ}, 2")
        a(f"s_cselect_b64 s[{SD}:{SD+1}], s[{P_WO}:{P_WO+1}], s[{SD}:{SD+1}]")
        a(f"s_cselect_b32 s{SD+2}, {640*1280}, s{SD+2}")
        a(f"s_cmp_eq_u32 s{S_WQ}, 3")
        a(f"s_cselect_b64 s[{SD}:{SD+1}], s[{P_WS}:{P_WS+1}], s[{SD}:{SD+1}]")
        a(f"s_cselect_b32 s{SD+2}, {0xC00000}, s{SD+2}")
        a(f"v_lshlrev_b32 v1, 19, v{VL}")
        a(f"s_lshl_b32 s{T0}, s2, 7")
        a(f"buffer_load_dword v246, v1, s[{SD}:{SD+3}], s{T0} offen")

    a("L_common:")
    make_srd(a, SWS, P_WS, WS_SIZE)
    make_srd(a, SDBG, P_DBG, 256)
    a(f"s_and_b32 s{S_MH}, s{S_W}, 1")
    a(f"s_lshr_b32 s{S_ROT}, s{S_W}, 1")
    a(f"s_mov_b32 s{S_UP}, 0")
    a(f"s_mov_b32 s{S_UP+1}, -1")
    a(f"v_lshlrev_b32 v{VL16}, 4, v{VL}")
    a(f"v_bfe_u32 v1, v{VT}, 1, 3")
    a(f"v_xor_b32 v1, v1, v{VH}")
    a(f"s_lshl_b32 s{T1}, s{S_ROT}, 1")
    a(f"v_xor_b32 v1, s{T1}, v1")
    a(f"v_lshlrev_b32 v2, 7, v{VT}")
    a(f"s_cmp_lt_u32 s{S_IDX}, 24")
    a(f"s_cselect_b32 s{T0}, 13, 12")
    a(f"s_lshl_b32 s{T0}, s{S_ROT}, s{T0}")
    a(f"v_add_u32 v2, s{T0}, v2")
    VB = lambda sg: 18 + sg
    for sg in range(4):
        a(f"v_xor_b32 v3, {2*sg}, v1")
        a(f"v_lshl_add_u32 v{VB(sg)}, v3, 4, v2")
    for r in range(CSA, CSA+6):
        a(f"v_mov_b32 v{r}, 0")
    a(f"s_and_b32 s{T0}, s2, 7")
    a(f"s_lshl_b32 s{S_TB}, s{T0}, 3")
    a(f"s_and_b32 s{T1}, s{S_IDX}, 7")
    a(f"s_add_u32 s{S_TB}, s{S_TB}, s{T1}")
    a(f"s_lshr_b32 s{S_G}, s{S_IDX}, 3")
    a(f"s_mov_b32 s{S_EARLY}, 0")
    a(f"s_mov_b32 s{S_DL}, {STG}")
    a(f"s_mov_b32 s{S_I}, {-2*STG & 0xffffffff}")
    a(f"v_bfe_u32 v1, v{VL}, 2, 2")
    a(f"v_lshl_add_u32 v2, v{VH}, 3, v1")
    a(f"v_bfe_u32 v3, v{VL}, 4, 1")
    a(f"s_cmp_lt_u32 s{S_IDX}, 24")
    a(f"s_cbranch_scc0 L_q_rd")
    VAg = lambda sg, aa: 10 + 2*sg + aa
    a(f"v_lshlrev_b32 v2, 7, v2")
    a(f"v_mul_u32_u24 v3, {U_REL}, v3")
    a(f"v_add_u32 v2, v2, v3")
    a(f"v_and_b32 v1, 2, v1")
    a(f"v_bfe_u32 v3, v{VL}, 1, 1")
    a(f"v_add_u32 v1, v1, v3")
    a(f"v_lshl_add_u32 v2, v1, 4, v2")
    a(f"v_and_b32 v3, 1, v{VL}")
    a(f"v_lshl_add_u32 v2, v3, 3, v2")
    a(f"s_lshl_b32 s{T0}, s{S_MH}, 6")
    a(f"s_add_u32 s{T0}, s{T0}, {G_OFF}")
    for sg in range(4):
        a(f"s_xor_b32 s{T1}, s{S_ROT}, {sg}")
        a(f"s_lshl_b32 s{T1}, s{T1}, 11")
        a(f"s_add_u32 s{T1}, s{T1}, s{T0}")
        a(f"v_add_u32 v{VAg(sg,0)}, s{T1}, v2")
        a(f"v_xor_b32 v{VAg(sg,1)}, 32, v{VAg(sg,0)}")

    def one(lst): return [[x] for x in lst]
    def bg_common():
        o = [f"v_lshlrev_b32 v{VL8}, 3, v{VL}", "v_mov_b32 v4, 0x80000000", f"v_cndmask_b32 v{VL8}, v{VL8}, v4, s[{S_UP}:{S_UP+1}]",
             f"v_mul_u32_u24 v5, 21, v{VH}", f"v_add_lshl_u32 v5, v5, v{VT}, 4", f"v_cmp_gt_u32 vcc, 21, v{VT}", "s_nop 1", f"v_cndmask_b32 v{VLV}, v4, v5, vcc", f"s_lshl_b32 s{T0}, s{S_W}, 2", f"s_add_u32 s{T0}, s{T0}, {FL_OFF}", f"v_mov_b32 v{VFL}, s{T0}"]
        o += [f"v_mov_b32 v{r}, 0" for r in (243, 244, 245)]
        return one(o)
    def bg_L():
        o = [f"v_mov_b32 v246, 0", f"v_mov_b32 v247, 0", f"s_mul_i32 s{T0}, s{S_G}, 320"]
        for j in range(5):
            o += [f"v_add_u32 v6, {64*j}, v{VL}", f"v_mul_u32_u24 v4, 3277, v6", f"v_lshrrev_b32 v4, 16, v4", f"v_mul_u32_u24 v5, 20, v4",
                  f"v_sub_u32 v5, v6, v5", f"v_mul_u32_u24 v4, 1280, v4", f"v_lshl_add_u32 v4, v5, 4, v4", f"v_add_u32 v{VD[j]}, s{T0}, v4"]
            if 0 < j < 4: o += [f"v_subrev_u32 v{VD[j]}, {1024*j}, v{VD[j]}"]
        o += [
              f"s_mul_i32 s{T0}, s{S_WQ}, {RSZ}", f"v_bfe_u32 v6, v{VL}, 2, 2", f"v_bfe_u32 v4, v{VL}, 4, 1", f"v_and_b32 v5, 3, v{VL}",
              f"v_lshl_add_u32 v4, v4, 2, v5", f"s_lshl_b32 s{T1}, s{S_WQ}, 1", f"v_xor_b32 v4, s{T1}, v4", f"v_lshl_add_u32 v4, v4, 3, s{T0}",
              f"v_lshl_add_u32 v5, v{VH}, 2, v6", f"v_mul_u32_u24 v5, 320, v5", f"v_add_u32 v{VAR}, v4, v5",
              f"v_lshl_add_u32 v5, v{VH}, 3, v6", f"v_mul_u32_u24 v5, 320, v5", f"v_add_u32 v{VAR2}, v4, v5", f"v_add_u32 v{VRW}, s{T0}, v{VL16}"]
        for i, vv in ((1, VR0), (2, VR1), (3, VRW+1)):
            o += [f"s_xor_b32 s{T1}, s{S_WQ}, {i}", f"s_mul_i32 s{T1}, s{T1}, {RSZ}", f"v_add_u32 v{vv}, s{T1}, v{VL16}"]
        return one(o)
    VRD = {1: VR0, 2: VR1, 3: VRW+1}
    def touches():
        a(f"s_lshl_b32 s{T0}, s{S_TH}, 10")
        a(f"s_lshl_b32 s{T1}, s{S_IDX}, 5")
        a(f"s_add_u32 s{T0}, s{T0}, s{T1}")
        a(f"v_add_u32 v1, s{T0}, v{VT}")
        a(f"v_mul_u32_u24 v1, 1280, v1")
        a(f"v_mov_b32 v2, 128")
        a(f"v_mov_b32 v3, s{P_X}")
        a(f"v_mov_b32 v4, s{P_X+1}")
        a(f"v_min_u32 v5, 29, v{VT}")
        a(f"v_cmp_le_u32 vcc, 15, v5")
        a(f"s_lshl_b32 s{T0}, s{S_IDX}, 1")
        a(f"v_mov_b32 v6, s{T0}")
        a(f"v_subrev_u32 v7, 15, v5")
        a(f"v_addc_co_u32 v6, s[{T2}:{T3}], 0, v6, vcc")
        a(f"v_cndmask_b32 v5, v5, v7, vcc")
        a(f"v_cmp_le_u32 vcc, 6, v5")
        a(f"v_subrev_u32 v7, 6, v5")
        a(f"v_mov_b32 v8, s{P_WG}")
        a(f"v_cndmask_b32 v7, v5, v7, vcc")
        a(f"v_mov_b32 v9, s{P_WU}")
        a(f"v_cndmask_b32 v8, v8, v9, vcc")
        a(f"v_mov_b32 v9, s{P_WG+1}")
        a(f"v_mov_b32 v32, s{P_WU+1}")
        a(f"v_cndmask_b32 v9, v9, v32, vcc")
        a(f"s_mul_i32 s{T0}, s{S_CG}, 768")
        a(f"v_mul_u32_u24 v32, 3072, v6")
        a(f"v_lshl_add_u32 v32, v7, 7, v32")
        a(f"v_add_u32 v32, s{T0}, v32")
        a(f"v_mov_b32 v33, {64*3072}")
        a(f"v_cmp_le_u32 vcc, 12, v5")
        a(f"s_mul_i32 s{T0}, s{S_CG}, 384")
        a(f"s_sub_u32 s{T0}, s{T0}, {12*128}")
        a(f"v_lshl_add_u32 v7, v5, 7, s{T0}")
        a(f"v_min_u32 v7, 1152, v7")
        a(f"v_mul_u32_u24 v6, 1280, v6")
        a(f"v_add_u32 v7, v7, v6")
        a(f"v_cndmask_b32 v32, v32, v7, vcc")
        a(f"v_mov_b32 v7, {64*1280}")
        a(f"v_cndmask_b32 v33, v33, v7, vcc")
        a(f"v_mov_b32 v7, s{P_WQ}")
        a(f"v_cndmask_b32 v8, v8, v7, vcc")
        a(f"v_mov_b32 v7, s{P_WQ+1}")
        a(f"v_cndmask_b32 v9, v9, v7, vcc")
        for d, s_ in ((1, 32), (2, 33), (3, 8), (4, 9)):
            a(f"v_cndmask_b32 v{d}, v{d}, v{s_}, s[{S_UP}:{S_UP+1}]")
        a(f"s_add_u32 s{T0}, s{S_WQ}, 3")
        a(f"v_mul_lo_u32 v5, v2, s{T0}")
        a(f"v_add_u32 v1, v1, v5")
        a(f"v_add_co_u32 v6, vcc, v3, v1")
        a(f"s_cmp_eq_u32 s{S_WQ}, 3")
        a(f"s_cselect_b32 s{T0}, 3, 4")
        a(f"v_addc_co_u32 v7, vcc, 0, v4, vcc")
        a(f"global_load_dword v246, v[6:7], off")
        a(f"v_mul_lo_u32 v2, v2, s{T0}")
        a(f"v_add_co_u32 v8, vcc, v6, v2")
        a(f"s_nop 1")
        a(f"v_addc_co_u32 v9, vcc, 0, v7, vcc")
        a(f"global_load_dword v247, v[8:9], off")
    NT_ = 2 if "T" in ABL else PGT
    def bg_H(full=True, late=False):
        d = {i: [] for i in range(10)}
        d[0].append([f"s_waitcnt vmcnt({NT_})"])
        st = ["v_mov_b32 v8, 0", "v_mov_b32 v9, 0"]
        for j in range(10):
            st += [f"v_lshlrev_b32 v4, 16, v{192+j}", f"v_and_b32 v5, 0xffff0000, v{192+j}", "v_add_f32 v8, v8, v4", "v_fmac_f32 v9, v4, v4",
                   "v_add_f32 v8, v8, v5", "v_fmac_f32 v9, v5, v5"]
        for rr in (8, 4, 2, 1):
            st += ["s_nop 0", f"v_add_f32_dpp v8, v8, v8 row_ror:{rr} row_mask:0xf bank_mask:0xf", f"v_add_f32_dpp v9, v9, v9 row_ror:{rr} row_mask:0xf bank_mask:0xf"]
        st += ["v_mov_b32 v4, v8", "v_mov_b32 v5, v9", "s_nop 1", "v_permlane16_swap_b32 v4, v8", "v_permlane16_swap_b32 v5, v9", "s_nop 1",
               "v_add_f32 v4, v4, v8", "v_add_f32 v5, v5, v9", f"v_mul_f32 v4, {f32bits(-1.0/640)}, v4", f"v_mul_f32 v5, {f32bits(1.0/640)}, v5",
               "v_fma_f32 v5, -v4, v4, v5", "v_max_f32 v5, 0, v5", "v_cvt_pk_bf16_f32 v5, v5, v5", "v_lshlrev_b32 v5, 16, v5",
               f"v_add_f32 v5, {f32bits(1e-5)}, v5", "v_cvt_pk_bf16_f32 v5, v5, v5", "v_lshlrev_b32 v5, 16, v5", "v_sqrt_f32 v5, v5", "s_nop 0",
               "v_cvt_pk_bf16_f32 v202, v4, v5"]
        h = len(st)//2
        d[0] += one(st[:24]); d[1] += one(st[24:])
        d[0].insert(1, ["v_add_u32 v203, 1, v203"]); d[0].insert(2, ["v_or_b32 v203, 0x80000000, v203"])
        d[0].insert(3, [f"v_mov_b32 v4, {FL_OFF + 128}", "ds_write_b32 v4, v203", f"v_readfirstlane_b32 s{S_NON}, v203"])
        d[1] += [["s_mov_b32 exec_lo, 1", "s_mov_b32 exec_hi, 1", f"s_mov_b32 s{T0}, {STF_OFF}",
                  f"buffer_store_dwordx2 v[202:203], v255, s[{SWS}:{SWS+3}], s{T0} offen sc1", "s_mov_b64 exec, -1"]]
        o = [f"s_lshl_b32 s{T0}, s{S_TB}, 5", f"s_lshl_b32 s{T1}, s{S_G}, 2", f"s_add_u32 s{T0}, s{T0}, s{T1}", f"s_add_u32 s{T0}, s{T0}, s{S_WQ}",
             f"s_lshl_b32 s{T0}, s{T0}, 2", f"s_add_u32 s{S_OFL}, s{T0}, {OFL_OFF}",
             f"s_and_b32 s{S_K2}, s{S_WQ}, 2", f"s_mul_i32 s{S_KV}, s{S_K2}, {16*KVS}", f"s_add_u32 s{S_KV}, s{S_KV}, {KVF_OFF}",
             f"s_lshl_b32 s{S_H0}, s{S_G}, 3", f"s_and_b32 s{T0}, s{S_WQ}, 1", f"s_lshl_b32 s{T0}, s{T0}, 2", f"s_add_u32 s{S_H0}, s{S_H0}, s{T0}",
             f"v_lshlrev_b32 v7, 4, v{VT}", f"v_mov_b32 v8, 0x80000000"]
        for q in range(4):
            o += [f"s_xor_b32 s{T0}, s{S_K2}, {q}", f"s_add_u32 s{T0}, s{T0}, s{S_H0}", f"s_mul_i32 s{T0}, s{T0}, 5"]
            for j, dst in enumerate((Q1(q), Q1(q)+2, Q2(q))):
                o += [f"v_add_u32 v4, s{T0}, v{VH}"]
                if j: o += [f"v_add_u32 v4, {2*j}, v4"]
                o += [f"v_lshrrev_b32 v5, 2, v4", f"v_lshl_add_u32 v5, v5, 10, v7", f"v_and_b32 v6, 1, v4", f"v_lshl_add_u32 v5, v6, 9, v5",
                      f"v_and_b32 v6, 2, v4", f"v_lshl_add_u32 v{dst}, v6, 2, v5"]
                if j == 2: o += [f"v_cndmask_b32 v{dst}, v{dst}, v8, s[{S_UP}:{S_UP+1}]"]
        o += [f"s_lshl_b32 s{T0}, s{S_WQ}, 13", f"s_add_u32 s{T0}, s{T0}, {CB_OFF}", f"s_xor_b32 s{T1}, s{S_WQ}, 2", f"s_lshl_b32 s{T1}, s{T1}, 13",
              f"s_add_u32 s{T1}, s{T1}, {CB_OFF}", f"v_add_u32 v{VCW}, s{T0}, v{VL16}", f"v_add_u32 v{VCR}, s{T1}, v{VL16}",
              ]
        n3 = (len(o) + 2)//3
        pois = [f"s_add_u32 s{T1}, s{S_H0}, s{S_K2}", f"s_mul_i32 s{T1}, s{T1}, 5", f"s_mul_i32 s{S_OO}, s{S_TB}, 160", f"s_add_u32 s{S_OO}, s{S_OO}, s{T1}",
                f"s_lshl_b32 s{S_OO}, s{S_OO}, 8", f"s_add_u32 s{S_OO}, s{S_OO}, {OF_OFF}"] + [f"v_mov_b32 v{r}, -1" for r in range(204, 208)] + \
               [f"buffer_store_dwordx4 v[204:207], v{VL16}, s[{SWS}:{SWS+3}], s{S_OO} offen sc1",
                f"buffer_store_dwordx4 v[204:207], v{VL16}, s[{SWS}:{SWS+3}], s{S_OO} offen offset:1024 sc1",
                f"buffer_store_dwordx4 v[204:207], v{VL16}, s[{SWS}:{SWS+3}], s{S_OO} offen offset:1536 sc1"]
        if late == 2: return one(pois)
        if late: return one(o)
        if full: d[5] += one(o[:n3]); d[6] += one(o[n3:2*n3]); d[7] += one(o[2*n3:])

        if full: d[6].insert(0, pois)
        d[2] += bg_common()
        return d

    def p1_phase(tag, nA, nB, ND, dma, reads, FA, FB, ACC, addr_regs, early):
        nR = 2*nA + nB
        nm = nA*nB
        dw = [(aa, i) for aa in range(nA) for i in range(4)]
        hd = len(dw)//2; qd = hd//2
        def cs_ops(p, lst):
            o = []
            if "c" in ABL: return o
            for aa, i in lst:
                o += [f"v_lshlrev_b32 v2, 16, v{FA(p,aa)+i}", f"v_and_b32 v3, 0xffff0000, v{FA(p,aa)+i}",
                      f"v_add_f32 v{CSA+2*aa}, v{CSA+2*aa}, v2", f"v_add_f32 v{CSA+2*aa+1}, v{CSA+2*aa+1}, v3"]
            return o
        sets3 = A3 == 2 or (A3 and not early)
        cur = [0]
        def group(p, rd_sg, extra=(), dma_ch=(), bg=(), first=False, skip=False):
            extra = list(extra); bg = list(bg)
            rd = reads(rd_sg) if (rd_sg is not None and "r" not in ABL) else []
            if sets3 and cur[0] % 3:
                for r in addr_regs(rd_sg) if rd_sg is not None else []:
                    rd = [x.replace(f", v{r} ", f", v{196 + 12*(cur[0] % 3) + r - 10} ") if f", v{r} " in x + " " else x for x in [y + " " for y in rd]]
                    rd = [x.strip() for x in rd]
            per = (len(extra) + nm - 1)//nm
            bper = (len(bg) + nm - 1)//nm
            rper = (len(rd) + 1)//2
            dch = list(dma_ch)
            k = 0
            for aa in range(nA):
                for b in range(nB):
                    if "m" not in ABL and not skip:
                        a(f"v_mfma_f32_32x32x16_bf16 {vr(ACC(aa,b),16)}, {vr(FA(p,aa),4)}, {vr(FB(p,b),4)}, {'0' if first else vr(ACC(aa,b),16)}")
                    for e in rd[rper*k:rper*(k+1)]: a(e)
                    ndc = (len(dch) + (nm - k) - 1)//(nm - k)
                    emit(dch[:ndc]); dch = dch[ndc:]
                    for e in extra[per*k:per*(k+1)]: a(e)
                    emit(bg[bper*k:bper*(k+1)])
                    k += 1
        def upd(sg, st):
            if sets3: return []
            sreg = S_I if st % 3 == 2 else S_DL
            return [f"v_add_u32 v{r}, s{sreg}, v{r}" for r in addr_regs(sg)] if st < 9 else []
        def run(role):
            bgd = bg_H(early) if role == "H" else {i: [] for i in range(10)}
            if role == "L":
                o = bg_common() + (bg_L() if early else []); n = (len(o) + 4)//5
                for i in range(5): bgd[1+i] = o[n*i:n*(i+1)]
            for it in range(10):
                cur[0] = it
                if it == 0 and sets3:
                    for k3 in (1, 2):
                        for r in range(10, 22):
                            a(f"v_add_u32 v{196 + 12*k3 + r - 10}, {k3*STG}, v{r}")
                if role == "L":
                    if it == 0: emit(dma(1))
                    a(f"s_waitcnt vmcnt({ND if it < 9 else ((4 // len(TW)) if (early and 8 in TW) else 0)})")
                if role == "H" and it == 0 and S0H: a(f"s_waitcnt vmcnt({6 + NT_})")
                if SP and it == 0: stamp(a, 3)
                a("s_barrier")
                if SP and it == 0: stamp(a, 4)
                if "I" in ABL:
                    a(f"v_writelane_b32 v241, s12, {it}"); a("s_memtime s[12:13]")
                pre = []
                if role == "H":
                    if it == 4:
                        pre = [[f"v_xor_b32 v{VFR}, 8, v{VFL}"]]
                    if it == 8 and early:
                        a("s_waitcnt vmcnt(0)")
                        a("s_mov_b64 exec, 1")
                        a(f"buffer_store_dword v203, v242, s[{SWS}:{SWS+3}], s{S_OFL} offen sc1")
                        a("s_mov_b64 exec, -1")
                    if it == 8 or it == 9:
                        Lx = lab("hk")
                        a(f"s_cmp_lg_u32 s{S_W}, 4")
                        a(f"s_cbranch_scc1 {Lx}")
                        if it == 8:
                            a(f"s_lshl_b32 s{T0}, s{S_TOK}, 3")
                            a(f"s_add_u32 s{S_O2}, s{T0}, {STF_OFF}")
                            a(f"buffer_load_dwordx4 v[160:163], v{VL16}, s[{SWS}:{SWS+3}], s{S_O2} offen sc1")
                            a(f"buffer_load_dwordx4 v[164:167], v{VL16}, s[{SWS}:{SWS+3}], s{S_O2} offen offset:{1024 if nB == 2 else 0} sc1")
                        if it == 9:
                            a(f"s_call_b64 s[{T4}:{T5}], L_stats")
                            if early: mbx_load(0)
                        a(f"{Lx}:")
                elif it == 9:
                    a(f"v_mov_b32 v4, {FL_OFF + 128}"); a("ds_read_b32 v5, v4")
                    pre = [[f"v_readfirstlane_b32 s{S_NON}, v5"]]
                xl = 1 if ((role == "H" and it == 3) or (role == "L" and it == 9)) else 0
                ch = dma(it + 2) if (role == "L" and it < 8 and "g" not in ABL) else []
                if role == "L" and early and it in TW:
                    t_ = TW.index(it); per = 4 // len(TW) if len(TW) <= 4 else 1
                    tl = []
                    for u in range(per):
                        tl += [f"s_lshl_b32 s{T3}, s{S_IDX}, 2", f"s_add_u32 s{T3}, s{T3}, s{S_WQ}", f"s_lshl_b32 s{T3}, s{T3}, 2", f"s_add_u32 s{T3}, s{T3}, {t_*per+u}",
                               f"s_cmp_lt_u32 s{T3}, 240", f"s_cselect_b64 s[{SC}:{SC+1}], s[{P_WD}:{P_WD+1}], s[{P_WO}:{P_WO+1}]",
                               f"s_cselect_b32 s{SC+2}, {1536*1280}, s{SC+2}", f"s_cselect_b32 s{T2}, 0, 240", f"s_sub_u32 s{T3}, s{T3}, s{T2}", f"s_lshl_b32 s{T3}, s{T3}, 13",
                               f"buffer_load_dword v191, v190, s[{SC}:{SC+3}], s{T3} offen", f"s_mov_b32 s{SC+2}, {640*1280}"]
                    ch = [tl] + ch
                q = (len(ch) + 3)//4
                bg = bgd[it]; bq = (len(bg) + 3)//4
                if it == 0: bq = (len(bg) + 1)//2; b0, b1, b2, b3 = [], [], bg[:bq], bg[bq:]
                else: b0, b1, b2, b3 = bg[:bq], bg[bq:2*bq], bg[2*bq:3*bq], bg[3*bq:]
                group(2, 0, extra=(upd(3, it-1) + cs_ops(2, dw[hd:hd+qd])) if it else [], dma_ch=ch[0:q], bg=b0, skip=(it == 0))
                group(3, 1, extra=upd(0, it) + (cs_ops(2, dw[hd+qd:]) if it else []), dma_ch=ch[q:2*q], bg=b1, skip=(it == 0))
                a(f"s_waitcnt lgkmcnt({nR})")
                group(0, 2, extra=upd(1, it) + cs_ops(0, dw[:qd]), dma_ch=ch[2*q:3*q], bg=pre + b2, first=(it == 0))
                a(f"s_waitcnt lgkmcnt({nR})")
                group(1, 3, extra=upd(2, it) + cs_ops(0, dw[qd:hd]), dma_ch=ch[3*q:], bg=b3)
                a("s_waitcnt lgkmcnt(0)")
        if not SP: stamp(a, 1)
        a(f"s_cmp_lg_u32 s{S_ISH}, 0")
        a(f"s_cbranch_scc1 L_{tag}_h")
        run("L")
        a(f"s_branch L_{tag}_fin")
        a(f"L_{tag}_h:")
        if "T" in ABL: touches()
        a(f"v_lshlrev_b32 v1, 2, v{VL}")
        a(f"v_add_u32 v1, {FL_OFF}, v1")
        a(f"ds_write_b32 v1, v242")
        a("s_waitcnt lgkmcnt(0)")
        run("H")
        a(f"L_{tag}_fin:")
        group(2, None, extra=cs_ops(2, dw[hd:]))
        group(3, None)
        if not SP: stamp(a, 2)
        if "I" in ABL:
            a(f"v_writelane_b32 v241, s12, 10")
            a("s_waitcnt lgkmcnt(0)")
            a(f"v_writelane_b32 v241, s4, 0")
            a(f"v_writelane_b32 v241, s8, 11")
            a(f"s_lshl_b32 s{T0}, s2, 3"); a(f"s_add_u32 s{T0}, s{T0}, s3"); a(f"s_lshl_b32 s{T0}, s{T0}, 8"); a(f"s_add_u32 s{T0}, s{T0}, 0x1000000")
            a(f"v_lshlrev_b32 v2, 2, v{VL}")
            a(f"buffer_store_dword v241, v2, s[{SWS}:{SWS+3}], s{T0} offen")
        if "X" in ABL: endpgm(a, 0)
        a(f"s_mul_i32 s{T2}, s{S_MH}, {nA}")
        a(f"s_lshl_b32 s{T0}, s{T2}, 10")
        a(f"s_add_u32 s{T0}, s{T0}, {CS_OFF}")
        a(f"v_add_u32 v1, s{T0}, v{VL16}")
        a(f"s_lshl_b32 s{T1}, s{S_ROT}, 2")
        a(f"v_add_u32 v9, s{T1}, v1")
        for aa in range(nA):
            a(f"v_add_f32 v{2+aa}, v{CSA+2*aa}, v{CSA+2*aa+1}")
        for aa in range(nA):
            a(f"v_cvt_pk_bf16_f32 v{5+aa}, v{2+aa}, v{2+aa}")
        for aa in range(nA):
            a(f"v_lshlrev_b32 v{5+aa}, 16, v{5+aa}")
        for aa in range(nA):
            a(f"v_sub_f32 v{5+aa}, v{2+aa}, v{5+aa}")
        for aa in range(nA):
            a(f"v_cvt_pk_bf16_f32 v{5+aa}, v{2+aa}, v{5+aa}")
            a(f"ds_write_b32 v9, v{5+aa} offset:{1024*aa}")
        if early:
            Lx = lab("nost")
            a(f"s_cmp_lg_u32 s{S_W}, 4")
            a(f"s_cbranch_scc1 {Lx}")
            a("s_waitcnt vmcnt(0)")
            mbx_test()
            a(f"s_cbranch_scc0 {Lx}")
            lds_set(16)
            a(f"{Lx}:")
        a(f"s_lshl_b32 s{T1}, s{S_ROT}, {8 + (nB-1)}")
        a(f"s_add_u32 s{T1}, s{T1}, {ST_OFF}")
        a(f"v_lshl_add_u32 v5, v{VT}, 3, s{T1}")
        a(f"v_mov_b32 v6, {FL_OFF + 64}")
        a("s_waitcnt lgkmcnt(0)")
        a("s_barrier")
        for b in range(nB):
            a(f"ds_read_b64 {vr(160+4*b,2)}, v5 offset:{256*b}")
        for aa in range(nA):
            a(f"ds_read_b128 {vr(10+4*aa,4)}, v1 offset:{1024*aa}")
        if early:
            a("ds_read_b32 v4, v6")
        a(f"s_cmp_eq_u32 s{S_ISH}, 0")
        a(f"s_cbranch_scc1 L_{tag}_np")
        a("s_setprio 2")
        a(f"L_{tag}_np:")
        a(f"s_waitcnt lgkmcnt({nA + (1 if early else 0)})")
        for b in range(nB):
            a(f"v_mov_b32 v{26+b}, v{161+4*b}")
            for j in (1, 2, 3):
                a(f"v_mov_b32 v{160+4*b+j}, v{160+4*b}")
        a("s_waitcnt lgkmcnt(0)")
        a("s_nop 0")
        for b in range(nB):
            for aa in range(nA):
                a(f"v_mfma_f32_32x32x16_bf16 {vr(ACC(aa,b),16)}, {vr(10+4*aa,4)}, {vr(160+4*b,4)}, {vr(ACC(aa,b),16)}")

    FA = lambda p, aa: FBASE[p] + 4*aa
    FB = lambda p, b: FBASE[p] + 8 + 4*b
    ACC = lambda aa, b: 64 + 16*(2*aa + b)
    def reads_gu(sg):
        o = []
        for aa in range(2):
            for n in range(2):
                o.append(f"ds_read_b64_tr_b16 {vr(FA(sg,aa)+2*n,2)}, v{VAg(sg,aa)} offset:{512*n}")
            o.append(f"ds_read_b128 {vr(FB(sg,aa),4)}, v{VB(sg)} offset:{4096*aa}")
        return o
    p1_phase("gu", 2, 2, 12, dma_gu, reads_gu, FA, FB, ACC, lambda sg: [VAg(sg,0), VAg(sg,1), VB(sg)], True)
    a(f"v_readfirstlane_b32 s{S_EARLY}, v4")
    a(f"v_mul_f32 v26, v26, v26")
    a(f"v_mul_f32 v28, v27, v27")
    a(f"s_and_b32 s{S_EARLY}, s{S_EARLY}, s{S_ISH}")
    a(f"s_cmp_eq_u32 s{S_EARLY}, 1")
    a(f"s_cbranch_scc0 L_gu_ne")
    a(f"s_call_b64 s[{T4}:{T5}], L_attn_loads")
    a("L_gu_ne:")
    a(f"s_lshr_b32 s{T0}, s{S_TOK}, 5")
    a(f"s_lshl_b32 s{T1}, s{S_ROT}, 1")
    a(f"s_add_u32 s{T0}, s{T0}, s{T1}")
    a(f"s_mul_i32 s{T0}, s{T0}, 96")
    a(f"s_lshl_b32 s{T1}, s{S_COL}, 2")
    a(f"s_add_u32 s{T0}, s{T0}, s{T1}")
    a(f"s_add_u32 s{T0}, s{T0}, s{T2}")
    a(f"s_lshl_b32 s{T0}, s{T0}, 10")
    a(f"s_add_u32 s{T0}, s{T0}, {HF_OFF}")
    a(f"s_add_u32 s{T1}, s{T0}, {96*1024}")
    a(f"s_mov_b64 s[88:89], s[{T0}:{T1}]")
    a("s_nop 0")
    for b in range(2):
        for aa in range(2):
            A = ACC(aa, b)
            for j in range(0, 8, 2):
                a(f"v_pk_mul_f32 {vr(A+j,2)}, {vr(A+j,2)}, {vr(26+2*b,2)} op_sel_hi:[1,0]")
            for j in range(0, 8, 2):
                a(f"v_pk_mul_f32 {vr(A+j,2)}, {vr(A+j,2)}, {vr(A+8+j,2)}")
            for q in range(4):
                a(f"v_cvt_pk_bf16_f32 v{A+q}, v{A+2*q}, v{A+2*q+1}")
            if not LATEH: a(f"buffer_store_dwordx4 {vr(A,4)}, v{VL16}, s[{SWS}:{SWS+3}], s{T0 if b == 0 else T1} offen offset:{1024*aa} sc1")
    a("s_branch L_p2")

    a("L_stats:")
    a(f"s_mov_b32 s{T1}, 0")
    a("L_stats_l:")
    a("s_waitcnt vmcnt(0)")
    a(f"v_xor_b32 v4, s{S_NON}, v161")
    a(f"v_xor_b32 v5, s{S_NON}, v163")
    a(f"v_xor_b32 v6, s{S_NON}, v165")
    a(f"v_xor_b32 v7, s{S_NON}, v167")
    a("v_or3_b32 v4, v4, v5, v6")
    a("v_or_b32 v4, v4, v7")
    a("v_cmp_ne_u32 vcc, 0, v4")
    a(f"s_add_u32 s{T1}, s{T1}, 1")
    a("s_cmp_eq_u64 vcc, 0")
    a("s_cbranch_scc1 L_stats_d")
    a("s_sleep 8")
    a(f"s_cmp_lt_u32 s{S_IDX}, 24")
    a(f"s_cselect_b32 s{T0}, 1024, 0")
    a(f"s_add_u32 s{T0}, s{T0}, s{S_O2}")
    a(f"buffer_load_dwordx4 v[160:163], v{VL16}, s[{SWS}:{SWS+3}], s{S_O2} offen sc1")
    a(f"buffer_load_dwordx4 v[164:167], v{VL16}, s[{SWS}:{SWS+3}], s{T0} offen sc1")
    a(f"s_cmp_lt_u32 s{T1}, {SPIN_MAX}")
    a("s_cbranch_scc1 L_stats_l")
    a("L_stats_d:")
    a(f"s_mov_b32 s{T0}, 0x01000100")
    for r in (160, 162, 164, 166):
        a(f"v_and_b32 v{r+1}, 0xffff0000, v{r}")
        a(f"v_rcp_f32 v{r+1}, v{r+1}")
        a(f"v_perm_b32 v{r}, v{r}, v{r}, s{T0}")
    a(f"v_add_u32 v4, {ST_OFF}, v{VL16}")
    a(f"ds_write_b128 v4, v[160:163]")
    a(f"ds_write_b128 v4, v[164:167] offset:1024")
    a(f"s_setpc_b64 s[{T4}:{T5}]")

    a("L_q_rd:")
    VAq = lambda sg, par: 10 + 2*sg + par
    a(f"v_lshlrev_b32 v2, 7, v2")
    a(f"v_lshl_add_u32 v2, v3, 5, v2")
    a(f"v_and_b32 v3, 3, v{VL}")
    a(f"v_lshl_add_u32 v2, v3, 3, v2")
    a(f"v_and_b32 v1, 2, v1")
    a(f"v_lshl_add_u32 v2, v1, 5, v2")
    a(f"s_lshl_b32 s{T0}, s{S_MH}, 6")
    a(f"v_xor_b32 v2, s{T0}, v2")
    a(f"s_lshl_b32 s{T0}, s{S_MH}, 13")
    a(f"s_add_u32 s{T2}, s{T0}, 16384")
    for sg in range(4):
        a(f"s_xor_b32 s{T1}, s{S_ROT}, {sg}")
        a(f"s_lshl_b32 s{T1}, s{T1}, 11")
        a(f"s_add_u32 s{T1}, s{T1}, s{T2}")
        a(f"v_add_u32 v{VAq(sg,0)}, s{T1}, v2")
        a(f"v_xor_b32 v{VAq(sg,1)}, 64, v{VAq(sg,0)}")
        a(f"v_add_u32 v{VAq(sg,1)}, s{T0}, v{VAq(sg,1)}")
    FA = lambda p, aa: FBASE[p] + 4*aa
    FB = lambda p, b: FBASE[p] + 12
    ACC = lambda aa, b: 64 + 16*aa
    def reads_q(sg):
        o = [f"ds_read_b128 {vr(FB(sg,0),4)}, v{VB(sg)}"]
        for aa in range(3):
            for n in range(2):
                o.append(f"ds_read_b64_tr_b16 {vr(FA(sg,aa)+2*n,2)}, v{VAq(sg, aa & 1)} offset:{8192*(aa >> 1)+512*n}")
        return o
    p1_phase("q", 3, 1, 10, dma_q, reads_q, FA, FB, ACC, lambda sg: [VAq(sg,0), VAq(sg,1), VB(sg)], False)
    a(f"s_lshr_b32 s{T0}, s{S_TOK}, 5")
    a(f"s_add_u32 s{T0}, s{T0}, s{S_ROT}")
    a(f"s_mul_i32 s{T1}, s{T0}, {KVS}")
    a(f"s_add_u32 s{T1}, s{T1}, {KVF_OFF}")
    a(f"s_mul_i32 s{T0}, s{T0}, 40960")
    a(f"s_mul_i32 s{T3}, s{S_COL}, 6")
    a(f"s_add_u32 s{T2}, s{T2}, s{T3}")
    a(f"s_lshl_b32 s{T3}, s{T2}, 11")
    a(f"s_add_u32 s{T0}, s{T0}, s{T3}")
    a(f"v_mul_f32 v28, {f32bits(QSCALE)}, v26")
    a("s_nop 1")
    for aa in range(3):
        A = ACC(aa, 0)
        Lk, Ld = lab("kv"), lab("sd")
        a(f"s_cmp_lt_u32 s{T2}, {20-aa}")
        a(f"s_cbranch_scc0 {Lk}")
        for j in range(0, 16, 2):
            a(f"v_pk_mul_f32 {vr(A+j,2)}, {vr(A+j,2)}, v[28:29] op_sel_hi:[1,0]")
        for q in range(8):
            a(f"v_cvt_pk_bf16_f32 v{A+q}, v{A+2*q}, v{A+2*q+1}")
        for i in range(2):
            a(f"buffer_store_dwordx4 {vr(A+4*i,4)}, v{VL16}, s[{SWS}:{SWS+3}], s{T0} offen offset:{(2048*aa+1024*i) & 4095} sc1")
        if aa == 1:
            a(f"s_add_u32 s{T0}, s{T0}, 4096")
        a(f"s_branch {Ld}")
        a(f"{Lk}:")
        if aa == 2:
            a(f"s_cmp_eq_u32 s{T2}, 18")
            a(f"s_cbranch_scc0 {Ld}")
            for j in range(0, 12, 2):
                a(f"v_pk_mul_f32 {vr(A+j,2)}, {vr(A+j,2)}, v[26:27] op_sel_hi:[1,0]")
            for q in range(6):
                a(f"v_cvt_pk_bf16_f32 v{A+q}, v{A+2*q}, v{A+2*q+1}")
            a(f"buffer_store_dwordx4 {vr(A,4)}, v{VL16}, s[{SWS}:{SWS+3}], s{T1} offen sc1")
            a(f"buffer_store_dwordx2 {vr(A+4,2)}, v{VL8}, s[{SWS}:{SWS+3}], s{T1} offen offset:1024 sc1")
        elif aa == 0:
            for j in range(0, 12, 2):
                a(f"v_pk_mul_f32 {vr(A+j,2)}, {vr(A+j,2)}, v[26:27] op_sel_hi:[1,0]")
            a(f"s_mul_i32 s{T3}, s{S_ROT}, 2304")
            a(f"s_add_u32 s{T3}, s{T3}, {VT_OFF}")
            a(f"v_mul_u32_u24 v1, {4*72}, v{VH}")
            a(f"v_lshl_add_u32 v1, v{VT}, 1, v1")
            a(f"v_add_u32 v1, s{T3}, v1")
            a(f"v_mul_u32_u24 v2, 72, v{VT}")
            a(f"v_lshl_add_u32 v2, v{VH}, 3, v2")
            a(f"v_add_u32 v2, s{T3}, v2")
            a(f"v_cndmask_b32 v{A+8}, v{A+8}, 1.0, s[{S_UP}:{S_UP+1}]")
            for j in (9, 10, 11):
                a(f"v_cndmask_b32 v{A+j}, v{A+j}, 0, s[{S_UP}:{S_UP+1}]")
            for q in range(6):
                a(f"v_cvt_pk_bf16_f32 v{A+q}, v{A+2*q}, v{A+2*q+1}")
            for j in range(12):
                row = 8*(j >> 2) + (j & 3)
                op = "ds_write_b16_d16_hi" if j & 1 else "ds_write_b16"
                a(f"{op} v1, v{A+(j>>1)} offset:{row*72}")
            for f in range(2):
                a(f"ds_read2_b64 {vr(A+8+4*f,4)}, v2 offset0:{4*f} offset1:{4*f+2}")
            a("s_waitcnt lgkmcnt(0)")
            for f in range(2):
                a(f"buffer_store_dwordx4 {vr(A+8+4*f,4)}, v{VLV}, s[{SWS}:{SWS+3}], s{T1} offen offset:{1280+672*f} sc1")
        a(f"{Ld}:")

    a(f"s_cmp_lg_u32 s{S_ISH}, 0")
    a(f"s_cbranch_scc1 L_q_lh")
    emit(bg_L())
    a("s_branch L_q_lx")
    a("L_q_lh:")
    emit(bg_H(late=True))
    a("L_q_lx:")
    a("s_waitcnt vmcnt(0)")
    a("s_barrier")
    a(f"s_cmp_eq_u32 s{S_ISH}, 0")
    a(f"s_cbranch_scc1 L_p2")
    a(f"s_cmp_lg_u32 s{S_W}, 4")
    a(f"s_cbranch_scc1 L_q_po")
    a(f"s_lshl_b32 s{T0}, s{S_TOK}, 2")
    a(f"s_lshl_b32 s{T1}, s{S_COL}, 7")
    a(f"s_add_u32 s{T0}, s{T0}, s{T1}")
    a(f"s_add_u32 s{T0}, s{T0}, {QFL_OFF}")
    a("s_mov_b64 exec, 1")
    a(f"v_mov_b32 v2, s{S_NON}")
    a(f"buffer_store_dword v2, v244, s[{SWS}:{SWS+3}], s{T0} offen sc1")
    a("s_mov_b64 exec, -1")
    a("L_q_po:")
    emit(bg_H(late=2))
    a(f"v_mov_b32 v2, s{S_NON}")
    a("s_waitcnt vmcnt(0)")
    a("s_mov_b64 exec, 1")
    a(f"buffer_store_dword v2, v244, s[{SWS}:{SWS+3}], s{S_OFL} offen sc1")
    a("s_mov_b64 exec, -1")
    def h_stores():
        Lx = lab("hs")
        a(f"s_cmp_ge_u32 s{S_IDX}, 24")
        a(f"s_cbranch_scc1 {Lx}")
        for b in range(2):
            for aa in range(2):
                a(f"buffer_store_dwordx4 {vr(64 + 16*(2*aa+b),4)}, v{VL16}, s[{SWS}:{SWS+3}], s{88+b} offen offset:{1024*aa} sc1")
        a(f"{Lx}:")
    a("L_p2:")
    if not SP: stamp(a, 3)
    a(f"v_mov_b32 v15, 1")
    a(f"v_mov_b32 v14, s{S_NON}")
    a(f"s_cmp_lg_u32 s{S_ISH}, 0")
    a(f"s_cbranch_scc1 L_attn")
    KQ = S_WQ
    S_OA, S_OB, S_M, S_IT = 78, 82, 80, 81
    VXR = 180
    VXL, S_XO = 191, 84
    ACC = lambda m: 64 + 16*m
    FA0 = 144
    FB = lambda s: 192 + 4*s
    make_srd(a, SA, P_WD, 1536*1280)
    make_srd(a, SB2, P_WS, WS_SIZE)
    make_srd(a, SC, P_OUT, 2048*1280)
    a(f"s_mul_i32 s{S_OA}, s{KQ}, {24*16*1280}")
    a(f"s_mul_i32 s{S_M}, s{KQ}, {RSZ}")
    a(f"s_mul_i32 s{S_OB}, s{S_TB}, 96")
    a(f"s_mul_i32 s{T0}, s{KQ}, 24")
    a(f"s_add_u32 s{S_OB}, s{S_OB}, s{T0}")
    a(f"s_lshl_b32 s{S_OB}, s{S_OB}, 10")
    a(f"s_add_u32 s{S_OB}, s{S_OB}, {HF_OFF}")
    S_RT = 83
    a(f"s_and_b32 s{S_RT}, s{S_TB}, {0 if '3' in ABL else 3}")
    a(f"s_mul_i32 s{T0}, s{S_RT}, {6*16*1280}")
    a(f"s_add_u32 s{S_OA}, s{S_OA}, s{T0}")
    a(f"s_mul_i32 s{T0}, s{S_RT}, {6*1024}")
    a(f"s_add_u32 s{S_OB}, s{S_OB}, s{T0}")
    def dma_a(slot):
        a(f"s_add_u32 m0, s{S_M}, {slot*5120}")
        a(f"s_add_u32 s{T2}, s{S_M}, {slot*5120+4096}")
        for j in range(4):
            a(f"buffer_load_dwordx4 v{VD[j]}, s[{SA}:{SA+3}], s{S_OA} offen offset:{1024*j} lds")
        a(f"s_mov_b32 m0, s{T2}")
        a("s_nop 0")
        a(f"buffer_load_dwordx4 v{VD[4]}, s[{SA}:{SA+3}], s{S_OA} offen lds")
        a(f"s_add_u32 s{S_OA}, s{S_OA}, {16*1280}")
    def dma_a_list(slot):
        o = [[f"s_add_u32 m0, s{S_M}, {slot*5120}", f"s_add_u32 s{T2}, s{S_M}, {slot*5120+4096}",
              f"buffer_load_dwordx4 v{VD[0]}, s[{SA}:{SA+3}], s{S_OA} offen lds"]]
        for j in range(1, 4):
            o.append([f"buffer_load_dwordx4 v{VD[j]}, s[{SA}:{SA+3}], s{S_OA} offen offset:{1024*j} lds"])
        o.append([f"s_mov_b32 m0, s{T2}", "s_nop 0", f"buffer_load_dwordx4 v{VD[4]}, s[{SA}:{SA+3}], s{S_OA} offen lds", f"s_add_u32 s{S_OA}, s{S_OA}, {16*1280}"])
        return o
    def load_b(reg):
        a(f"buffer_load_dwordx4 {vr(reg,4)}, v{VL16}, s[{SB2}:{SB2+3}], s{S_OB} offen sc1")
        a(f"s_add_u32 s{S_OB}, s{S_OB}, 1024")
    def h_flag():
        lds_wait(0, 8, sleep=1)
        if SB: stamp(a, 2)
        a(f"s_lshl_b32 s{T0}, s{S_TOK}, 4")
        a(f"s_lshl_b32 s{T1}, s{S_COL}, 7")
        a(f"s_add_u32 s{T0}, s{T0}, s{T1}")
        a(f"s_add_u32 s{T0}, s{T0}, {HFL_OFF}")
        a("s_mov_b64 exec, 1")
        a(f"buffer_store_dword v14, v{VZ}, s[{SWS}:{SWS+3}], s{T0} offen sc1")
        a("s_mov_b64 exec, -1")
    if "G" in ABL: endpgm(a, 0)
    XP = 320
    lds_wait(28, 4, sleep=2)
    h_stores()
    a(f"s_lshl_b32 s{T0}, s{S_TB}, 5")
    a(f"s_lshl_b32 s{T1}, s{KQ}, 3")
    a(f"s_add_u32 s{T0}, s{T0}, s{T1}")
    a(f"s_mul_i32 s{S_XO}, s{T0}, 1280")
    a(f"s_mul_i32 s{T0}, s{KQ}, {8*XP}")
    a(f"s_add_u32 m0, s{T0}, {CB_OFF}")
    a(f"v_add_u32 v{VXL}, s{T0}, v{VL16}")
    a(f"v_add_u32 v{VXL}, {CB_OFF}, v{VXL}")
    for j in range(3):
        if j == 2: a("s_mov_b32 exec_hi, 0")
        a(f"buffer_load_dwordx4 v{VD[j]}, s[{SX}:{SX+3}], s{S_XO} offen offset:{1024*j} lds")
    a("s_mov_b32 exec_hi, -1")
    for m in range(5):
        zero_mfma(ACC(m), VZ)
    a(f"v_mul_u32_u24 v{VXO}, {XP}, v{VT}")
    a(f"v_lshl_add_u32 v{VXO}, v{VH}, 3, v{VXO}")
    a(f"s_lshl_b32 s{T0}, s{KQ}, 4")
    a(f"s_add_u32 s{T0}, s{T0}, {CB_OFF}")
    a(f"v_add_u32 v{VXO}, s{T0}, v{VXO}")
    a("s_waitcnt vmcnt(0)")
    a(f"ds_write_b32 v{VFL}, v15")
    if SB: stamp(a, 1)
    a(f"s_cmp_lg_u32 s{S_W}, 0")
    a(f"s_cbranch_scc1 L_l_ring")
    a(f"s_cmp_ge_u32 s{S_IDX}, 24")
    a(f"s_cbranch_scc1 L_l_ring")
    h_flag()
    a("L_l_ring:")
    for s_ in range(PD):
        dma_a(s_)
        a(f"s_waitcnt vmcnt({PW1})")
    lds_wait(0, 4, sleep=1)
    for m in range(5):
        a(f"ds_read_b64 {vr(VXR+2*m,2)}, v{VXO} offset:{64*m}")
    a("s_waitcnt lgkmcnt(0)")
    for m in range(5):
        for q in range(2):
            a(f"v_lshlrev_b32 v{ACC(m)+2*q}, 16, v{VXR+2*m+q}")
            a(f"v_and_b32 v{ACC(m)+2*q+1}, 0xffff0000, v{VXR+2*m+q}")
    if SB: stamp(a, 3)
    a(f"s_cmp_lg_u32 s{S_W}, 0")
    a(f"s_cbranch_scc1 L_l_pub")
    mbx_wait(1, 6)
    if SB: stamp(a, 0)
    lds_set(18)
    a("L_l_pub:")
    lds_wait(18, sleep=4)
    for s in range(PD):
        load_b(FB(s))
    a(f"s_mov_b32 s{S_IT}, 0")
    a("s_waitcnt vmcnt(0)")
    if not SP: stamp(a, 4)
    def rd_a(dst, slot, va, nrow):
        for m in range(5):
            for n in range(2):
                a(f"ds_read_b64_tr_b16 {vr(dst+4*m+2*n,2)}, v{va} offset:{slot*5120 + n*nrow + m*64}")
    if LPRIO: a(f"s_setprio {LPRIO}")
    if DBA: rd_a(144, 0, VAR, 2560)
    a(".p2align 6")
    a("L_gloop:")
    def switch():
        a(f"s_add_u32 s{S_RT}, s{S_RT}, 1")
        a(f"s_cmp_eq_u32 s{S_RT}, 4")
        a(f"s_cselect_b32 s{T0}, {24*16*1280}, 0")
        a(f"s_cselect_b32 s{T1}, {24*1024}, 0")
        a(f"s_sub_u32 s{S_OA}, s{S_OA}, s{T0}")
        a(f"s_sub_u32 s{S_OB}, s{S_OB}, s{T1}")
        a(f"s_cmp_lt_u32 s{S_IT}, 3")
        a(f"s_cbranch_scc1 L_gl1")
        a(f"s_mov_b64 s[{SA}:{SA+1}], s[{P_WO}:{P_WO+1}]")
        a(f"s_mov_b32 s{SA+2}, {640*1280}")
        a(f"s_mov_b32 s{SB2+2}, 0")
        a(f"s_mul_i32 s{S_OA}, s{KQ}, {160*1280}")
        a("L_gl1:")
    def rd_a(dst, slot, va, nrow):
        for m in range(5):
            for n in range(2):
                a(f"ds_read_b64_tr_b16 {vr(dst+4*m+2*n,2)}, v{va} offset:{slot*5120 + n*nrow + m*64}")
    def mm(fa, fb):
        for m in range(5):
            a(f"v_mfma_f32_32x32x16_bf16 {vr(ACC(m),16)}, {vr(fa+4*m,4)}, {vr(fb,4)}, {vr(ACC(m),16)}")
    for s in range(RING):
        if DBA:
            FAD = [144, 2]
            if s == RING - PD: switch()
            a(f"s_waitcnt vmcnt({6*(PD-2)}) lgkmcnt(0)")
            rd_a(FAD[(s+1) & 1], (s+1) % RING, VAR, 2560)
            dl = dma_a_list((s + PD) % RING)
            for m in range(5):
                a(f"v_mfma_f32_32x32x16_bf16 {vr(ACC(m),16)}, {vr(FAD[s & 1]+4*m,4)}, {vr(FB(s),4)}, {vr(ACC(m),16)}")
                emit([dl[m]])
            if "b" in ABL: a(f"buffer_load_dword v{FB((s + PD) % RING)}, v{VZ}, s[{SX}:{SX+3}], 0 offen")
            else: load_b(FB((s + PD) % RING))
            continue
        if s == RING - PD: switch()
        a(f"s_waitcnt vmcnt({6*(PD-1)})")
        if "R" not in ABL: rd_a(FA0, s, VAR, 2560)
        a("s_waitcnt lgkmcnt(0)")
        if PACE:
            dl = dma_a_list((s + PD) % RING)
            for m in range(5):
                a(f"v_mfma_f32_32x32x16_bf16 {vr(ACC(m),16)}, {vr(FA0+4*m,4)}, {vr(FB(s),4)}, {vr(ACC(m),16)}")
                emit([dl[m]])
            load_b(FB((s + PD) % RING))
            continue
        if "D" not in ABL: dma_a(s)
        if "M" not in ABL: mm(FA0, FB(s))
        if "D" not in ABL: load_b(FB(s))
    a(f"s_add_u32 s{S_IT}, s{S_IT}, 1")
    a(f"s_cmp_lt_u32 s{S_IT}, 4")
    a(f"s_cbranch_scc1 L_gloop")
    PRE = [144, 2, 22, 42]
    OB = lambda k: 192 + 4*k
    a(f"s_mov_b32 s{SB2+2}, {WS_SIZE}")
    a(f"s_mul_i32 s{S_OB}, s{S_TB}, 40")
    a(f"s_mul_i32 s{T0}, s{KQ}, 10")
    a(f"s_add_u32 s{S_OB}, s{S_OB}, s{T0}")
    a(f"s_lshl_b32 s{S_OB}, s{S_OB}, 10")
    a(f"s_add_u32 s{S_OB}, s{S_OB}, {OF_OFF}")
    a(f"s_add_u32 s{T0}, s{S_OB}, 4096")
    a(f"s_add_u32 s{T1}, s{S_OB}, 8192")
    for k in range(PD, RING):
        a("s_waitcnt vmcnt(2)")
        dma_a(k)
    a(f"s_waitcnt vmcnt({12 if PD == 6 else 0})")
    for k in range(4):
        rd_a(PRE[k], k, VAR2, 1280)
    a("s_waitcnt lgkmcnt(0)")
    for k in range(4):
        dma_a(k)
        if PACE > 1: a(f"s_waitcnt vmcnt({PW1})")
    a(f"v_mov_b32 v232, {FL_OFF + 80}")
    if STAMPS and not SB and not SP: stamp(a, 3)
    a("L_ow:")
    a("ds_read_b128 v[236:239], v232")
    a("s_waitcnt lgkmcnt(0)")
    a(f"v_bitop3_b32 v236, v236, v237, v238 bitop3:{'0x80' if HINT == 2 else '0xfe'}")
    a(f"{'v_and_b32' if HINT == 2 else 'v_or_b32'} v236, v236, v239")
    a("s_nop 0")
    a(f"v_readfirstlane_b32 s{T4}, v236")
    a("s_nop 0")
    a(f"s_cmp_eq_u32 s{T4}, 1")
    a(f"s_cbranch_scc1 L_owd")
    a("s_sleep 4")
    a(f"s_branch L_ow")
    a("L_owd:")
    a(f"s_mov_b32 s{T5}, 0")
    def ld_o(k):
        a(f"buffer_load_dwordx4 {vr(OB(k),4)}, v{VL16}, s[{SB2}:{SB2+3}], s{[S_OB, T0, T1][k >> 2]} offen offset:{1024*(k & 3)} sc1")
    for k in range(10):
        ld_o(k)
    for k in range(10):
        a(f"s_waitcnt vmcnt({9-k})")
        a(f"L_oc{k}:")
        a(f"v_max3_u32 v232, v{OB(k)}, v{OB(k)+1}, v{OB(k)+2}")
        a(f"v_max_u32 v232, v232, v{OB(k)+3}")
        a(f"v_cmp_eq_u32 vcc, -1, v232")
        if k >= 4:
            a(f"s_waitcnt lgkmcnt({min(15, 10*min(3, 9-k))})")
        a("s_cmp_lg_u64 vcc, 0")
        a(f"s_cbranch_scc1 L_or{k}")
        a(f"L_og{k}:")
        if k == 0 and STAMPS and not SB and not SP: a("s_memtime s[6:7]")
        mm(PRE[k & 3], OB(k))
        if k + 4 < 10:
            kk = k + 4
            rd_a(PRE[k & 3], kk if kk < 6 else kk - 6, VAR2, 1280)
    if STAMPS and not SB and not SP: a("s_memtime s[8:9]")
    a(f"v_mov_b32 v15, 1")
    a(f"v_mov_b32 v12, {FL_OFF+48}")
    a("s_nop 5")
    for m in range(5):
        for i in range(1, 4):
            a(f"ds_write_b128 v{VRW}, {vr(ACC(m)+4*i,4)} offset:{((i-1)*5+m)*1024}")
    a("s_waitcnt lgkmcnt(0)")
    a(f"ds_write_b32 v{VFL}, v15 offset:48")
    a("L_gpoll:")
    a(f"ds_read_b128 v[4:7], v12")
    a("s_waitcnt lgkmcnt(0)")
    a("v_bitop3_b32 v4, v4, v5, v6 bitop3:0x80")
    a("v_and_b32 v4, v4, v7")
    a("s_nop 0")
    a(f"v_readfirstlane_b32 s{T0}, v4")
    a("s_nop 0")
    a(f"s_cmp_eq_u32 s{T0}, 1")
    a(f"s_cbranch_scc0 L_gpoll")
    for m in range(5):
        for i in range(1, 4):
            a(f"ds_read_b128 {vr(ACC(m)+4*i,4)}, v{VRD[i]} offset:{((i-1)*5+m)*1024}")
    for m in range(5):
        A = ACC(m)
        a(f"s_waitcnt lgkmcnt({12-3*m})")
        for h2 in range(2):
            a(f"v_pk_add_f32 {vr(A+2*h2,2)}, {vr(A+2*h2,2)}, {vr(A+4+2*h2,2)}")
            a(f"v_pk_add_f32 {vr(A+8+2*h2,2)}, {vr(A+8+2*h2,2)}, {vr(A+12+2*h2,2)}")
        for h2 in range(2):
            a(f"v_pk_add_f32 {vr(A+2*h2,2)}, {vr(A+2*h2,2)}, {vr(A+8+2*h2,2)}")
        a(f"v_cvt_pk_bf16_f32 v{A}, v{A}, v{A+1}")
        a(f"v_cvt_pk_bf16_f32 v{A+1}, v{A+2}, v{A+3}")
        a(f"ds_write_b64 v{VXO}, {vr(A,2)} offset:{64*m}")
    a("s_waitcnt lgkmcnt(0)")
    a(f"ds_write_b32 v{VFL}, v15 offset:144")
    a("L_gpoll2:")
    a(f"ds_read_b128 v[4:7], v12 offset:96")
    a("s_waitcnt lgkmcnt(0)")
    a("v_bitop3_b32 v4, v4, v5, v6 bitop3:0x80")
    a("v_and_b32 v4, v4, v7")
    a("s_nop 0")
    a(f"v_readfirstlane_b32 s{T0}, v4")
    a("s_nop 0")
    a(f"s_cmp_eq_u32 s{T0}, 1")
    a(f"s_cbranch_scc0 L_gpoll2")
    for j in range(3):
        a(f"ds_read_b128 {vr(64+4*j,4)}, v{VXL} offset:{1024*j}")
    for j in range(3):
        a(f"s_waitcnt lgkmcnt({2-j})")
        if j == 2: a("s_mov_b32 exec_hi, 0")
        a(f"buffer_store_dwordx4 {vr(64+4*j,4)}, v{VD[j]}, s[{SC}:{SC+3}], s{S_XO} offen offset:{1024*j}")
    a("s_mov_b32 exec_hi, -1")
    endpgm(a, 0)

    for k in range(10):
        a(f"L_or{k}:")
        a("s_waitcnt vmcnt(0)")
        if RSL: a(f"s_sleep {RSL}")
        for j in range(k, 10): ld_o(j)
        a(f"s_add_u32 s{T5}, s{T5}, 1")
        a(f"s_cmp_lt_u32 s{T5}, {SPIN_MAX}")
        a(f"s_waitcnt vmcnt({9-k})")
        a(f"s_cbranch_scc1 L_oc{k}")
        a(f"s_branch L_og{k}")

    S_IT = 78
    def load_kv(r):
        a(f"buffer_load_dwordx4 {vr(K1(r),4)}, v{VL16}, s[{SWS}:{SWS+3}], s{S_KV} offen sc1")
        a(f"buffer_load_dwordx2 {vr(K2(r),2)}, v{VL8}, s[{SWS}:{SWS+3}], s{S_KV} offen offset:1024 sc1")
        a(f"buffer_load_dwordx4 {vr(V1(r),4)}, v{VLV}, s[{SWS}:{SWS+3}], s{S_KV} offen offset:1280 sc1")
        a(f"buffer_load_dwordx4 {vr(V2(r),4)}, v{VLV}, s[{SWS}:{SWS+3}], s{S_KV} offen offset:1952 sc1")
        a(f"s_add_u32 s{S_KV}, s{S_KV}, {KVS}")
    a("L_attn_loads:")
    a(f"s_mul_i32 s{T0}, s{S_TB}, 40960")
    for d in (Q1(0), Q1(0)+2, Q2(0)):
        a(f"buffer_load_dwordx2 {vr(d,2)}, v{d}, s[{SWS}:{SWS+3}], s{T0} offen sc1")
    load_kv(0)
    for q in range(1, 4):
        for d in (Q1(q), Q1(q)+2, Q2(q)):
            a(f"buffer_load_dwordx2 {vr(d,2)}, v{d}, s[{SWS}:{SWS+3}], s{T0} offen sc1")
    for r in range(1, 3):
        load_kv(r)
    a(f"s_setpc_b64 s[{T4}:{T5}]")

    a("L_attn:")
    for q in range(4):
        zero_mfma(O(q), V2(3))
    a(f"s_cmp_eq_u32 s{S_EARLY}, 1")
    a(f"s_cbranch_scc1 L_attn_go")
    if not LATEH:
        a("s_waitcnt vmcnt(0)")
        a(f"ds_write_b32 v{VFL}, v15")
    if SB: stamp(a, 1)
    a(f"s_cmp_lg_u32 s{S_W}, 4")
    a(f"s_cbranch_scc1 L_attn_w")
    mbx_wait(0, 1)
    lds_set(17)
    a("L_attn_w:")
    lds_wait(17, sleep=1)
    if SB: stamp(a, 2)
    a(f"s_call_b64 s[{T4}:{T5}], L_attn_loads")
    a("L_attn_go:")
    h_stores()
    a(f"s_lshl_b32 s{T0}, s2, 3")
    a(f"s_add_u32 s{T0}, s{T0}, s{S_WQ}")
    a(f"s_cmp_lg_u32 s{T0}, 0")
    a(f"s_cbranch_scc1 L_attn_g2")
    a(f"s_mov_b32 s{T0}, {EPOCH_OFF}")
    a("v_mov_b32 v2, 0")
    a("s_mov_b64 exec, 1")
    a(f"buffer_store_dword v14, v2, s[{SWS}:{SWS+3}], s{T0} offen sc1")
    a("s_mov_b64 exec, -1")
    a("L_attn_g2:")
    for r in range(P1, P1+4):
        a(f"v_mov_b32 v{r}, 0")
    a(f"s_mov_b32 s{S_IT}, 0")
    a("s_waitcnt vmcnt(17)")
    a(f"ds_write_b32 v{VFL}, v15 offset:96")
    if "Z" in ABL: a("s_memrealtime s[8:9]")
    if not SP: stamp(a, 4)
    def qk1(buf, r, q): a(f"v_mfma_f32_32x32x16_bf16 {vr(S(buf),16)}, {vr(K1(r),4)}, {vr(Q1(q),4)}, 0")
    def qk2(buf, r, q): a(f"v_mfma_f32_32x32x8_bf16 {vr(S(buf),16)}, {vr(K2(r),2)}, {vr(Q2(q),2)}, {vr(S(buf),16)}")
    def pv(q, vreg, preg): a(f"v_mfma_f32_32x32x16_bf16 {vr(O(q),16)}, {vr(vreg,4)}, {vr(preg,4)}, {vr(O(q),16)}")
    def E(buf, i0):
        for i in range(i0, i0+4): a(f"v_exp_f32 v{S(buf)+i}, v{S(buf)+i}")
    def C(dst, buf, i): a(f"v_cvt_pk_bf16_f32 v{dst}, v{S(buf)+i}, v{S(buf)+i+1}")
    qk1(0, 0, 0); qk2(0, 0, 0)
    a("s_nop 10")
    a(".p2align 6")
    a("L_aloop:")
    for r in [x & 3 for x in range(4*AUN)]:
        for q in range(4):
            buf = q & 1; nb = buf ^ 1
            nr, nq = (r, q+1) if q < 3 else ((r+1) & 3, 0)
            pr, pq = (r, q-1) if q > 0 else ((r-1) & 3, 3)
            if r == 0 and q < 3:
                a(f"s_waitcnt vmcnt({[14, 15, 12][q]})")
            if q == 3:
                a(f"s_waitcnt vmcnt({KVW})")
                if r == 1:
                    a(f"ds_write_b32 v{VFL}, v15")
            qk1(nb, nr, nq); E(buf, 0)
            pv(pq, V2(pr), P1); C(P0, buf, 0); C(P0+1, buf, 2)
            if q == 0:
                load_kv((r+3) & 3)
            E(buf, 4)
            qk2(nb, nr, nq); C(P0+2, buf, 4); C(P0+3, buf, 6); E(buf, 8)
            pv(q, V1(r), P0); C(P1, buf, 8); C(P1+1, buf, 10); E(buf, 12); C(P1+2, buf, 12); C(P1+3, buf, 14)
    a(f"s_add_u32 s{S_IT}, s{S_IT}, 1")
    a(f"s_cmp_lt_u32 s{S_IT}, {1 if 'H' in ABL else 8//AUN}")
    a(f"s_cbranch_scc1 L_aloop")
    if HINT == 0: a(f"ds_write_b32 v{VFL}, v15 offset:64")
    else: a("s_nop 0")
    pv(3, V2(3), P1)
    if "Z" in ABL: a("s_memrealtime s[10:11]")
    if STAMPS and not SB and not SP: a("s_memtime s[6:7]")
    for i in range(3):
        a(f"ds_write_b128 v{VCW}, {vr(O(2)+4*i,4)} offset:{1024*i}")
    a("s_nop 9")
    for i in range(3):
        a(f"ds_write_b128 v{VCW}, {vr(O(3)+4*i,4)} offset:{4096+1024*i}")
    a("s_waitcnt lgkmcnt(0)")
    a(f"ds_write_b32 v{VFL}, v15 offset:16")
    a("L_apoll:")
    a(f"ds_read_b32 v2, v{VFR} offset:16")
    a("s_waitcnt lgkmcnt(0)")
    a(f"v_readfirstlane_b32 s{T0}, v2")
    a("s_nop 0")
    a(f"s_cmp_eq_u32 s{T0}, 1")
    a(f"s_cbranch_scc0 L_apoll")
    for q in range(2):
        for i in range(3):
            a(f"ds_read_b128 {vr(O(2+q)+4*i,4)}, v{VCR} offset:{4096*q+1024*i}")
    for q in range(2):
        a(f"s_waitcnt lgkmcnt({3-3*q})")
        for j in range(0, 12, 2):
            a(f"v_pk_add_f32 {vr(O(q)+j,2)}, {vr(O(q)+j,2)}, {vr(O(2+q)+j,2)}")
    def get_l():
        for q in range(2):
            a(f"v_mov_b32 v{4+2*q}, v{O(q)+8}")
            a(f"v_mov_b32 v{5+2*q}, v{O(q)+8}")
        a("s_nop 0")
        for q in range(2):
            a(f"v_permlane32_swap_b32 v{5+2*q}, v{4+2*q}")
    get_l()
    a(f"v_mov_b32 v2, 0")
    a(f"v_mov_b32 v3, 0")
    a(f"v_mov_b32 v8, 0")
    for q in range(2):
        for j in range(0, 12, 2):
            a(f"v_pk_fma_f32 v[2:3], {vr(O(q)+j,2)}, v[8:9], v[2:3] op_sel_hi:[1,0,1]")
    a(f"v_min_f32 v10, v4, v6")
    a(f"v_max_f32 v11, v4, v6")
    a(f"v_fmac_f32 v2, 0, v4")
    a(f"v_fmac_f32 v3, 0, v6")
    a(f"v_cmp_le_f32 vcc, 0x1f800000, v10")
    a(f"s_mov_b64 s[{T0}:{T1}], vcc")
    a(f"v_cmp_ge_f32 vcc, 0x5f800000, v11")
    a(f"s_and_b64 s[{T0}:{T1}], s[{T0}:{T1}], vcc")
    a(f"v_cmp_o_f32 vcc, v2, v3")
    a(f"s_and_b64 s[{T0}:{T1}], s[{T0}:{T1}], vcc")
    a(f"s_cmp_eq_u64 s[{T0}:{T1}], exec")
    a("s_branch L_fb" if force_fallback else "s_cbranch_scc0 L_fb")
    a("L_norm:")
    for q in range(2):
        a(f"v_rcp_f32 v{4+2*q}, v{4+2*q}")
    a("s_nop 0")
    for q in range(2):
        for j in range(0, 12, 2):
            a(f"v_pk_mul_f32 {vr(O(q)+j,2)}, {vr(O(q)+j,2)}, {vr(4+2*q,2)} op_sel_hi:[1,0]")
    A_, B_ = O(0), O(1)
    def cvs(d, x):
        a(f"v_cvt_pk_bf16_f32 v{d}, v{x}, v{x+1}")
    for k in range(4): cvs(A_+k, A_+2*k)
    for k in range(4): a(f"v_min_u32 v{A_+k}, -2, v{A_+k}")
    for k in (4, 5): cvs(A_+k, A_+2*k)
    a(f"v_permlane32_swap_b32 v{A_}, v{A_+2}")
    a(f"v_permlane32_swap_b32 v{A_+1}, v{A_+3}")
    cvs(A_+6, B_); cvs(A_+7, B_+2)
    a(f"buffer_store_dwordx4 {vr(A_,4)}, v{VL16}, s[{SWS}:{SWS+3}], s{S_OO} offen sc1")
    cvs(B_, B_+4); cvs(B_+1, B_+6); cvs(B_+4, B_+8); cvs(B_+5, B_+10)
    for r in (A_+4, A_+5, A_+6, A_+7, B_, B_+1, B_+4, B_+5):
        a(f"v_min_u32 v{r}, -2, v{r}")
    a(f"v_cndmask_b32 v{A_+4}, v{A_+4}, v{A_+6}, s[{S_UP}:{S_UP+1}]")
    a(f"v_cndmask_b32 v{A_+5}, v{A_+5}, v{A_+7}, s[{S_UP}:{S_UP+1}]")
    a(f"v_permlane32_swap_b32 v{A_+6}, v{B_}")
    a(f"v_permlane32_swap_b32 v{A_+7}, v{B_+1}")
    a(f"v_permlane32_swap_b32 v{B_+2}, v{B_+4}")
    a(f"v_permlane32_swap_b32 v{B_+3}, v{B_+5}")
    a(f"buffer_store_dwordx4 {vr(A_+4,4)}, v{VL16}, s[{SWS}:{SWS+3}], s{S_OO} offen offset:1024 sc1")
    a("s_mov_b32 exec_lo, 0")
    a(f"buffer_store_dwordx4 {vr(B_,4)}, v{VL16}, s[{SWS}:{SWS+3}], s{S_OO} offen offset:1536 sc1")
    a("s_mov_b64 exec, -1")
    if HINT: a(f"ds_write_b32 v{VFL}, v15 offset:64")
    endpgm(a, 0)
    a("L_fb:")
    a("s_waitcnt vmcnt(0)")
    a(f"v_mov_b32 v4, 0xff800000")
    a(f"v_mov_b32 v5, 0xff800000")
    a(f"s_mov_b32 s{S_KV}, {KVF_OFF}")
    a(f"s_mov_b32 s{S_IT}, 0")
    a("L_fb1:")
    load_kv(0)
    a("s_waitcnt vmcnt(0)")
    for q in range(2):
        qk1(q, 0, q); qk2(q, 0, q)
    a("s_nop 15")
    for q in range(2):
        for j in range(0, 16, 2):
            a(f"v_max3_f32 v{4+q}, v{S(q)+j}, v{S(q)+j+1}, v{4+q}")
    a(f"s_add_u32 s{S_IT}, s{S_IT}, 1")
    a(f"s_cmp_lt_u32 s{S_IT}, 64")
    a(f"s_cbranch_scc1 L_fb1")
    for q in range(2):
        a(f"v_mov_b32 v6, v{4+q}")
        a("s_nop 1")
        a(f"v_permlane32_swap_b32 v6, v{4+q}")
        a("s_nop 1")
        a(f"v_max_f32 v6, v6, v{4+q}")
        a(f"v_sub_f32 v6, 0, v6")
        a(f"v_cvt_pk_bf16_f32 v7, v6, v6")
        a(f"v_lshlrev_b32 v7, 16, v7")
        a(f"v_sub_f32 v8, v6, v7")
        a(f"v_cvt_pk_bf16_f32 v7, v7, v8")
        a(f"v_cndmask_b32 v{Q2(q)}, v{Q2(q)}, v7, s[{S_UP}:{S_UP+1}]")
        for j in range(16):
            a(f"v_mov_b32 v{O(q)+j}, 0")
    a(f"s_mov_b32 s{S_KV}, {KVF_OFF}")
    a(f"s_mov_b32 s{S_IT}, 0")
    a("v_mov_b32 v9, 0x3f803f80")
    a("L_fb2:")
    load_kv(0)
    a("s_waitcnt vmcnt(0)")
    a(f"v_cndmask_b32 v{K2(0)}, v{K2(0)}, v9, s[{S_UP}:{S_UP+1}]")
    a("s_nop 1")
    for q in range(2):
        qk1(q, 0, q); qk2(q, 0, q)
    a("s_nop 15")
    for q in range(2):
        for i0 in range(0, 16, 4): E(q, i0)
        a("s_nop 0")
        for k in range(4): C(P0+k, q, 2*k)
        for k in range(4): C(P1+k, q, 8+2*k)
        a("s_nop 1")
        pv(q, V1(0), P0); pv(q, V2(0), P1)
    a(f"s_add_u32 s{S_IT}, s{S_IT}, 1")
    a(f"s_cmp_lt_u32 s{S_IT}, 64")
    a(f"s_cbranch_scc1 L_fb2")
    a("s_nop 15")
    get_l()
    a("s_nop 1")
    a("s_branch L_norm")
    a("L_end:")
    a("s_endpgm")
    return a, kernel_desc(name, 256)

DOC = """; ---------------------------------------------------------------------------------------------
;         with the true row maximum subtracted (L_fb).
; ---------------------------------------------------------------------------------------------
"""

def build(force_fallback=False):
    hdr = open("cdna_kernels/%s.s.ref" % NAME).read().split("\n")
    hdr = [l for l in hdr if l.startswith(";") and "@launch" not in l and "Override" not in l and "grid=ceil" not in l]
    body, desc = gen(NAME + "_kernel", force_fallback)
    out = "\n".join(hdr) + "\n"
    out += f"; @launch grid=(256,1,1) block=(512,1,1) lds={LDS_BYTES}\n"
    out += '.amdgcn_target "amdgcn-amd-amdhsa--gfx950"\n'
    out += DOC
    out += '.text\n'
    out += body.text()
    out += '.section .rodata,"a"\n' + desc
    return out

if __name__ == "__main__":
    out = sys.argv[1] if len(sys.argv) > 1 else "cdna_kernels/%s.s" % NAME
    open(out, "w").write(build("fb" in sys.argv[2:]))
    print("wrote", out)
```

```python
from common import *
import math, sys

STF_OFF = 0x2F0000
QFL_OFF, HFL_OFF = 0x2D0000, 0x2D4000
MBX_OFF = 0x2D0000
EPOCH_OFF = 0x2FF000
OFL_OFF = 0x2F8000
STG = 49408
RING = 6
RSZ = RING * 5120
CB_OFF = 4 * RSZ
CS_OFF = CB_OFF
ST_OFF = 3 * STG
VT_OFF = CB_OFF + 8192
FL_OFF = CB_OFF + 32768
LDS_BYTES = FL_OFF + 256
G_OFF, U_REL = 32768, 8256
KVS = 2688 if os.environ.get("KVC", "1") == "1" else 3584
QSCALE = math.log2(math.e) / math.sqrt(20.0)
SPIN_MAX = 1 << 18
ABL = os.environ.get("ABL", "")
SB = "B" in ABL
SP = "P" in ABL
PACE = int(os.environ.get("PACE", "2"))
PRE0 = int(os.environ.get("PRE0", "0"))
LATEH = int(os.environ.get("LATEH", "1"))
PGT = int(os.environ.get("PGT", "0"))
QF1 = int(os.environ.get("QF1", "1"))
PD = int(os.environ.get("PD", "6"))
PW1 = int(os.environ.get("PW1", "2"))
DBA = int(os.environ.get("DBA", "0"))
KVW = int(os.environ.get("KVW", "8"))
LPRIO = int(os.environ.get("LPRIO", "0"))
COAL = int(os.environ.get("COAL", "1"))
GENTLE = int(os.environ.get("GENTLE", "1"))
TW = [int(x) for x in os.environ.get("TW", "").split(",") if x]
S0H = int(os.environ.get("S0H", "0"))
CPF = int(os.environ.get("CPF", "4"))
QORD = int(os.environ.get("QORD", "1"))
A3 = int(os.environ.get("A3", "2"))
AUN = int(os.environ.get("AUN", "1"))
KVC = int(os.environ.get("KVC", "1"))
HINT = int(os.environ.get("HINT", "2"))
RSL = int(os.environ.get("RSL", "4"))

S_W = 3
SX, SWS, SDBG, SA, SB2, SC, SD = 40, 44, 48, 52, 56, 60, 88
S_TH, S_CG, S_IDX, S_WQ, S_ISH, S_TB, S_G, S_TOK = 64, 65, 66, 67, 68, 69, 70, 71
T0, T1, T2, T3, T4, T5 = 72, 73, 74, 75, 76, 77
S_I, S_DB, S_RB, S_OX, S_OW, S_O2, S_O3, S_ST2 = 78, 79, 80, 81, 82, 83, 84, 85
S_EARLY, S_COL = 86, 87
S_UP = 92
S_MBX, S_ROT, S_MH, S_DL = 99, 100, 101, 98
S_NON = 79
S_OO = 56
S_OFL, S_KV, S_H0, S_K2 = 52, 53, 54, 55
VL, VT, VH, VL16, VL8, VF, VFL = 250, 251, 252, 253, 254, 249, 248
VLV = 0
VZ = 244
FBASE = [32, 48, 128, 144]
CSA = 26

def gen(name, force_fallback=False):
    a = Asm()
    kernel_begin(a, name)
    uid = [0]
    def lab(s):
        uid[0] += 1
        return f"L{uid[0]}_{s}"
    def emit(ch):
        for c in ch:
            for l in c: a(l)
    def lds_set(idx):
        a(f"v_mov_b32 v2, {FL_OFF + 4*idx}")
        a(f"v_mov_b32 v3, 1")
        a(f"ds_write_b32 v2, v3")
    def lds_wait(idx, n=1, sleep=1):
        L = lab("lw")
        a(f"v_mov_b32 v2, {FL_OFF + 4*idx}")
        a(f"{L}:")
        if n == 1:
            a("ds_read_b32 v4, v2")
            a("s_waitcnt lgkmcnt(0)")
        else:
            a("ds_read_b128 v[4:7], v2")
            if n == 8: a("ds_read_b128 v[8:11], v2 offset:16")
            a("s_waitcnt lgkmcnt(0)")
            a("v_bitop3_b32 v4, v4, v5, v6 bitop3:0x80")
            if n == 8:
                a("v_bitop3_b32 v8, v8, v9, v10 bitop3:0x80")
                a("v_bitop3_b32 v4, v4, v8, v11 bitop3:0x80")
            a("v_and_b32 v4, v4, v7")
            a("s_nop 0")
        a(f"v_readfirstlane_b32 s{T4}, v4")
        a("s_nop 0")
        a(f"s_cmp_eq_u32 s{T4}, 1")
        a(f"s_cbranch_scc1 {L}_d")
        a(f"s_sleep {sleep}")
        a(f"s_branch {L}")
        a(f"{L}_d:")
    def mbx_load(line):
        if line == 0:
            a(f"s_lshr_b32 s{T1}, s{S_TB}, 2")
            a(f"s_lshl_b32 s{T1}, s{T1}, 9")
            a(f"v_and_b32 v2, 3, v{VL}")
            a(f"v_lshl_add_u32 v2, v2, 7, s{T1}")
            a(f"v_and_b32 v3, 15, v{VL}")
            a(f"v_lshlrev_b32 v3, 9, v3")
            a(f"v_add_u32 v3, 384, v3")
            a(f"s_mov_b32 s{T0}, {QFL_OFF}")
            a(f"v_cndmask_b32 v2, v3, v2, s[{S_UP}:{S_UP+1}]")
        else:
            a(f"s_and_b32 s{T0}, s2, 7")
            a(f"s_lshl_b32 s{T0}, s{T0}, 12")
            a(f"s_add_u32 s{T0}, s{T0}, {HFL_OFF}")
            a(f"s_lshl_b32 s{T1}, s{S_TB}, 7")
            a(f"s_add_u32 s{T1}, s{T1}, {OFL_OFF}")
            a(f"s_sub_u32 s{T1}, s{T1}, s{T0}")
            a(f"v_and_b32 v2, 15, v{VL}")
            a(f"v_lshl_add_u32 v2, v2, 2, s{T1}")
            a(f"v_min_u32 v3, 23, v{VL}")
            a(f"v_lshlrev_b32 v3, 7, v3")
            a(f"v_cndmask_b32 v2, v3, v2, s[{S_UP}:{S_UP+1}]")
        a(f"buffer_load_dword v{VF}, v2, s[{SWS}:{SWS+3}], s{T0} offen sc1")
    def mbx_test():
        a(f"v_cmp_ne_u32 vcc, s{S_NON}, v{VF}")
        a("s_cmp_eq_u64 vcc, 0")
    def mbx_wait(line, sleep):
        L, D = lab("spin"), lab("done")
        a(f"s_mov_b32 s{T5}, 0")
        mbx_load(line)
        a(f"{L}:")
        a(f"s_add_u32 s{T5}, s{T5}, 1")
        a("s_waitcnt vmcnt(0)")
        mbx_test()
        a(f"s_cbranch_scc1 {D}")
        a(f"s_sleep {sleep}")
        a(f"buffer_load_dword v{VF}, v2, s[{SWS}:{SWS+3}], s{T0} offen sc1")
        a(f"s_cmp_lt_u32 s{T5}, {SPIN_MAX}")
        a(f"s_cbranch_scc1 {L}")
        a(f"{D}:")
    def zero_mfma(dst, z):
        a(f"v_mfma_f32_32x32x16_bf16 {vr(dst,16)}, {vr(z,4)}, {vr(z,4)}, 0")

    O = lambda q: [32, 48, 128, 144][q]
    S = lambda p: 64 + 16*p
    P0, P1 = 96, 100
    Q1 = lambda q: 168 + 4*q
    Q2 = lambda q: 184 + 2*q
    KVB = lambda r: 192 + 14*r
    K1 = lambda r: KVB(r); V1 = lambda r: KVB(r)+4; V2 = lambda r: KVB(r)+8; K2 = lambda r: KVB(r)+12
    VCW, VCR, VCW4, VCR4, VFR = 22, 23, 24, 25, 255
    VD = [168, 169, 170, 171, 172]
    VAR, VAR2, VR0, VR1, VXO, VRW = 173, 174, 175, 176, 177, 178
    VX = [22, 23]; VW, VW2, VW3 = 24, 25, 190

    a("s_cmp_ge_u32 s2, 256")
    a("s_cbranch_scc1 L_end")
    load_kernargs(a)
    a(f"s_getpc_b64 s[{T0}:{T1}]")
    a("L_pc:")
    if CPF == 0:
        a(f"v_lshlrev_b32 v1, 7, v0")
    else:
        a(f"s_lshr_b32 s{T2}, s2, 3")
        a(f"s_and_b32 s{T2}, s{T2}, {CPF-1}")
        a(f"s_mul_i32 s{T2}, s{T2}, {49152//CPF}")
        a(f"v_subrev_u32 v1, {512 - 384//CPF}, v0")
        a(f"v_cmp_gt_u32 vcc, {384//CPF}, v1")
        a(f"v_lshl_add_u32 v1, v1, 7, s{T2}")
        a("s_nop 0")
        a(f"v_cndmask_b32 v1, 0, v1, vcc")
    a(f"v_min_u32 v1, L_end-L_pc, v1")
    a(f"global_load_dword v{VF}, v1, s[{T0}:{T1}]")
    a("v_lshrrev_b32 v1, 6, v0")
    a(f"v_and_b32 v{VL}, 63, v0")
    a(f"v_readfirstlane_b32 s{S_W}, v1")
    a(f"s_and_b32 s{T0}, s2, 7")
    a(f"s_lshr_b32 s{S_IDX}, s2, 3")
    if QF1:
        a(f"s_add_u32 s{S_IDX}, s{S_IDX}, 24")
        a(f"s_and_b32 s{S_IDX}, s{S_IDX}, 31")
    a(f"s_and_b32 s{S_TH}, s{T0}, 1")
    a(f"s_lshr_b32 s{S_CG}, s{T0}, 1")
    a(f"s_and_b32 s{S_WQ}, s{S_W}, 3")
    a(f"s_lshr_b32 s{S_ISH}, s{S_W}, 2")
    a(f"s_lshl_b32 s{S_TOK}, s{S_TH}, 2")
    a(f"s_and_b32 s{T1}, s{S_IDX}, 3")
    a(f"s_add_u32 s{S_TOK}, s{S_TOK}, s{T1}")
    a(f"s_lshl_b32 s{S_TOK}, s{S_TOK}, 8")
    a(f"s_mul_i32 s{S_COL}, s{S_CG}, 6")
    a(f"s_lshr_b32 s{T1}, s{S_IDX}, 2")
    a(f"s_add_u32 s{S_COL}, s{S_COL}, s{T1}")
    a(f"s_lshl_b32 s{T1}, s{S_TH}, 3")
    a(f"s_add_u32 s{T1}, s{T1}, s{S_IDX}")
    a(f"s_sub_u32 s{T1}, s{T1}, 24")
    a(f"s_lshl_b32 s{T1}, s{T1}, 7")
    a(f"s_cmp_lt_u32 s{S_IDX}, 24")
    a(f"s_cselect_b32 s{S_TOK}, s{S_TOK}, s{T1}")
    a(f"s_cselect_b32 s{S_COL}, s{S_COL}, s{S_CG}")
    a(f"s_cselect_b32 s{T1}, 6, 5")
    a(f"v_and_b32 v{VT}, 31, v0")
    a(f"v_bfe_u32 v{VH}, v0, 5, 1")
    if not S0H:
        a(f"s_cmp_lg_u32 s{S_ISH}, 0")
        a(f"s_cbranch_scc1 L_p0_h")
    a(f"v_lshrrev_b32 v1, 3, v{VL}")
    a(f"v_lshrrev_b32 v2, 4, v{VL}")
    a(f"v_and_b32 v4, 7, v{VL}")
    a(f"v_xor_b32 v3, v2, v4")
    a(f"s_lshl_b32 s{T2}, s{S_WQ}, s{T1}")
    a(f"s_add_u32 s{T2}, s{T2}, s{S_TOK}")
    a(f"v_add_u32 v5, s{T2}, v1")
    a(f"v_mul_u32_u24 v5, 1280, v5")
    a(f"v_lshl_add_u32 v{VX[0]}, v3, 4, v5")
    a(f"v_xor_b32 v3, 4, v3")
    a(f"v_lshl_add_u32 v{VX[1]}, v3, 4, v5")
    S_MX, S_MW = S_OX, S_RB
    S_RX, S_RW = 86, 99
    a(f"s_mul_i32 s{T2}, s{S_IDX}, 3")
    a(f"s_mul_i32 s{T3}, s{T2}, 205")
    a(f"s_lshr_b32 s{T3}, s{T3}, 11")
    a(f"s_mul_i32 s{T3}, s{T3}, 10")
    a(f"s_sub_u32 s{S_RW}, s{T2}, s{T3}")
    if "0" not in ABL: a(f"s_mov_b32 s{S_RW}, 0")
    if "1" not in ABL and "0" not in ABL:
        a(f"s_lshr_b32 s{T2}, s{S_IDX}, 2")
        a(f"s_xor_b32 s{T2}, s{T2}, s{S_IDX}")
        a(f"s_and_b32 s{T2}, s{T2}, 1")
        a(f"s_mul_i32 s{S_RW}, s{T2}, 5")
    S_RX = 82
    a(f"s_lshl_b32 s{S_RX}, s{S_RW}, 7")
    a(f"s_cmp_lt_u32 s{S_IDX}, 24")
    a(f"s_cbranch_scc0 L_q_l")
    a(f"v_and_b32 v2, 1, v2")
    a(f"v_lshlrev_b32 v2, 1, v2")
    a(f"v_xor_b32 v4, v4, v2")
    a(f"s_lshl_b32 s{T2}, s{S_WQ}, 4")
    a(f"v_add_u32 v1, s{T2}, v1")
    a(f"v_mul_u32_u24 v1, 3072, v1")
    a(f"v_lshl_add_u32 v1, v4, 4, v1")
    a(f"s_lshl_b32 s{T2}, s{S_COL}, 7")
    a(f"v_add_u32 v{VW}, s{T2}, v1")
    a(f"s_lshl_b32 s{S_MX}, s{S_WQ}, 13")
    a(f"s_lshl_b32 s{S_MW}, s{S_WQ}, 11")
    a(f"s_mul_i32 s{S_RW}, s{S_RW}, {64*3072}")
    a("s_waitcnt lgkmcnt(0)")
    make_srd(a, SX, P_X, 2048*1280)
    make_srd(a, SA, P_WG, 640*3072)
    make_srd(a, SB2, P_WU, 640*3072)
    if TW:
        make_srd(a, SC, P_WO, 640*1280)
        a(f"v_lshlrev_b32 v190, 7, v{VL}")
    def dma_gu(st):
        db = (st % 3) * STG
        ch = []
        for j in (0, 1, 2, 3, 8, 9, 4, 5, 6, 7, 10, 11):
            c = []
            if j < 8:
                if j in (0, 4):
                    c += [f"s_add_u32 m0, s{S_MX}, {db + 4096*(j>>2)}"]
                c += [f"s_add_u32 s{T3}, s{S_RX}, {j*10240 - 1024*(j&3)}",
                      f"buffer_load_dwordx4 v{VX[j&1]}, s[{SX}:{SX+3}], s{T3} offen offset:{1024*(j&3)} lds"]
            else:
                srd = SA if j < 10 else SB2
                if j in (8, 10):
                    c += [f"s_add_u32 m0, s{S_MW}, {db + G_OFF + (U_REL if j == 10 else 0)}"]
                c += [f"s_add_u32 s{T3}, s{S_RW}, {(j&1)*(8*3072-1024)}",
                      f"buffer_load_dwordx4 v{VW}, s[{srd}:{srd+3}], s{T3} offen offset:{1024*(j&1)} lds"]
                if j == 11:
                    c += [f"s_add_u32 s{S_RX}, s{S_RX}, 128", f"s_add_u32 s{S_RW}, s{S_RW}, {64*3072}", f"s_cmp_eq_u32 s{S_RX}, 1280",
                          f"s_cselect_b32 s{S_RX}, 0, s{S_RX}", f"s_cselect_b32 s{S_RW}, 0, s{S_RW}"]
            ch.append(c)
        return ch
    if SP: stamp(a, 1)
    if S0H:
        ch0 = dma_gu(0)
        upd0, ch0[-1] = ch0[-1][-5:], ch0[-1][:-5]
        a(f"s_cmp_lg_u32 s{S_ISH}, 0")
        a(f"s_cbranch_scc1 L_s0h_g")
        emit(ch0[:6] + [upd0])
        a("s_branch L_common")
        a("L_s0h_g:")
        emit(ch0[6:])
        a("s_branch L_p0_h")
    else:
        emit(dma_gu(0))
    if SP: stamp(a, 2)
    a("s_branch L_common")
    a("L_q_l:")
    EX1, EX2, S_M2 = 60, 62, 79
    a(f"s_cmp_eq_u32 s{S_COL}, 3")
    a(f"s_cselect_b32 s{T0}, 40, 1280")
    a(f"s_lshl_b32 s{S_ST2}, s{T0}, 6")
    a(f"v_and_b32 v2, 1, v2")
    a(f"v_lshlrev_b32 v2, 2, v2")
    a(f"v_xor_b32 v4, v4, v2")
    a(f"s_lshl_b32 s{T1}, s{S_WQ}, 4")
    a(f"v_add_u32 v1, s{T1}, v1")
    a(f"v_mul_u32_u24 v3, 1280, v1")
    a(f"v_lshl_add_u32 v3, v4, 4, v3")
    a(f"s_mul_i32 s{T2}, s{S_COL}, 384")
    a(f"v_add_u32 v{VW}, s{T2}, v3")
    a(f"v_add_u32 v{VW2}, 128, v{VW}")
    a(f"v_add_u32 v{VW3}, 256, v{VW}")
    a(f"s_lshl_b32 s{S_MX}, s{S_WQ}, 12")
    a(f"s_lshl_b32 s{S_MW}, s{S_WQ}, 11")
    a(f"s_add_u32 s{S_M2}, s{S_MW}, 8192")
    a(f"s_mov_b64 s[{EX1}:{EX1+1}], -1")
    a(f"s_mov_b64 s[{EX2}:{EX2+1}], -1")
    a(f"s_mul_i32 s{S_O2}, s{S_RW}, s{S_ST2}")
    a(f"s_mul_i32 s{S_RW}, s{S_RW}, {64*1280}")
    a(f"s_lshr_b32 s{S_O3}, s{S_ST2}, 3")
    a(f"s_sub_u32 s{S_O3}, s{S_O3}, 1024")
    a("s_waitcnt lgkmcnt(0)")
    make_srd(a, SX, P_X, 2048*1280)
    for r in (SA, SB2, SD):
        make_srd(a, r, P_WQ, 640*1280)
    a(f"s_cmp_eq_u32 s{S_COL}, 3")
    a(f"s_cbranch_scc0 L_q_l1")
    a(f"s_mov_b64 s[{SB2}:{SB2+1}], s[{P_WK}:{P_WK+1}]")
    a(f"s_mov_b64 s[{SD}:{SD+1}], s[{P_WV}:{P_WV+1}]")
    a(f"s_mov_b32 s{SB2+2}, {640*40}")
    a(f"s_mov_b32 s{SD+2}, {640*40}")
    a(f"s_mov_b32 s{S_M2}, s{S_MW}")
    a(f"v_mul_u32_u24 v3, 40, v1")
    a(f"v_and_b32 v2, 3, v4")
    a(f"v_lshl_add_u32 v{VW2}, v2, 4, v3")
    a(f"v_mov_b32 v{VW3}, v{VW2}")
    a(f"v_cmp_gt_u32 s[{EX1}:{EX1+1}], 4, v4")
    a(f"v_cmp_le_u32 s[{EX2}:{EX2+1}], 4, v4")
    a("L_q_l1:")
    def dma_q(st):
        db = (st % 3) * STG
        ch = []
        for j in range(4):
            c = []
            if j == 0:
                c += [f"s_add_u32 m0, s{S_MX}, {db}"]
            c += [f"s_add_u32 s{T3}, s{S_RX}, {j*(10240-1024)}",
                  f"buffer_load_dwordx4 v{VX[j&1]}, s[{SX}:{SX+3}], s{T3} offen offset:{1024*j} lds"]
            ch.append(c)
        ch.append([f"s_add_u32 m0, s{S_MW}, {db + 16384}", f"s_add_u32 s{T3}, s{S_RW}, {8*1280-1024}",
                   f"buffer_load_dwordx4 v{VW}, s[{SA}:{SA+3}], s{S_RW} offen lds"])
        ch.append([f"buffer_load_dwordx4 v{VW}, s[{SA}:{SA+3}], s{T3} offen offset:1024 lds"])
        for sm, srd, vo, ex in ((S_MW, SB2, VW2, EX1), (S_M2, SD, VW3, EX2)):
            ch.append([f"s_add_u32 m0, s{sm}, {db + 16384 + 8192}", f"s_mov_b64 exec, s[{ex}:{ex+1}]",
                       f"buffer_load_dwordx4 v{vo}, s[{srd}:{srd+3}], s{S_O2} offen lds", "s_mov_b64 exec, -1"])
            ch.append([f"s_add_u32 m0, s{sm}, {db + 16384 + 8192 + 1024}", f"s_add_u32 s{T3}, s{S_O2}, s{S_O3}", f"s_add_u32 s{T3}, s{T3}, 1024", f"s_mov_b64 exec, s[{ex}:{ex+1}]",
                       f"buffer_load_dwordx4 v{vo}, s[{srd}:{srd+3}], s{T3} offen lds", "s_mov_b64 exec, -1"])
        ch[-1] += [f"s_add_u32 s{S_RX}, s{S_RX}, 128", f"s_add_u32 s{S_RW}, s{S_RW}, {64*1280}", f"s_add_u32 s{S_O2}, s{S_O2}, s{S_ST2}", f"s_cmp_eq_u32 s{S_RX}, 1280",
                   f"s_cselect_b32 s{S_RX}, 0, s{S_RX}", f"s_cselect_b32 s{S_RW}, 0, s{S_RW}", f"s_cselect_b32 s{S_O2}, 0, s{S_O2}"]
        return ch
    if SP: stamp(a, 1)
    if S0H:
        ch0 = dma_q(0)
        upd0, ch0[-1] = ch0[-1][-7:], ch0[-1][:-7]
        a(f"s_cmp_lg_u32 s{S_ISH}, 0")
        a(f"s_cbranch_scc1 L_s0h_q")
        emit(ch0[:6] + [upd0])
        a("s_branch L_common")
        a("L_s0h_q:")
        emit(ch0[6:])
        a("s_branch L_p0_h")
    else:
        emit(dma_q(0))
    if SP: stamp(a, 2)
    a("s_branch L_common")

    a("L_p0_h:")
    a(f"s_lshl_b32 s{T0}, s2, 3")
    a(f"s_lshl_b32 s{T1}, s{S_WQ}, 1")
    a(f"s_add_u32 s{T0}, s{T0}, s{T1}")
    a(f"v_add_u32 v4, s{T0}, v{VH}")
    a(f"v_mul_u32_u24 v5, 1280, v4")
    a(f"v_lshl_add_u32 v5, v{VT}, 3, v5")
    a(f"v_lshlrev_b32 v255, 3, v4")
    a(f"v_mov_b32 v242, 0")
    a(f"s_mov_b32 s{T1}, {EPOCH_OFF}")
    a("s_waitcnt lgkmcnt(0)")
    make_srd(a, SX, P_X, 2048*1280)
    make_srd(a, SWS, P_WS, WS_SIZE)
    a(f"buffer_load_dword v203, v242, s[{SWS}:{SWS+3}], s{T1} offen sc1")
    for j in range(5):
        a(f"buffer_load_dwordx2 {vr(192+2*j,2)}, v5, s[{SX}:{SX+3}], 0 offen offset:{256*j}")

    if PGT:
        make_srd(a, SD, P_OUT, 2048*1280)
        a(f"s_cmp_eq_u32 s{S_WQ}, 1")
        a(f"s_cselect_b64 s[{SD}:{SD+1}], s[{P_WD}:{P_WD+1}], s[{SD}:{SD+1}]")
        a(f"s_cselect_b32 s{SD+2}, {1536*1280}, s{SD+2}")
        a(f"s_cmp_eq_u32 s{S_WQ}, 2")
        a(f"s_cselect_b64 s[{SD}:{SD+1}], s[{P_WO}:{P_WO+1}], s[{SD}:{SD+1}]")
        a(f"s_cselect_b32 s{SD+2}, {640*1280}, s{SD+2}")
        a(f"s_cmp_eq_u32 s{S_WQ}, 3")
        a(f"s_cselect_b64 s[{SD}:{SD+1}], s[{P_WS}:{P_WS+1}], s[{SD}:{SD+1}]")
        a(f"s_cselect_b32 s{SD+2}, {0xC00000}, s{SD+2}")
        a(f"v_lshlrev_b32 v1, 19, v{VL}")
        a(f"s_lshl_b32 s{T0}, s2, 7")
        a(f"buffer_load_dword v246, v1, s[{SD}:{SD+3}], s{T0} offen")

    a("L_common:")
    make_srd(a, SWS, P_WS, WS_SIZE)
    make_srd(a, SDBG, P_DBG, 256)
    a(f"s_and_b32 s{S_MH}, s{S_W}, 1")
    a(f"s_lshr_b32 s{S_ROT}, s{S_W}, 1")
    a(f"s_mov_b32 s{S_UP}, 0")
    a(f"s_mov_b32 s{S_UP+1}, -1")
    a(f"v_lshlrev_b32 v{VL16}, 4, v{VL}")
    a(f"v_bfe_u32 v1, v{VT}, 1, 3")
    a(f"v_xor_b32 v1, v1, v{VH}")
    a(f"s_lshl_b32 s{T1}, s{S_ROT}, 1")
    a(f"v_xor_b32 v1, s{T1}, v1")
    a(f"v_lshlrev_b32 v2, 7, v{VT}")
    a(f"s_cmp_lt_u32 s{S_IDX}, 24")
    a(f"s_cselect_b32 s{T0}, 13, 12")
    a(f"s_lshl_b32 s{T0}, s{S_ROT}, s{T0}")
    a(f"v_add_u32 v2, s{T0}, v2")
    VB = lambda sg: 18 + sg
    for sg in range(4):
        a(f"v_xor_b32 v3, {2*sg}, v1")
        a(f"v_lshl_add_u32 v{VB(sg)}, v3, 4, v2")
    for r in range(CSA, CSA+6):
        a(f"v_mov_b32 v{r}, 0")
    a(f"s_and_b32 s{T0}, s2, 7")
    a(f"s_lshl_b32 s{S_TB}, s{T0}, 3")
    a(f"s_and_b32 s{T1}, s{S_IDX}, 7")
    a(f"s_add_u32 s{S_TB}, s{S_TB}, s{T1}")
    a(f"s_lshr_b32 s{S_G}, s{S_IDX}, 3")
    a(f"s_mov_b32 s{S_EARLY}, 0")
    a(f"s_mov_b32 s{S_DL}, {STG}")
    a(f"s_mov_b32 s{S_I}, {-2*STG & 0xffffffff}")
    a(f"v_bfe_u32 v1, v{VL}, 2, 2")
    a(f"v_lshl_add_u32 v2, v{VH}, 3, v1")
    a(f"v_bfe_u32 v3, v{VL}, 4, 1")
    a(f"s_cmp_lt_u32 s{S_IDX}, 24")
    a(f"s_cbranch_scc0 L_q_rd")
    VAg = lambda sg, aa: 10 + 2*sg + aa
    a(f"v_lshlrev_b32 v2, 7, v2")
    a(f"v_mul_u32_u24 v3, {U_REL}, v3")
    a(f"v_add_u32 v2, v2, v3")
    a(f"v_and_b32 v1, 2, v1")
    a(f"v_bfe_u32 v3, v{VL}, 1, 1")
    a(f"v_add_u32 v1, v1, v3")
    a(f"v_lshl_add_u32 v2, v1, 4, v2")
    a(f"v_and_b32 v3, 1, v{VL}")
    a(f"v_lshl_add_u32 v2, v3, 3, v2")
    a(f"s_lshl_b32 s{T0}, s{S_MH}, 6")
    a(f"s_add_u32 s{T0}, s{T0}, {G_OFF}")
    for sg in range(4):
        a(f"s_xor_b32 s{T1}, s{S_ROT}, {sg}")
        a(f"s_lshl_b32 s{T1}, s{T1}, 11")
        a(f"s_add_u32 s{T1}, s{T1}, s{T0}")
        a(f"v_add_u32 v{VAg(sg,0)}, s{T1}, v2")
        a(f"v_xor_b32 v{VAg(sg,1)}, 32, v{VAg(sg,0)}")

    def one(lst): return [[x] for x in lst]
    def bg_common():
        o = [f"v_lshlrev_b32 v{VL8}, 3, v{VL}", "v_mov_b32 v4, 0x80000000", f"v_cndmask_b32 v{VL8}, v{VL8}, v4, s[{S_UP}:{S_UP+1}]",
             f"v_mul_u32_u24 v5, 21, v{VH}", f"v_add_lshl_u32 v5, v5, v{VT}, 4", f"v_cmp_gt_u32 vcc, 21, v{VT}", "s_nop 1", f"v_cndmask_b32 v{VLV}, v4, v5, vcc", f"s_lshl_b32 s{T0}, s{S_W}, 2", f"s_add_u32 s{T0}, s{T0}, {FL_OFF}", f"v_mov_b32 v{VFL}, s{T0}"]
        o += [f"v_mov_b32 v{r}, 0" for r in (243, 244, 245)]
        return one(o)
    def bg_L():
        o = [f"v_mov_b32 v246, 0", f"v_mov_b32 v247, 0", f"s_mul_i32 s{T0}, s{S_G}, 320"]
        for j in range(5):
            o += [f"v_add_u32 v6, {64*j}, v{VL}", f"v_mul_u32_u24 v4, 3277, v6", f"v_lshrrev_b32 v4, 16, v4", f"v_mul_u32_u24 v5, 20, v4",
                  f"v_sub_u32 v5, v6, v5", f"v_mul_u32_u24 v4, 1280, v4", f"v_lshl_add_u32 v4, v5, 4, v4", f"v_add_u32 v{VD[j]}, s{T0}, v4"]
            if 0 < j < 4: o += [f"v_subrev_u32 v{VD[j]}, {1024*j}, v{VD[j]}"]
        o += [
              f"s_mul_i32 s{T0}, s{S_WQ}, {RSZ}", f"v_bfe_u32 v6, v{VL}, 2, 2", f"v_bfe_u32 v4, v{VL}, 4, 1", f"v_and_b32 v5, 3, v{VL}",
              f"v_lshl_add_u32 v4, v4, 2, v5", f"s_lshl_b32 s{T1}, s{S_WQ}, 1", f"v_xor_b32 v4, s{T1}, v4", f"v_lshl_add_u32 v4, v4, 3, s{T0}",
              f"v_lshl_add_u32 v5, v{VH}, 2, v6", f"v_mul_u32_u24 v5, 320, v5", f"v_add_u32 v{VAR}, v4, v5",
              f"v_lshl_add_u32 v5, v{VH}, 3, v6", f"v_mul_u32_u24 v5, 320, v5", f"v_add_u32 v{VAR2}, v4, v5", f"v_add_u32 v{VRW}, s{T0}, v{VL16}"]
        for i, vv in ((1, VR0), (2, VR1), (3, VRW+1)):
            o += [f"s_xor_b32 s{T1}, s{S_WQ}, {i}", f"s_mul_i32 s{T1}, s{T1}, {RSZ}", f"v_add_u32 v{vv}, s{T1}, v{VL16}"]
        return one(o)
    VRD = {1: VR0, 2: VR1, 3: VRW+1}
    def touches():
        a(f"s_lshl_b32 s{T0}, s{S_TH}, 10")
        a(f"s_lshl_b32 s{T1}, s{S_IDX}, 5")
        a(f"s_add_u32 s{T0}, s{T0}, s{T1}")
        a(f"v_add_u32 v1, s{T0}, v{VT}")
        a(f"v_mul_u32_u24 v1, 1280, v1")
        a(f"v_mov_b32 v2, 128")
        a(f"v_mov_b32 v3, s{P_X}")
        a(f"v_mov_b32 v4, s{P_X+1}")
        a(f"v_min_u32 v5, 29, v{VT}")
        a(f"v_cmp_le_u32 vcc, 15, v5")
        a(f"s_lshl_b32 s{T0}, s{S_IDX}, 1")
        a(f"v_mov_b32 v6, s{T0}")
        a(f"v_subrev_u32 v7, 15, v5")
        a(f"v_addc_co_u32 v6, s[{T2}:{T3}], 0, v6, vcc")
        a(f"v_cndmask_b32 v5, v5, v7, vcc")
        a(f"v_cmp_le_u32 vcc, 6, v5")
        a(f"v_subrev_u32 v7, 6, v5")
        a(f"v_mov_b32 v8, s{P_WG}")
        a(f"v_cndmask_b32 v7, v5, v7, vcc")
        a(f"v_mov_b32 v9, s{P_WU}")
        a(f"v_cndmask_b32 v8, v8, v9, vcc")
        a(f"v_mov_b32 v9, s{P_WG+1}")
        a(f"v_mov_b32 v32, s{P_WU+1}")
        a(f"v_cndmask_b32 v9, v9, v32, vcc")
        a(f"s_mul_i32 s{T0}, s{S_CG}, 768")
        a(f"v_mul_u32_u24 v32, 3072, v6")
        a(f"v_lshl_add_u32 v32, v7, 7, v32")
        a(f"v_add_u32 v32, s{T0}, v32")
        a(f"v_mov_b32 v33, {64*3072}")
        a(f"v_cmp_le_u32 vcc, 12, v5")
        a(f"s_mul_i32 s{T0}, s{S_CG}, 384")
        a(f"s_sub_u32 s{T0}, s{T0}, {12*128}")
        a(f"v_lshl_add_u32 v7, v5, 7, s{T0}")
        a(f"v_min_u32 v7, 1152, v7")
        a(f"v_mul_u32_u24 v6, 1280, v6")
        a(f"v_add_u32 v7, v7, v6")
        a(f"v_cndmask_b32 v32, v32, v7, vcc")
        a(f"v_mov_b32 v7, {64*1280}")
        a(f"v_cndmask_b32 v33, v33, v7, vcc")
        a(f"v_mov_b32 v7, s{P_WQ}")
        a(f"v_cndmask_b32 v8, v8, v7, vcc")
        a(f"v_mov_b32 v7, s{P_WQ+1}")
        a(f"v_cndmask_b32 v9, v9, v7, vcc")
        for d, s_ in ((1, 32), (2, 33), (3, 8), (4, 9)):
            a(f"v_cndmask_b32 v{d}, v{d}, v{s_}, s[{S_UP}:{S_UP+1}]")
        a(f"s_add_u32 s{T0}, s{S_WQ}, 3")
        a(f"v_mul_lo_u32 v5, v2, s{T0}")
        a(f"v_add_u32 v1, v1, v5")
        a(f"v_add_co_u32 v6, vcc, v3, v1")
        a(f"s_cmp_eq_u32 s{S_WQ}, 3")
        a(f"s_cselect_b32 s{T0}, 3, 4")
        a(f"v_addc_co_u32 v7, vcc, 0, v4, vcc")
        a(f"global_load_dword v246, v[6:7], off")
        a(f"v_mul_lo_u32 v2, v2, s{T0}")
        a(f"v_add_co_u32 v8, vcc, v6, v2")
        a(f"s_nop 1")
        a(f"v_addc_co_u32 v9, vcc, 0, v7, vcc")
        a(f"global_load_dword v247, v[8:9], off")
    NT_ = 2 if "T" in ABL else PGT
    def bg_H(full=True, late=False):
        d = {i: [] for i in range(10)}
        d[0].append([f"s_waitcnt vmcnt({NT_})"])
        st = ["v_mov_b32 v8, 0", "v_mov_b32 v9, 0"]
        for j in range(10):
            st += [f"v_lshlrev_b32 v4, 16, v{192+j}", f"v_and_b32 v5, 0xffff0000, v{192+j}", "v_add_f32 v8, v8, v4", "v_fmac_f32 v9, v4, v4",
                   "v_add_f32 v8, v8, v5", "v_fmac_f32 v9, v5, v5"]
        for rr in (8, 4, 2, 1):
            st += ["s_nop 0", f"v_add_f32_dpp v8, v8, v8 row_ror:{rr} row_mask:0xf bank_mask:0xf", f"v_add_f32_dpp v9, v9, v9 row_ror:{rr} row_mask:0xf bank_mask:0xf"]
        st += ["v_mov_b32 v4, v8", "v_mov_b32 v5, v9", "s_nop 1", "v_permlane16_swap_b32 v4, v8", "v_permlane16_swap_b32 v5, v9", "s_nop 1",
               "v_add_f32 v4, v4, v8", "v_add_f32 v5, v5, v9", f"v_mul_f32 v4, {f32bits(-1.0/640)}, v4", f"v_mul_f32 v5, {f32bits(1.0/640)}, v5",
               "v_fma_f32 v5, -v4, v4, v5", "v_max_f32 v5, 0, v5", "v_cvt_pk_bf16_f32 v5, v5, v5", "v_lshlrev_b32 v5, 16, v5",
               f"v_add_f32 v5, {f32bits(1e-5)}, v5", "v_cvt_pk_bf16_f32 v5, v5, v5", "v_lshlrev_b32 v5, 16, v5", "v_sqrt_f32 v5, v5", "s_nop 0",
               "v_cvt_pk_bf16_f32 v202, v4, v5"]
        h = len(st)//2
        d[0] += one(st[:24]); d[1] += one(st[24:])
        d[0].insert(1, ["v_add_u32 v203, 1, v203"]); d[0].insert(2, ["v_or_b32 v203, 0x80000000, v203"])
        d[0].insert(3, [f"v_mov_b32 v4, {FL_OFF + 128}", "ds_write_b32 v4, v203", f"v_readfirstlane_b32 s{S_NON}, v203"])
        d[1] += [["s_mov_b32 exec_lo, 1", "s_mov_b32 exec_hi, 1", f"s_mov_b32 s{T0}, {STF_OFF}",
                  f"buffer_store_dwordx2 v[202:203], v255, s[{SWS}:{SWS+3}], s{T0} offen sc1", "s_mov_b64 exec, -1"]]
        o = [f"s_lshl_b32 s{T0}, s{S_TB}, 5", f"s_lshl_b32 s{T1}, s{S_G}, 2", f"s_add_u32 s{T0}, s{T0}, s{T1}", f"s_add_u32 s{T0}, s{T0}, s{S_WQ}",
             f"s_lshl_b32 s{T0}, s{T0}, 2", f"s_add_u32 s{S_OFL}, s{T0}, {OFL_OFF}",
             f"s_and_b32 s{S_K2}, s{S_WQ}, 2", f"s_mul_i32 s{S_KV}, s{S_K2}, {16*KVS}", f"s_add_u32 s{S_KV}, s{S_KV}, {KVF_OFF}",
             f"s_lshl_b32 s{S_H0}, s{S_G}, 3", f"s_and_b32 s{T0}, s{S_WQ}, 1", f"s_lshl_b32 s{T0}, s{T0}, 2", f"s_add_u32 s{S_H0}, s{S_H0}, s{T0}",
             f"v_lshlrev_b32 v7, 4, v{VT}", f"v_mov_b32 v8, 0x80000000"]
        for q in range(4):
            o += [f"s_xor_b32 s{T0}, s{S_K2}, {q}", f"s_add_u32 s{T0}, s{T0}, s{S_H0}", f"s_mul_i32 s{T0}, s{T0}, 5"]
            for j, dst in enumerate((Q1(q), Q1(q)+2, Q2(q))):
                o += [f"v_add_u32 v4, s{T0}, v{VH}"]
                if j: o += [f"v_add_u32 v4, {2*j}, v4"]
                o += [f"v_lshrrev_b32 v5, 2, v4", f"v_lshl_add_u32 v5, v5, 10, v7", f"v_and_b32 v6, 1, v4", f"v_lshl_add_u32 v5, v6, 9, v5",
                      f"v_and_b32 v6, 2, v4", f"v_lshl_add_u32 v{dst}, v6, 2, v5"]
                if j == 2: o += [f"v_cndmask_b32 v{dst}, v{dst}, v8, s[{S_UP}:{S_UP+1}]"]
        o += [f"s_lshl_b32 s{T0}, s{S_WQ}, 13", f"s_add_u32 s{T0}, s{T0}, {CB_OFF}", f"s_xor_b32 s{T1}, s{S_WQ}, 2", f"s_lshl_b32 s{T1}, s{T1}, 13",
              f"s_add_u32 s{T1}, s{T1}, {CB_OFF}", f"v_add_u32 v{VCW}, s{T0}, v{VL16}", f"v_add_u32 v{VCR}, s{T1}, v{VL16}",
              ]
        n3 = (len(o) + 2)//3
        pois = [f"s_add_u32 s{T1}, s{S_H0}, s{S_K2}", f"s_mul_i32 s{T1}, s{T1}, 5", f"s_mul_i32 s{S_OO}, s{S_TB}, 160", f"s_add_u32 s{S_OO}, s{S_OO}, s{T1}",
                f"s_lshl_b32 s{S_OO}, s{S_OO}, 8", f"s_add_u32 s{S_OO}, s{S_OO}, {OF_OFF}"] + [f"v_mov_b32 v{r}, -1" for r in range(204, 208)] + \
               [f"buffer_store_dwordx4 v[204:207], v{VL16}, s[{SWS}:{SWS+3}], s{S_OO} offen sc1",
                f"buffer_store_dwordx4 v[204:207], v{VL16}, s[{SWS}:{SWS+3}], s{S_OO} offen offset:1024 sc1",
                f"buffer_store_dwordx4 v[204:207], v{VL16}, s[{SWS}:{SWS+3}], s{S_OO} offen offset:1536 sc1"]
        if late == 2: return one(pois)
        if late: return one(o)
        if full: d[5] += one(o[:n3]); d[6] += one(o[n3:2*n3]); d[7] += one(o[2*n3:])

        if full: d[6].insert(0, pois)
        d[2] += bg_common()
        return d

    def p1_phase(tag, nA, nB, ND, dma, reads, FA, FB, ACC, addr_regs, early):
        nR = 2*nA + nB
        nm = nA*nB
        dw = [(aa, i) for aa in range(nA) for i in range(4)]
        hd = len(dw)//2; qd = hd//2
        def cs_ops(p, lst):
            o = []
            if "c" in ABL: return o
            for aa, i in lst:
                o += [f"v_lshlrev_b32 v2, 16, v{FA(p,aa)+i}", f"v_and_b32 v3, 0xffff0000, v{FA(p,aa)+i}",
                      f"v_add_f32 v{CSA+2*aa}, v{CSA+2*aa}, v2", f"v_add_f32 v{CSA+2*aa+1}, v{CSA+2*aa+1}, v3"]
            return o
        sets3 = A3 == 2 or (A3 and not early)
        cur = [0]
        def group(p, rd_sg, extra=(), dma_ch=(), bg=(), first=False, skip=False):
            extra = list(extra); bg = list(bg)
            rd = reads(rd_sg) if (rd_sg is not None and "r" not in ABL) else []
            if sets3 and cur[0] % 3:
                for r in addr_regs(rd_sg) if rd_sg is not None else []:
                    rd = [x.replace(f", v{r} ", f", v{196 + 12*(cur[0] % 3) + r - 10} ") if f", v{r} " in x + " " else x for x in [y + " " for y in rd]]
                    rd = [x.strip() for x in rd]
            per = (len(extra) + nm - 1)//nm
            bper = (len(bg) + nm - 1)//nm
            rper = (len(rd) + 1)//2
            dch = list(dma_ch)
            k = 0
            for aa in range(nA):
                for b in range(nB):
                    if "m" not in ABL and not skip:
                        a(f"v_mfma_f32_32x32x16_bf16 {vr(ACC(aa,b),16)}, {vr(FA(p,aa),4)}, {vr(FB(p,b),4)}, {'0' if first else vr(ACC(aa,b),16)}")
                    for e in rd[rper*k:rper*(k+1)]: a(e)
                    ndc = (len(dch) + (nm - k) - 1)//(nm - k)
                    emit(dch[:ndc]); dch = dch[ndc:]
                    for e in extra[per*k:per*(k+1)]: a(e)
                    emit(bg[bper*k:bper*(k+1)])
                    k += 1
        def upd(sg, st):
            if sets3: return []
            sreg = S_I if st % 3 == 2 else S_DL
            return [f"v_add_u32 v{r}, s{sreg}, v{r}" for r in addr_regs(sg)] if st < 9 else []
        def run(role):
            bgd = bg_H(early) if role == "H" else {i: [] for i in range(10)}
            if role == "L":
                o = bg_common() + (bg_L() if early else []); n = (len(o) + 4)//5
                for i in range(5): bgd[1+i] = o[n*i:n*(i+1)]
            for it in range(10):
                cur[0] = it
                if it == 0 and sets3:
                    for k3 in (1, 2):
                        for r in range(10, 22):
                            a(f"v_add_u32 v{196 + 12*k3 + r - 10}, {k3*STG}, v{r}")
                if role == "L":
                    if it == 0: emit(dma(1))
                    a(f"s_waitcnt vmcnt({ND if it < 9 else ((4 // len(TW)) if (early and 8 in TW) else 0)})")
                if role == "H" and it == 0 and S0H: a(f"s_waitcnt vmcnt({6 + NT_})")
                if SP and it == 0: stamp(a, 3)
                a("s_barrier")
                if SP and it == 0: stamp(a, 4)
                if "I" in ABL:
                    a(f"v_writelane_b32 v241, s12, {it}"); a("s_memtime s[12:13]")
                pre = []
                if role == "H":
                    if it == 4:
                        pre = [[f"v_xor_b32 v{VFR}, 8, v{VFL}"]]
                    if it == 8 and early:
                        a("s_waitcnt vmcnt(0)")
                        a("s_mov_b64 exec, 1")
                        a(f"buffer_store_dword v203, v242, s[{SWS}:{SWS+3}], s{S_OFL} offen sc1")
                        a("s_mov_b64 exec, -1")
                    if it == 8 or it == 9:
                        Lx = lab("hk")
                        a(f"s_cmp_lg_u32 s{S_W}, 4")
                        a(f"s_cbranch_scc1 {Lx}")
                        if it == 8:
                            a(f"s_lshl_b32 s{T0}, s{S_TOK}, 3")
                            a(f"s_add_u32 s{S_O2}, s{T0}, {STF_OFF}")
                            a(f"buffer_load_dwordx4 v[160:163], v{VL16}, s[{SWS}:{SWS+3}], s{S_O2} offen sc1")
                            a(f"buffer_load_dwordx4 v[164:167], v{VL16}, s[{SWS}:{SWS+3}], s{S_O2} offen offset:{1024 if nB == 2 else 0} sc1")
                        if it == 9:
                            a(f"s_call_b64 s[{T4}:{T5}], L_stats")
                            if early: mbx_load(0)
                        a(f"{Lx}:")
                elif it == 9:
                    a(f"v_mov_b32 v4, {FL_OFF + 128}"); a("ds_read_b32 v5, v4")
                    pre = [[f"v_readfirstlane_b32 s{S_NON}, v5"]]
                xl = 1 if ((role == "H" and it == 3) or (role == "L" and it == 9)) else 0
                ch = dma(it + 2) if (role == "L" and it < 8 and "g" not in ABL) else []
                if role == "L" and early and it in TW:
                    t_ = TW.index(it); per = 4 // len(TW) if len(TW) <= 4 else 1
                    tl = []
                    for u in range(per):
                        tl += [f"s_lshl_b32 s{T3}, s{S_IDX}, 2", f"s_add_u32 s{T3}, s{T3}, s{S_WQ}", f"s_lshl_b32 s{T3}, s{T3}, 2", f"s_add_u32 s{T3}, s{T3}, {t_*per+u}",
                               f"s_cmp_lt_u32 s{T3}, 240", f"s_cselect_b64 s[{SC}:{SC+1}], s[{P_WD}:{P_WD+1}], s[{P_WO}:{P_WO+1}]",
                               f"s_cselect_b32 s{SC+2}, {1536*1280}, s{SC+2}", f"s_cselect_b32 s{T2}, 0, 240", f"s_sub_u32 s{T3}, s{T3}, s{T2}", f"s_lshl_b32 s{T3}, s{T3}, 13",
                               f"buffer_load_dword v191, v190, s[{SC}:{SC+3}], s{T3} offen", f"s_mov_b32 s{SC+2}, {640*1280}"]
                    ch = [tl] + ch
                q = (len(ch) + 3)//4
                bg = bgd[it]; bq = (len(bg) + 3)//4
                if it == 0: bq = (len(bg) + 1)//2; b0, b1, b2, b3 = [], [], bg[:bq], bg[bq:]
                else: b0, b1, b2, b3 = bg[:bq], bg[bq:2*bq], bg[2*bq:3*bq], bg[3*bq:]
                group(2, 0, extra=(upd(3, it-1) + cs_ops(2, dw[hd:hd+qd])) if it else [], dma_ch=ch[0:q], bg=b0, skip=(it == 0))
                group(3, 1, extra=upd(0, it) + (cs_ops(2, dw[hd+qd:]) if it else []), dma_ch=ch[q:2*q], bg=b1, skip=(it == 0))
                a(f"s_waitcnt lgkmcnt({nR})")
                group(0, 2, extra=upd(1, it) + cs_ops(0, dw[:qd]), dma_ch=ch[2*q:3*q], bg=pre + b2, first=(it == 0))
                a(f"s_waitcnt lgkmcnt({nR})")
                group(1, 3, extra=upd(2, it) + cs_ops(0, dw[qd:hd]), dma_ch=ch[3*q:], bg=b3)
                a("s_waitcnt lgkmcnt(0)")
        if not SP: stamp(a, 1)
        a(f"s_cmp_lg_u32 s{S_ISH}, 0")
        a(f"s_cbranch_scc1 L_{tag}_h")
        run("L")
        a(f"s_branch L_{tag}_fin")
        a(f"L_{tag}_h:")
        if "T" in ABL: touches()
        a(f"v_lshlrev_b32 v1, 2, v{VL}")
        a(f"v_add_u32 v1, {FL_OFF}, v1")
        a(f"ds_write_b32 v1, v242")
        a("s_waitcnt lgkmcnt(0)")
        run("H")
        a(f"L_{tag}_fin:")
        group(2, None, extra=cs_ops(2, dw[hd:]))
        group(3, None)
        if not SP: stamp(a, 2)
        if "I" in ABL:
            a(f"v_writelane_b32 v241, s12, 10")
            a("s_waitcnt lgkmcnt(0)")
            a(f"v_writelane_b32 v241, s4, 0")
            a(f"v_writelane_b32 v241, s8, 11")
            a(f"s_lshl_b32 s{T0}, s2, 3"); a(f"s_add_u32 s{T0}, s{T0}, s3"); a(f"s_lshl_b32 s{T0}, s{T0}, 8"); a(f"s_add_u32 s{T0}, s{T0}, 0x1000000")
            a(f"v_lshlrev_b32 v2, 2, v{VL}")
            a(f"buffer_store_dword v241, v2, s[{SWS}:{SWS+3}], s{T0} offen")
        if "X" in ABL: endpgm(a, 0)
        a(f"s_mul_i32 s{T2}, s{S_MH}, {nA}")
        a(f"s_lshl_b32 s{T0}, s{T2}, 10")
        a(f"s_add_u32 s{T0}, s{T0}, {CS_OFF}")
        a(f"v_add_u32 v1, s{T0}, v{VL16}")
        a(f"s_lshl_b32 s{T1}, s{S_ROT}, 2")
        a(f"v_add_u32 v9, s{T1}, v1")
        for aa in range(nA):
            a(f"v_add_f32 v{2+aa}, v{CSA+2*aa}, v{CSA+2*aa+1}")
        for aa in range(nA):
            a(f"v_cvt_pk_bf16_f32 v{5+aa}, v{2+aa}, v{2+aa}")
        for aa in range(nA):
            a(f"v_lshlrev_b32 v{5+aa}, 16, v{5+aa}")
        for aa in range(nA):
            a(f"v_sub_f32 v{5+aa}, v{2+aa}, v{5+aa}")
        for aa in range(nA):
            a(f"v_cvt_pk_bf16_f32 v{5+aa}, v{2+aa}, v{5+aa}")
            a(f"ds_write_b32 v9, v{5+aa} offset:{1024*aa}")
        if early:
            Lx = lab("nost")
            a(f"s_cmp_lg_u32 s{S_W}, 4")
            a(f"s_cbranch_scc1 {Lx}")
            a("s_waitcnt vmcnt(0)")
            mbx_test()
            a(f"s_cbranch_scc0 {Lx}")
            lds_set(16)
            a(f"{Lx}:")
        a(f"s_lshl_b32 s{T1}, s{S_ROT}, {8 + (nB-1)}")
        a(f"s_add_u32 s{T1}, s{T1}, {ST_OFF}")
        a(f"v_lshl_add_u32 v5, v{VT}, 3, s{T1}")
        a(f"v_mov_b32 v6, {FL_OFF + 64}")
        a("s_waitcnt lgkmcnt(0)")
        a("s_barrier")
        for b in range(nB):
            a(f"ds_read_b64 {vr(160+4*b,2)}, v5 offset:{256*b}")
        for aa in range(nA):
            a(f"ds_read_b128 {vr(10+4*aa,4)}, v1 offset:{1024*aa}")
        if early:
            a("ds_read_b32 v4, v6")
        a(f"s_cmp_eq_u32 s{S_ISH}, 0")
        a(f"s_cbranch_scc1 L_{tag}_np")
        a("s_setprio 2")
        a(f"L_{tag}_np:")
        a(f"s_waitcnt lgkmcnt({nA + (1 if early else 0)})")
        for b in range(nB):
            a(f"v_mov_b32 v{26+b}, v{161+4*b}")
            for j in (1, 2, 3):
                a(f"v_mov_b32 v{160+4*b+j}, v{160+4*b}")
        a("s_waitcnt lgkmcnt(0)")
        a("s_nop 0")
        for b in range(nB):
            for aa in range(nA):
                a(f"v_mfma_f32_32x32x16_bf16 {vr(ACC(aa,b),16)}, {vr(10+4*aa,4)}, {vr(160+4*b,4)}, {vr(ACC(aa,b),16)}")

    FA = lambda p, aa: FBASE[p] + 4*aa
    FB = lambda p, b: FBASE[p] + 8 + 4*b
    ACC = lambda aa, b: 64 + 16*(2*aa + b)
    def reads_gu(sg):
        o = []
        for aa in range(2):
            for n in range(2):
                o.append(f"ds_read_b64_tr_b16 {vr(FA(sg,aa)+2*n,2)}, v{VAg(sg,aa)} offset:{512*n}")
            o.append(f"ds_read_b128 {vr(FB(sg,aa),4)}, v{VB(sg)} offset:{4096*aa}")
        return o
    p1_phase("gu", 2, 2, 12, dma_gu, reads_gu, FA, FB, ACC, lambda sg: [VAg(sg,0), VAg(sg,1), VB(sg)], True)
    a(f"v_readfirstlane_b32 s{S_EARLY}, v4")
    a(f"v_mul_f32 v26, v26, v26")
    a(f"v_mul_f32 v28, v27, v27")
    a(f"s_and_b32 s{S_EARLY}, s{S_EARLY}, s{S_ISH}")
    a(f"s_cmp_eq_u32 s{S_EARLY}, 1")
    a(f"s_cbranch_scc0 L_gu_ne")
    a(f"s_call_b64 s[{T4}:{T5}], L_attn_loads")
    a("L_gu_ne:")
    a(f"s_lshr_b32 s{T0}, s{S_TOK}, 5")
    a(f"s_lshl_b32 s{T1}, s{S_ROT}, 1")
    a(f"s_add_u32 s{T0}, s{T0}, s{T1}")
    a(f"s_mul_i32 s{T0}, s{T0}, 96")
    a(f"s_lshl_b32 s{T1}, s{S_COL}, 2")
    a(f"s_add_u32 s{T0}, s{T0}, s{T1}")
    a(f"s_add_u32 s{T0}, s{T0}, s{T2}")
    a(f"s_lshl_b32 s{T0}, s{T0}, 10")
    a(f"s_add_u32 s{T0}, s{T0}, {HF_OFF}")
    a(f"s_add_u32 s{T1}, s{T0}, {96*1024}")
    a(f"s_mov_b64 s[88:89], s[{T0}:{T1}]")
    a("s_nop 0")
    for b in range(2):
        for aa in range(2):
            A = ACC(aa, b)
            for j in range(0, 8, 2):
                a(f"v_pk_mul_f32 {vr(A+j,2)}, {vr(A+j,2)}, {vr(26+2*b,2)} op_sel_hi:[1,0]")
            for j in range(0, 8, 2):
                a(f"v_pk_mul_f32 {vr(A+j,2)}, {vr(A+j,2)}, {vr(A+8+j,2)}")
            for q in range(4):
                a(f"v_cvt_pk_bf16_f32 v{A+q}, v{A+2*q}, v{A+2*q+1}")
            if not LATEH: a(f"buffer_store_dwordx4 {vr(A,4)}, v{VL16}, s[{SWS}:{SWS+3}], s{T0 if b == 0 else T1} offen offset:{1024*aa} sc1")
    a("s_branch L_p2")

    a("L_stats:")
    a(f"s_mov_b32 s{T1}, 0")
    a("L_stats_l:")
    a("s_waitcnt vmcnt(0)")
    a(f"v_xor_b32 v4, s{S_NON}, v161")
    a(f"v_xor_b32 v5, s{S_NON}, v163")
    a(f"v_xor_b32 v6, s{S_NON}, v165")
    a(f"v_xor_b32 v7, s{S_NON}, v167")
    a("v_or3_b32 v4, v4, v5, v6")
    a("v_or_b32 v4, v4, v7")
    a("v_cmp_ne_u32 vcc, 0, v4")
    a(f"s_add_u32 s{T1}, s{T1}, 1")
    a("s_cmp_eq_u64 vcc, 0")
    a("s_cbranch_scc1 L_stats_d")
    a("s_sleep 8")
    a(f"s_cmp_lt_u32 s{S_IDX}, 24")
    a(f"s_cselect_b32 s{T0}, 1024, 0")
    a(f"s_add_u32 s{T0}, s{T0}, s{S_O2}")
    a(f"buffer_load_dwordx4 v[160:163], v{VL16}, s[{SWS}:{SWS+3}], s{S_O2} offen sc1")
    a(f"buffer_load_dwordx4 v[164:167], v{VL16}, s[{SWS}:{SWS+3}], s{T0} offen sc1")
    a(f"s_cmp_lt_u32 s{T1}, {SPIN_MAX}")
    a("s_cbranch_scc1 L_stats_l")
    a("L_stats_d:")
    a(f"s_mov_b32 s{T0}, 0x01000100")
    for r in (160, 162, 164, 166):
        a(f"v_and_b32 v{r+1}, 0xffff0000, v{r}")
        a(f"v_rcp_f32 v{r+1}, v{r+1}")
        a(f"v_perm_b32 v{r}, v{r}, v{r}, s{T0}")
    a(f"v_add_u32 v4, {ST_OFF}, v{VL16}")
    a(f"ds_write_b128 v4, v[160:163]")
    a(f"ds_write_b128 v4, v[164:167] offset:1024")
    a(f"s_setpc_b64 s[{T4}:{T5}]")

    a("L_q_rd:")
    VAq = lambda sg, par: 10 + 2*sg + par
    a(f"v_lshlrev_b32 v2, 7, v2")
    a(f"v_lshl_add_u32 v2, v3, 5, v2")
    a(f"v_and_b32 v3, 3, v{VL}")
    a(f"v_lshl_add_u32 v2, v3, 3, v2")
    a(f"v_and_b32 v1, 2, v1")
    a(f"v_lshl_add_u32 v2, v1, 5, v2")
    a(f"s_lshl_b32 s{T0}, s{S_MH}, 6")
    a(f"v_xor_b32 v2, s{T0}, v2")
    a(f"s_lshl_b32 s{T0}, s{S_MH}, 13")
    a(f"s_add_u32 s{T2}, s{T0}, 16384")
    for sg in range(4):
        a(f"s_xor_b32 s{T1}, s{S_ROT}, {sg}")
        a(f"s_lshl_b32 s{T1}, s{T1}, 11")
        a(f"s_add_u32 s{T1}, s{T1}, s{T2}")
        a(f"v_add_u32 v{VAq(sg,0)}, s{T1}, v2")
        a(f"v_xor_b32 v{VAq(sg,1)}, 64, v{VAq(sg,0)}")
        a(f"v_add_u32 v{VAq(sg,1)}, s{T0}, v{VAq(sg,1)}")
    FA = lambda p, aa: FBASE[p] + 4*aa
    FB = lambda p, b: FBASE[p] + 12
    ACC = lambda aa, b: 64 + 16*aa
    def reads_q(sg):
        o = [f"ds_read_b128 {vr(FB(sg,0),4)}, v{VB(sg)}"]
        for aa in range(3):
            for n in range(2):
                o.append(f"ds_read_b64_tr_b16 {vr(FA(sg,aa)+2*n,2)}, v{VAq(sg, aa & 1)} offset:{8192*(aa >> 1)+512*n}")
        return o
    p1_phase("q", 3, 1, 10, dma_q, reads_q, FA, FB, ACC, lambda sg: [VAq(sg,0), VAq(sg,1), VB(sg)], False)
    a(f"s_lshr_b32 s{T0}, s{S_TOK}, 5")
    a(f"s_add_u32 s{T0}, s{T0}, s{S_ROT}")
    a(f"s_mul_i32 s{T1}, s{T0}, {KVS}")
    a(f"s_add_u32 s{T1}, s{T1}, {KVF_OFF}")
    a(f"s_mul_i32 s{T0}, s{T0}, 40960")
    a(f"s_mul_i32 s{T3}, s{S_COL}, 6")
    a(f"s_add_u32 s{T2}, s{T2}, s{T3}")
    a(f"s_lshl_b32 s{T3}, s{T2}, 11")
    a(f"s_add_u32 s{T0}, s{T0}, s{T3}")
    a(f"v_mul_f32 v28, {f32bits(QSCALE)}, v26")
    a("s_nop 1")
    for aa in range(3):
        A = ACC(aa, 0)
        Lk, Ld = lab("kv"), lab("sd")
        a(f"s_cmp_lt_u32 s{T2}, {20-aa}")
        a(f"s_cbranch_scc0 {Lk}")
        for j in range(0, 16, 2):
            a(f"v_pk_mul_f32 {vr(A+j,2)}, {vr(A+j,2)}, v[28:29] op_sel_hi:[1,0]")
        for q in range(8):
            a(f"v_cvt_pk_bf16_f32 v{A+q}, v{A+2*q}, v{A+2*q+1}")
        for i in range(2):
            a(f"buffer_store_dwordx4 {vr(A+4*i,4)}, v{VL16}, s[{SWS}:{SWS+3}], s{T0} offen offset:{(2048*aa+1024*i) & 4095} sc1")
        if aa == 1:
            a(f"s_add_u32 s{T0}, s{T0}, 4096")
        a(f"s_branch {Ld}")
        a(f"{Lk}:")
        if aa == 2:
            a(f"s_cmp_eq_u32 s{T2}, 18")
            a(f"s_cbranch_scc0 {Ld}")
            for j in range(0, 12, 2):
                a(f"v_pk_mul_f32 {vr(A+j,2)}, {vr(A+j,2)}, v[26:27] op_sel_hi:[1,0]")
            for q in range(6):
                a(f"v_cvt_pk_bf16_f32 v{A+q}, v{A+2*q}, v{A+2*q+1}")
            a(f"buffer_store_dwordx4 {vr(A,4)}, v{VL16}, s[{SWS}:{SWS+3}], s{T1} offen sc1")
            a(f"buffer_store_dwordx2 {vr(A+4,2)}, v{VL8}, s[{SWS}:{SWS+3}], s{T1} offen offset:1024 sc1")
        elif aa == 0:
            for j in range(0, 12, 2):
                a(f"v_pk_mul_f32 {vr(A+j,2)}, {vr(A+j,2)}, v[26:27] op_sel_hi:[1,0]")
            a(f"s_mul_i32 s{T3}, s{S_ROT}, 2304")
            a(f"s_add_u32 s{T3}, s{T3}, {VT_OFF}")
            a(f"v_mul_u32_u24 v1, {4*72}, v{VH}")
            a(f"v_lshl_add_u32 v1, v{VT}, 1, v1")
            a(f"v_add_u32 v1, s{T3}, v1")
            a(f"v_mul_u32_u24 v2, 72, v{VT}")
            a(f"v_lshl_add_u32 v2, v{VH}, 3, v2")
            a(f"v_add_u32 v2, s{T3}, v2")
            a(f"v_cndmask_b32 v{A+8}, v{A+8}, 1.0, s[{S_UP}:{S_UP+1}]")
            for j in (9, 10, 11):
                a(f"v_cndmask_b32 v{A+j}, v{A+j}, 0, s[{S_UP}:{S_UP+1}]")
            for q in range(6):
                a(f"v_cvt_pk_bf16_f32 v{A+q}, v{A+2*q}, v{A+2*q+1}")
            for j in range(12):
                row = 8*(j >> 2) + (j & 3)
                op = "ds_write_b16_d16_hi" if j & 1 else "ds_write_b16"
                a(f"{op} v1, v{A+(j>>1)} offset:{row*72}")
            for f in range(2):
                a(f"ds_read2_b64 {vr(A+8+4*f,4)}, v2 offset0:{4*f} offset1:{4*f+2}")
            a("s_waitcnt lgkmcnt(0)")
            for f in range(2):
                a(f"buffer_store_dwordx4 {vr(A+8+4*f,4)}, v{VLV}, s[{SWS}:{SWS+3}], s{T1} offen offset:{1280+672*f} sc1")
        a(f"{Ld}:")

    a(f"s_cmp_lg_u32 s{S_ISH}, 0")
    a(f"s_cbranch_scc1 L_q_lh")
    emit(bg_L())
    a("s_branch L_q_lx")
    a("L_q_lh:")
    emit(bg_H(late=True))
    a("L_q_lx:")
    a("s_waitcnt vmcnt(0)")
    a("s_barrier")
    a(f"s_cmp_eq_u32 s{S_ISH}, 0")
    a(f"s_cbranch_scc1 L_p2")
    a(f"s_cmp_lg_u32 s{S_W}, 4")
    a(f"s_cbranch_scc1 L_q_po")
    a(f"s_lshl_b32 s{T0}, s{S_TOK}, 2")
    a(f"s_lshl_b32 s{T1}, s{S_COL}, 7")
    a(f"s_add_u32 s{T0}, s{T0}, s{T1}")
    a(f"s_add_u32 s{T0}, s{T0}, {QFL_OFF}")
    a("s_mov_b64 exec, 1")
    a(f"v_mov_b32 v2, s{S_NON}")
    a(f"buffer_store_dword v2, v244, s[{SWS}:{SWS+3}], s{T0} offen sc1")
    a("s_mov_b64 exec, -1")
    a("L_q_po:")
    emit(bg_H(late=2))
    a(f"v_mov_b32 v2, s{S_NON}")
    a("s_waitcnt vmcnt(0)")
    a("s_mov_b64 exec, 1")
    a(f"buffer_store_dword v2, v244, s[{SWS}:{SWS+3}], s{S_OFL} offen sc1")
    a("s_mov_b64 exec, -1")
    def h_stores():
        Lx = lab("hs")
        a(f"s_cmp_ge_u32 s{S_IDX}, 24")
        a(f"s_cbranch_scc1 {Lx}")
        for b in range(2):
            for aa in range(2):
                a(f"buffer_store_dwordx4 {vr(64 + 16*(2*aa+b),4)}, v{VL16}, s[{SWS}:{SWS+3}], s{88+b} offen offset:{1024*aa} sc1")
        a(f"{Lx}:")
    a("L_p2:")
    if not SP: stamp(a, 3)
    a(f"v_mov_b32 v15, 1")
    a(f"v_mov_b32 v14, s{S_NON}")
    a(f"s_cmp_lg_u32 s{S_ISH}, 0")
    a(f"s_cbranch_scc1 L_attn")
    KQ = S_WQ
    S_OA, S_OB, S_M, S_IT = 78, 82, 80, 81
    VXR = 180
    VXL, S_XO = 191, 84
    ACC = lambda m: 64 + 16*m
    FA0 = 144
    FB = lambda s: 192 + 4*s
    make_srd(a, SA, P_WD, 1536*1280)
    make_srd(a, SB2, P_WS, WS_SIZE)
    make_srd(a, SC, P_OUT, 2048*1280)
    a(f"s_mul_i32 s{S_OA}, s{KQ}, {24*16*1280}")
    a(f"s_mul_i32 s{S_M}, s{KQ}, {RSZ}")
    a(f"s_mul_i32 s{S_OB}, s{S_TB}, 96")
    a(f"s_mul_i32 s{T0}, s{KQ}, 24")
    a(f"s_add_u32 s{S_OB}, s{S_OB}, s{T0}")
    a(f"s_lshl_b32 s{S_OB}, s{S_OB}, 10")
    a(f"s_add_u32 s{S_OB}, s{S_OB}, {HF_OFF}")
    S_RT = 83
    a(f"s_and_b32 s{S_RT}, s{S_TB}, {0 if '3' in ABL else 3}")
    a(f"s_mul_i32 s{T0}, s{S_RT}, {6*16*1280}")
    a(f"s_add_u32 s{S_OA}, s{S_OA}, s{T0}")
    a(f"s_mul_i32 s{T0}, s{S_RT}, {6*1024}")
    a(f"s_add_u32 s{S_OB}, s{S_OB}, s{T0}")
    def dma_a(slot):
        a(f"s_add_u32 m0, s{S_M}, {slot*5120}")
        a(f"s_add_u32 s{T2}, s{S_M}, {slot*5120+4096}")
        for j in range(4):
            a(f"buffer_load_dwordx4 v{VD[j]}, s[{SA}:{SA+3}], s{S_OA} offen offset:{1024*j} lds")
        a(f"s_mov_b32 m0, s{T2}")
        a("s_nop 0")
        a(f"buffer_load_dwordx4 v{VD[4]}, s[{SA}:{SA+3}], s{S_OA} offen lds")
        a(f"s_add_u32 s{S_OA}, s{S_OA}, {16*1280}")
    def dma_a_list(slot):
        o = [[f"s_add_u32 m0, s{S_M}, {slot*5120}", f"s_add_u32 s{T2}, s{S_M}, {slot*5120+4096}",
              f"buffer_load_dwordx4 v{VD[0]}, s[{SA}:{SA+3}], s{S_OA} offen lds"]]
        for j in range(1, 4):
            o.append([f"buffer_load_dwordx4 v{VD[j]}, s[{SA}:{SA+3}], s{S_OA} offen offset:{1024*j} lds"])
        o.append([f"s_mov_b32 m0, s{T2}", "s_nop 0", f"buffer_load_dwordx4 v{VD[4]}, s[{SA}:{SA+3}], s{S_OA} offen lds", f"s_add_u32 s{S_OA}, s{S_OA}, {16*1280}"])
        return o
    def load_b(reg):
        a(f"buffer_load_dwordx4 {vr(reg,4)}, v{VL16}, s[{SB2}:{SB2+3}], s{S_OB} offen sc1")
        a(f"s_add_u32 s{S_OB}, s{S_OB}, 1024")
    def h_flag():
        lds_wait(0, 8, sleep=1)
        if SB: stamp(a, 2)
        a(f"s_lshl_b32 s{T0}, s{S_TOK}, 4")
        a(f"s_lshl_b32 s{T1}, s{S_COL}, 7")
        a(f"s_add_u32 s{T0}, s{T0}, s{T1}")
        a(f"s_add_u32 s{T0}, s{T0}, {HFL_OFF}")
        a("s_mov_b64 exec, 1")
        a(f"buffer_store_dword v14, v{VZ}, s[{SWS}:{SWS+3}], s{T0} offen sc1")
        a("s_mov_b64 exec, -1")
    if "G" in ABL: endpgm(a, 0)
    XP = 320
    lds_wait(28, 4, sleep=2)
    h_stores()
    a(f"s_lshl_b32 s{T0}, s{S_TB}, 5")
    a(f"s_lshl_b32 s{T1}, s{KQ}, 3")
    a(f"s_add_u32 s{T0}, s{T0}, s{T1}")
    a(f"s_mul_i32 s{S_XO}, s{T0}, 1280")
    a(f"s_mul_i32 s{T0}, s{KQ}, {8*XP}")
    a(f"s_add_u32 m0, s{T0}, {CB_OFF}")
    a(f"v_add_u32 v{VXL}, s{T0}, v{VL16}")
    a(f"v_add_u32 v{VXL}, {CB_OFF}, v{VXL}")
    for j in range(3):
        if j == 2: a("s_mov_b32 exec_hi, 0")
        a(f"buffer_load_dwordx4 v{VD[j]}, s[{SX}:{SX+3}], s{S_XO} offen offset:{1024*j} lds")
    a("s_mov_b32 exec_hi, -1")
    for m in range(5):
        zero_mfma(ACC(m), VZ)
    a(f"v_mul_u32_u24 v{VXO}, {XP}, v{VT}")
    a(f"v_lshl_add_u32 v{VXO}, v{VH}, 3, v{VXO}")
    a(f"s_lshl_b32 s{T0}, s{KQ}, 4")
    a(f"s_add_u32 s{T0}, s{T0}, {CB_OFF}")
    a(f"v_add_u32 v{VXO}, s{T0}, v{VXO}")
    a("s_waitcnt vmcnt(0)")
    a(f"ds_write_b32 v{VFL}, v15")
    if SB: stamp(a, 1)
    a(f"s_cmp_lg_u32 s{S_W}, 0")
    a(f"s_cbranch_scc1 L_l_ring")
    a(f"s_cmp_ge_u32 s{S_IDX}, 24")
    a(f"s_cbranch_scc1 L_l_ring")
    h_flag()
    a("L_l_ring:")
    for s_ in range(PD):
        dma_a(s_)
        a(f"s_waitcnt vmcnt({PW1})")
    lds_wait(0, 4, sleep=1)
    for m in range(5):
        a(f"ds_read_b64 {vr(VXR+2*m,2)}, v{VXO} offset:{64*m}")
    a("s_waitcnt lgkmcnt(0)")
    for m in range(5):
        for q in range(2):
            a(f"v_lshlrev_b32 v{ACC(m)+2*q}, 16, v{VXR+2*m+q}")
            a(f"v_and_b32 v{ACC(m)+2*q+1}, 0xffff0000, v{VXR+2*m+q}")
    if SB: stamp(a, 3)
    a(f"s_cmp_lg_u32 s{S_W}, 0")
    a(f"s_cbranch_scc1 L_l_pub")
    mbx_wait(1, 6)
    if SB: stamp(a, 0)
    lds_set(18)
    a("L_l_pub:")
    lds_wait(18, sleep=4)
    for s in range(PD):
        load_b(FB(s))
    a(f"s_mov_b32 s{S_IT}, 0")
    a("s_waitcnt vmcnt(0)")
    if not SP: stamp(a, 4)
    def rd_a(dst, slot, va, nrow):
        for m in range(5):
            for n in range(2):
                a(f"ds_read_b64_tr_b16 {vr(dst+4*m+2*n,2)}, v{va} offset:{slot*5120 + n*nrow + m*64}")
    if LPRIO: a(f"s_setprio {LPRIO}")
    if DBA: rd_a(144, 0, VAR, 2560)
    a(".p2align 6")
    a("L_gloop:")
    def switch():
        a(f"s_add_u32 s{S_RT}, s{S_RT}, 1")
        a(f"s_cmp_eq_u32 s{S_RT}, 4")
        a(f"s_cselect_b32 s{T0}, {24*16*1280}, 0")
        a(f"s_cselect_b32 s{T1}, {24*1024}, 0")
        a(f"s_sub_u32 s{S_OA}, s{S_OA}, s{T0}")
        a(f"s_sub_u32 s{S_OB}, s{S_OB}, s{T1}")
        a(f"s_cmp_lt_u32 s{S_IT}, 3")
        a(f"s_cbranch_scc1 L_gl1")
        a(f"s_mov_b64 s[{SA}:{SA+1}], s[{P_WO}:{P_WO+1}]")
        a(f"s_mov_b32 s{SA+2}, {640*1280}")
        a(f"s_mov_b32 s{SB2+2}, 0")
        a(f"s_mul_i32 s{S_OA}, s{KQ}, {160*1280}")
        a("L_gl1:")
    def rd_a(dst, slot, va, nrow):
        for m in range(5):
            for n in range(2):
                a(f"ds_read_b64_tr_b16 {vr(dst+4*m+2*n,2)}, v{va} offset:{slot*5120 + n*nrow + m*64}")
    def mm(fa, fb):
        for m in range(5):
            a(f"v_mfma_f32_32x32x16_bf16 {vr(ACC(m),16)}, {vr(fa+4*m,4)}, {vr(fb,4)}, {vr(ACC(m),16)}")
    for s in range(RING):
        if DBA:
            FAD = [144, 2]
            if s == RING - PD: switch()
            a(f"s_waitcnt vmcnt({6*(PD-2)}) lgkmcnt(0)")
            rd_a(FAD[(s+1) & 1], (s+1) % RING, VAR, 2560)
            dl = dma_a_list((s + PD) % RING)
            for m in range(5):
                a(f"v_mfma_f32_32x32x16_bf16 {vr(ACC(m),16)}, {vr(FAD[s & 1]+4*m,4)}, {vr(FB(s),4)}, {vr(ACC(m),16)}")
                emit([dl[m]])
            if "b" in ABL: a(f"buffer_load_dword v{FB((s + PD) % RING)}, v{VZ}, s[{SX}:{SX+3}], 0 offen")
            else: load_b(FB((s + PD) % RING))
            continue
        if s == RING - PD: switch()
        a(f"s_waitcnt vmcnt({6*(PD-1)})")
        if "R" not in ABL: rd_a(FA0, s, VAR, 2560)
        a("s_waitcnt lgkmcnt(0)")
        if PACE:
            dl = dma_a_list((s + PD) % RING)
            for m in range(5):
                a(f"v_mfma_f32_32x32x16_bf16 {vr(ACC(m),16)}, {vr(FA0+4*m,4)}, {vr(FB(s),4)}, {vr(ACC(m),16)}")
                emit([dl[m]])
            load_b(FB((s + PD) % RING))
            continue
        if "D" not in ABL: dma_a(s)
        if "M" not in ABL: mm(FA0, FB(s))
        if "D" not in ABL: load_b(FB(s))
    a(f"s_add_u32 s{S_IT}, s{S_IT}, 1")
    a(f"s_cmp_lt_u32 s{S_IT}, 4")
    a(f"s_cbranch_scc1 L_gloop")
    PRE = [144, 2, 22, 42]
    OB = lambda k: 192 + 4*k
    a(f"s_mov_b32 s{SB2+2}, {WS_SIZE}")
    a(f"s_mul_i32 s{S_OB}, s{S_TB}, 40")
    a(f"s_mul_i32 s{T0}, s{KQ}, 10")
    a(f"s_add_u32 s{S_OB}, s{S_OB}, s{T0}")
    a(f"s_lshl_b32 s{S_OB}, s{S_OB}, 10")
    a(f"s_add_u32 s{S_OB}, s{S_OB}, {OF_OFF}")
    a(f"s_add_u32 s{T0}, s{S_OB}, 4096")
    a(f"s_add_u32 s{T1}, s{S_OB}, 8192")
    for k in range(PD, RING):
        a("s_waitcnt vmcnt(2)")
        dma_a(k)
    a(f"s_waitcnt vmcnt({12 if PD == 6 else 0})")
    for k in range(4):
        rd_a(PRE[k], k, VAR2, 1280)
    a("s_waitcnt lgkmcnt(0)")
    for k in range(4):
        dma_a(k)
        if PACE > 1: a(f"s_waitcnt vmcnt({PW1})")
    a(f"v_mov_b32 v232, {FL_OFF + 80}")
    if STAMPS and not SB and not SP: stamp(a, 3)
    a("L_ow:")
    a("ds_read_b128 v[236:239], v232")
    a("s_waitcnt lgkmcnt(0)")
    a(f"v_bitop3_b32 v236, v236, v237, v238 bitop3:{'0x80' if HINT == 2 else '0xfe'}")
    a(f"{'v_and_b32' if HINT == 2 else 'v_or_b32'} v236, v236, v239")
    a("s_nop 0")
    a(f"v_readfirstlane_b32 s{T4}, v236")
    a("s_nop 0")
    a(f"s_cmp_eq_u32 s{T4}, 1")
    a(f"s_cbranch_scc1 L_owd")
    a("s_sleep 4")
    a(f"s_branch L_ow")
    a("L_owd:")
    a(f"s_mov_b32 s{T5}, 0")
    def ld_o(k):
        a(f"buffer_load_dwordx4 {vr(OB(k),4)}, v{VL16}, s[{SB2}:{SB2+3}], s{[S_OB, T0, T1][k >> 2]} offen offset:{1024*(k & 3)} sc1")
    for k in range(10):
        ld_o(k)
    for k in range(10):
        a(f"s_waitcnt vmcnt({9-k})")
        a(f"L_oc{k}:")
        a(f"v_max3_u32 v232, v{OB(k)}, v{OB(k)+1}, v{OB(k)+2}")
        a(f"v_max_u32 v232, v232, v{OB(k)+3}")
        a(f"v_cmp_eq_u32 vcc, -1, v232")
        if k >= 4:
            a(f"s_waitcnt lgkmcnt({min(15, 10*min(3, 9-k))})")
        a("s_cmp_lg_u64 vcc, 0")
        a(f"s_cbranch_scc1 L_or{k}")
        a(f"L_og{k}:")
        if k == 0 and STAMPS and not SB and not SP: a("s_memtime s[6:7]")
        mm(PRE[k & 3], OB(k))
        if k + 4 < 10:
            kk = k + 4
            rd_a(PRE[k & 3], kk if kk < 6 else kk - 6, VAR2, 1280)
    if STAMPS and not SB and not SP: a("s_memtime s[8:9]")
    a(f"v_mov_b32 v15, 1")
    a(f"v_mov_b32 v12, {FL_OFF+48}")
    a("s_nop 5")
    for m in range(5):
        for i in range(1, 4):
            a(f"ds_write_b128 v{VRW}, {vr(ACC(m)+4*i,4)} offset:{((i-1)*5+m)*1024}")
    a("s_waitcnt lgkmcnt(0)")
    a(f"ds_write_b32 v{VFL}, v15 offset:48")
    a("L_gpoll:")
    a(f"ds_read_b128 v[4:7], v12")
    a("s_waitcnt lgkmcnt(0)")
    a("v_bitop3_b32 v4, v4, v5, v6 bitop3:0x80")
    a("v_and_b32 v4, v4, v7")
    a("s_nop 0")
    a(f"v_readfirstlane_b32 s{T0}, v4")
    a("s_nop 0")
    a(f"s_cmp_eq_u32 s{T0}, 1")
    a(f"s_cbranch_scc0 L_gpoll")
    for m in range(5):
        for i in range(1, 4):
            a(f"ds_read_b128 {vr(ACC(m)+4*i,4)}, v{VRD[i]} offset:{((i-1)*5+m)*1024}")
    for m in range(5):
        A = ACC(m)
        a(f"s_waitcnt lgkmcnt({12-3*m})")
        for h2 in range(2):
            a(f"v_pk_add_f32 {vr(A+2*h2,2)}, {vr(A+2*h2,2)}, {vr(A+4+2*h2,2)}")
            a(f"v_pk_add_f32 {vr(A+8+2*h2,2)}, {vr(A+8+2*h2,2)}, {vr(A+12+2*h2,2)}")
        for h2 in range(2):
            a(f"v_pk_add_f32 {vr(A+2*h2,2)}, {vr(A+2*h2,2)}, {vr(A+8+2*h2,2)}")
        a(f"v_cvt_pk_bf16_f32 v{A}, v{A}, v{A+1}")
        a(f"v_cvt_pk_bf16_f32 v{A+1}, v{A+2}, v{A+3}")
        a(f"ds_write_b64 v{VXO}, {vr(A,2)} offset:{64*m}")
    a("s_waitcnt lgkmcnt(0)")
    a(f"ds_write_b32 v{VFL}, v15 offset:144")
    a("L_gpoll2:")
    a(f"ds_read_b128 v[4:7], v12 offset:96")
    a("s_waitcnt lgkmcnt(0)")
    a("v_bitop3_b32 v4, v4, v5, v6 bitop3:0x80")
    a("v_and_b32 v4, v4, v7")
    a("s_nop 0")
    a(f"v_readfirstlane_b32 s{T0}, v4")
    a("s_nop 0")
    a(f"s_cmp_eq_u32 s{T0}, 1")
    a(f"s_cbranch_scc0 L_gpoll2")
    for j in range(3):
        a(f"ds_read_b128 {vr(64+4*j,4)}, v{VXL} offset:{1024*j}")
    for j in range(3):
        a(f"s_waitcnt lgkmcnt({2-j})")
        if j == 2: a("s_mov_b32 exec_hi, 0")
        a(f"buffer_store_dwordx4 {vr(64+4*j,4)}, v{VD[j]}, s[{SC}:{SC+3}], s{S_XO} offen offset:{1024*j}")
    a("s_mov_b32 exec_hi, -1")
    endpgm(a, 0)

    for k in range(10):
        a(f"L_or{k}:")
        a("s_waitcnt vmcnt(0)")
        if RSL: a(f"s_sleep {RSL}")
        for j in range(k, 10): ld_o(j)
        a(f"s_add_u32 s{T5}, s{T5}, 1")
        a(f"s_cmp_lt_u32 s{T5}, {SPIN_MAX}")
        a(f"s_waitcnt vmcnt({9-k})")
        a(f"s_cbranch_scc1 L_oc{k}")
        a(f"s_branch L_og{k}")

    S_IT = 78
    def load_kv(r):
        a(f"buffer_load_dwordx4 {vr(K1(r),4)}, v{VL16}, s[{SWS}:{SWS+3}], s{S_KV} offen sc1")
        a(f"buffer_load_dwordx2 {vr(K2(r),2)}, v{VL8}, s[{SWS}:{SWS+3}], s{S_KV} offen offset:1024 sc1")
        a(f"buffer_load_dwordx4 {vr(V1(r),4)}, v{VLV}, s[{SWS}:{SWS+3}], s{S_KV} offen offset:1280 sc1")
        a(f"buffer_load_dwordx4 {vr(V2(r),4)}, v{VLV}, s[{SWS}:{SWS+3}], s{S_KV} offen offset:1952 sc1")
        a(f"s_add_u32 s{S_KV}, s{S_KV}, {KVS}")
    a("L_attn_loads:")
    a(f"s_mul_i32 s{T0}, s{S_TB}, 40960")
    for d in (Q1(0), Q1(0)+2, Q2(0)):
        a(f"buffer_load_dwordx2 {vr(d,2)}, v{d}, s[{SWS}:{SWS+3}], s{T0} offen sc1")
    load_kv(0)
    for q in range(1, 4):
        for d in (Q1(q), Q1(q)+2, Q2(q)):
            a(f"buffer_load_dwordx2 {vr(d,2)}, v{d}, s[{SWS}:{SWS+3}], s{T0} offen sc1")
    for r in range(1, 3):
        load_kv(r)
    a(f"s_setpc_b64 s[{T4}:{T5}]")

    a("L_attn:")
    for q in range(4):
        zero_mfma(O(q), V2(3))
    a(f"s_cmp_eq_u32 s{S_EARLY}, 1")
    a(f"s_cbranch_scc1 L_attn_go")
    if not LATEH:
        a("s_waitcnt vmcnt(0)")
        a(f"ds_write_b32 v{VFL}, v15")
    if SB: stamp(a, 1)
    a(f"s_cmp_lg_u32 s{S_W}, 4")
    a(f"s_cbranch_scc1 L_attn_w")
    mbx_wait(0, 1)
    lds_set(17)
    a("L_attn_w:")
    lds_wait(17, sleep=1)
    if SB: stamp(a, 2)
    a(f"s_call_b64 s[{T4}:{T5}], L_attn_loads")
    a("L_attn_go:")
    h_stores()
    a(f"s_lshl_b32 s{T0}, s2, 3")
    a(f"s_add_u32 s{T0}, s{T0}, s{S_WQ}")
    a(f"s_cmp_lg_u32 s{T0}, 0")
    a(f"s_cbranch_scc1 L_attn_g2")
    a(f"s_mov_b32 s{T0}, {EPOCH_OFF}")
    a("v_mov_b32 v2, 0")
    a("s_mov_b64 exec, 1")
    a(f"buffer_store_dword v14, v2, s[{SWS}:{SWS+3}], s{T0} offen sc1")
    a("s_mov_b64 exec, -1")
    a("L_attn_g2:")
    for r in range(P1, P1+4):
        a(f"v_mov_b32 v{r}, 0")
    a(f"s_mov_b32 s{S_IT}, 0")
    a("s_waitcnt vmcnt(17)")
    a(f"ds_write_b32 v{VFL}, v15 offset:96")
    if "Z" in ABL: a("s_memrealtime s[8:9]")
    if not SP: stamp(a, 4)
    def qk1(buf, r, q): a(f"v_mfma_f32_32x32x16_bf16 {vr(S(buf),16)}, {vr(K1(r),4)}, {vr(Q1(q),4)}, 0")
    def qk2(buf, r, q): a(f"v_mfma_f32_32x32x8_bf16 {vr(S(buf),16)}, {vr(K2(r),2)}, {vr(Q2(q),2)}, {vr(S(buf),16)}")
    def pv(q, vreg, preg): a(f"v_mfma_f32_32x32x16_bf16 {vr(O(q),16)}, {vr(vreg,4)}, {vr(preg,4)}, {vr(O(q),16)}")
    def E(buf, i0):
        for i in range(i0, i0+4): a(f"v_exp_f32 v{S(buf)+i}, v{S(buf)+i}")
    def C(dst, buf, i): a(f"v_cvt_pk_bf16_f32 v{dst}, v{S(buf)+i}, v{S(buf)+i+1}")
    qk1(0, 0, 0); qk2(0, 0, 0)
    a("s_nop 10")
    a(".p2align 6")
    a("L_aloop:")
    for r in [x & 3 for x in range(4*AUN)]:
        for q in range(4):
            buf = q & 1; nb = buf ^ 1
            nr, nq = (r, q+1) if q < 3 else ((r+1) & 3, 0)
            pr, pq = (r, q-1) if q > 0 else ((r-1) & 3, 3)
            if r == 0 and q < 3:
                a(f"s_waitcnt vmcnt({[14, 15, 12][q]})")
            if q == 3:
                a(f"s_waitcnt vmcnt({KVW})")
                if r == 1:
                    a(f"ds_write_b32 v{VFL}, v15")
            qk1(nb, nr, nq); E(buf, 0)
            pv(pq, V2(pr), P1); C(P0, buf, 0); C(P0+1, buf, 2)
            if q == 0:
                load_kv((r+3) & 3)
            E(buf, 4)
            qk2(nb, nr, nq); C(P0+2, buf, 4); C(P0+3, buf, 6); E(buf, 8)
            pv(q, V1(r), P0); C(P1, buf, 8); C(P1+1, buf, 10); E(buf, 12); C(P1+2, buf, 12); C(P1+3, buf, 14)
    a(f"s_add_u32 s{S_IT}, s{S_IT}, 1")
    a(f"s_cmp_lt_u32 s{S_IT}, {1 if 'H' in ABL else 8//AUN}")
    a(f"s_cbranch_scc1 L_aloop")
    if HINT == 0: a(f"ds_write_b32 v{VFL}, v15 offset:64")
    else: a("s_nop 0")
    pv(3, V2(3), P1)
    if "Z" in ABL: a("s_memrealtime s[10:11]")
    if STAMPS and not SB and not SP: a("s_memtime s[6:7]")
    for i in range(3):
        a(f"ds_write_b128 v{VCW}, {vr(O(2)+4*i,4)} offset:{1024*i}")
    a("s_nop 9")
    for i in range(3):
        a(f"ds_write_b128 v{VCW}, {vr(O(3)+4*i,4)} offset:{4096+1024*i}")
    a("s_waitcnt lgkmcnt(0)")
    a(f"ds_write_b32 v{VFL}, v15 offset:16")
    a("L_apoll:")
    a(f"ds_read_b32 v2, v{VFR} offset:16")
    a("s_waitcnt lgkmcnt(0)")
    a(f"v_readfirstlane_b32 s{T0}, v2")
    a("s_nop 0")
    a(f"s_cmp_eq_u32 s{T0}, 1")
    a(f"s_cbranch_scc0 L_apoll")
    for q in range(2):
        for i in range(3):
            a(f"ds_read_b128 {vr(O(2+q)+4*i,4)}, v{VCR} offset:{4096*q+1024*i}")
    for q in range(2):
        a(f"s_waitcnt lgkmcnt({3-3*q})")
        for j in range(0, 12, 2):
            a(f"v_pk_add_f32 {vr(O(q)+j,2)}, {vr(O(q)+j,2)}, {vr(O(2+q)+j,2)}")
    def get_l():
        for q in range(2):
            a(f"v_mov_b32 v{4+2*q}, v{O(q)+8}")
            a(f"v_mov_b32 v{5+2*q}, v{O(q)+8}")
        a("s_nop 0")
        for q in range(2):
            a(f"v_permlane32_swap_b32 v{5+2*q}, v{4+2*q}")
    get_l()
    a(f"v_mov_b32 v2, 0")
    a(f"v_mov_b32 v3, 0")
    a(f"v_mov_b32 v8, 0")
    for q in range(2):
        for j in range(0, 12, 2):
            a(f"v_pk_fma_f32 v[2:3], {vr(O(q)+j,2)}, v[8:9], v[2:3] op_sel_hi:[1,0,1]")
    a(f"v_min_f32 v10, v4, v6")
    a(f"v_max_f32 v11, v4, v6")
    a(f"v_fmac_f32 v2, 0, v4")
    a(f"v_fmac_f32 v3, 0, v6")
    a(f"v_cmp_le_f32 vcc, 0x1f800000, v10")
    a(f"s_mov_b64 s[{T0}:{T1}], vcc")
    a(f"v_cmp_ge_f32 vcc, 0x5f800000, v11")
    a(f"s_and_b64 s[{T0}:{T1}], s[{T0}:{T1}], vcc")
    a(f"v_cmp_o_f32 vcc, v2, v3")
    a(f"s_and_b64 s[{T0}:{T1}], s[{T0}:{T1}], vcc")
    a(f"s_cmp_eq_u64 s[{T0}:{T1}], exec")
    a("s_branch L_fb" if force_fallback else "s_cbranch_scc0 L_fb")
    a("L_norm:")
    for q in range(2):
        a(f"v_rcp_f32 v{4+2*q}, v{4+2*q}")
    a("s_nop 0")
    for q in range(2):
        for j in range(0, 12, 2):
            a(f"v_pk_mul_f32 {vr(O(q)+j,2)}, {vr(O(q)+j,2)}, {vr(4+2*q,2)} op_sel_hi:[1,0]")
    A_, B_ = O(0), O(1)
    def cvs(d, x):
        a(f"v_cvt_pk_bf16_f32 v{d}, v{x}, v{x+1}")
    for k in range(4): cvs(A_+k, A_+2*k)
    for k in range(4): a(f"v_min_u32 v{A_+k}, -2, v{A_+k}")
    for k in (4, 5): cvs(A_+k, A_+2*k)
    a(f"v_permlane32_swap_b32 v{A_}, v{A_+2}")
    a(f"v_permlane32_swap_b32 v{A_+1}, v{A_+3}")
    cvs(A_+6, B_); cvs(A_+7, B_+2)
    a(f"buffer_store_dwordx4 {vr(A_,4)}, v{VL16}, s[{SWS}:{SWS+3}], s{S_OO} offen sc1")
    cvs(B_, B_+4); cvs(B_+1, B_+6); cvs(B_+4, B_+8); cvs(B_+5, B_+10)
    for r in (A_+4, A_+5, A_+6, A_+7, B_, B_+1, B_+4, B_+5):
        a(f"v_min_u32 v{r}, -2, v{r}")
    a(f"v_cndmask_b32 v{A_+4}, v{A_+4}, v{A_+6}, s[{S_UP}:{S_UP+1}]")
    a(f"v_cndmask_b32 v{A_+5}, v{A_+5}, v{A_+7}, s[{S_UP}:{S_UP+1}]")
    a(f"v_permlane32_swap_b32 v{A_+6}, v{B_}")
    a(f"v_permlane32_swap_b32 v{A_+7}, v{B_+1}")
    a(f"v_permlane32_swap_b32 v{B_+2}, v{B_+4}")
    a(f"v_permlane32_swap_b32 v{B_+3}, v{B_+5}")
    a(f"buffer_store_dwordx4 {vr(A_+4,4)}, v{VL16}, s[{SWS}:{SWS+3}], s{S_OO} offen offset:1024 sc1")
    a("s_mov_b32 exec_lo, 0")
    a(f"buffer_store_dwordx4 {vr(B_,4)}, v{VL16}, s[{SWS}:{SWS+3}], s{S_OO} offen offset:1536 sc1")
    a("s_mov_b64 exec, -1")
    if HINT: a(f"ds_write_b32 v{VFL}, v15 offset:64")
    endpgm(a, 0)
    a("L_fb:")
    a("s_waitcnt vmcnt(0)")
    a(f"v_mov_b32 v4, 0xff800000")
    a(f"v_mov_b32 v5, 0xff800000")
    a(f"s_mov_b32 s{S_KV}, {KVF_OFF}")
    a(f"s_mov_b32 s{S_IT}, 0")
    a("L_fb1:")
    load_kv(0)
    a("s_waitcnt vmcnt(0)")
    for q in range(2):
        qk1(q, 0, q); qk2(q, 0, q)
    a("s_nop 15")
    for q in range(2):
        for j in range(0, 16, 2):
            a(f"v_max3_f32 v{4+q}, v{S(q)+j}, v{S(q)+j+1}, v{4+q}")
    a(f"s_add_u32 s{S_IT}, s{S_IT}, 1")
    a(f"s_cmp_lt_u32 s{S_IT}, 64")
    a(f"s_cbranch_scc1 L_fb1")
    for q in range(2):
        a(f"v_mov_b32 v6, v{4+q}")
        a("s_nop 1")
        a(f"v_permlane32_swap_b32 v6, v{4+q}")
        a("s_nop 1")
        a(f"v_max_f32 v6, v6, v{4+q}")
        a(f"v_sub_f32 v6, 0, v6")
        a(f"v_cvt_pk_bf16_f32 v7, v6, v6")
        a(f"v_lshlrev_b32 v7, 16, v7")
        a(f"v_sub_f32 v8, v6, v7")
        a(f"v_cvt_pk_bf16_f32 v7, v7, v8")
        a(f"v_cndmask_b32 v{Q2(q)}, v{Q2(q)}, v7, s[{S_UP}:{S_UP+1}]")
        for j in range(16):
            a(f"v_mov_b32 v{O(q)+j}, 0")
    a(f"s_mov_b32 s{S_KV}, {KVF_OFF}")
    a(f"s_mov_b32 s{S_IT}, 0")
    a("v_mov_b32 v9, 0x3f803f80")
    a("L_fb2:")
    load_kv(0)
    a("s_waitcnt vmcnt(0)")
    a(f"v_cndmask_b32 v{K2(0)}, v{K2(0)}, v9, s[{S_UP}:{S_UP+1}]")
    a("s_nop 1")
    for q in range(2):
        qk1(q, 0, q); qk2(q, 0, q)
    a("s_nop 15")
    for q in range(2):
        for i0 in range(0, 16, 4): E(q, i0)
        a("s_nop 0")
        for k in range(4): C(P0+k, q, 2*k)
        for k in range(4): C(P1+k, q, 8+2*k)
        a("s_nop 1")
        pv(q, V1(0), P0); pv(q, V2(0), P1)
    a(f"s_add_u32 s{S_IT}, s{S_IT}, 1")
    a(f"s_cmp_lt_u32 s{S_IT}, 64")
    a(f"s_cbranch_scc1 L_fb2")
    a("s_nop 15")
    get_l()
    a("s_nop 1")
    a("s_branch L_norm")
    a("L_end:")
    a("s_endpgm")
    if QORD:
        L = a.lines
        ix = lambda t: [i for i, l in enumerate(L) if l.strip() == t][0]
        b0 = ix("s_cbranch_scc0 L_q_l") + 1; c0 = ix("L_q_l:"); d0 = ix("L_p0_h:"); e0 = ix("s_cbranch_scc0 L_q_rd") + 1
        f0 = ix("L_stats:"); g0 = ix("L_q_rd:"); h0 = ix("L_p2:")
        A, B, C, D, E, F, G, H = L[:b0], L[b0:c0], L[c0:d0], L[d0:e0], L[e0:f0], L[f0:g0], L[g0:h0], L[h0:]
        A[-1] = "    s_cbranch_scc1 L_g_l"; D[-1] = "    s_cbranch_scc1 L_g_rd"
        a.lines = A + C + D + G + ["    s_branch L_p2"] + F + ["L_g_l:"] + B + ["L_g_rd:"] + E + H
    return a, kernel_desc(name, 256)

DOC = """; ---------------------------------------------------------------------------------------------
;         with the true row maximum subtracted (L_fb).
; ---------------------------------------------------------------------------------------------
"""

def build(force_fallback=False):
    hdr = open("cdna_kernels/%s.s.ref" % NAME).read().split("\n")
    hdr = [l for l in hdr if l.startswith(";") and "@launch" not in l and "Override" not in l and "grid=ceil" not in l]
    body, desc = gen(NAME + "_kernel", force_fallback)
    out = "\n".join(hdr) + "\n"
    out += f"; @launch grid=(256,1,1) block=(512,1,1) lds={LDS_BYTES}\n"
    out += '.amdgcn_target "amdgcn-amd-amdhsa--gfx950"\n'
    out += DOC
    out += '.text\n'
    out += body.text()
    out += '.section .rodata,"a"\n' + desc
    return out

if __name__ == "__main__":
    out = sys.argv[1] if len(sys.argv) > 1 else "cdna_kernels/%s.s" % NAME
    open(out, "w").write(build("fb" in sys.argv[2:]))
    print("wrote", out)
```

```python
from common import *
import math, sys

STF_OFF = 0x2F0000
QFL_OFF, HFL_OFF = 0x2D0000, 0x2D4000
MBX_OFF = 0x2D0000
EPOCH_OFF = 0x2FF000
OFL_OFF = 0x2F8000
STG = 49408
RING = 6
RSZ = RING * 5120
CB_OFF = 4 * RSZ
CS_OFF = CB_OFF
ST_OFF = 3 * STG
VT_OFF = CB_OFF + 8192
FL_OFF = CB_OFF + 32768
LDS_BYTES = FL_OFF + 256
G_OFF, U_REL = 32768, 8256
KVS = 2688 if os.environ.get("KVC", "1") == "1" else 3584
QSCALE = math.log2(math.e) / math.sqrt(20.0)
SPIN_MAX = 1 << 18
ABL = os.environ.get("ABL", "")
SB = "B" in ABL
SP = "P" in ABL
PACE = int(os.environ.get("PACE", "2"))
PRE0 = int(os.environ.get("PRE0", "0"))
LATEH = int(os.environ.get("LATEH", "1"))
PGT = int(os.environ.get("PGT", "0"))
QF1 = int(os.environ.get("QF1", "1"))
PD = int(os.environ.get("PD", "6"))
PW1 = int(os.environ.get("PW1", "2"))
DBA = int(os.environ.get("DBA", "0"))
KVW = int(os.environ.get("KVW", "8"))
LPRIO = int(os.environ.get("LPRIO", "0"))
COAL = int(os.environ.get("COAL", "1"))
GENTLE = int(os.environ.get("GENTLE", "1"))
TW = [int(x) for x in os.environ.get("TW", "").split(",") if x]
S0H = int(os.environ.get("S0H", "0"))
CPF = int(os.environ.get("CPF", "4"))
QORD = int(os.environ.get("QORD", "1"))
PW2 = int(os.environ.get("PW2", "99"))
ERS = [int(x) for x in os.environ.get("ERS", "8").split(",") if x]
ER = len(ERS)
A3 = int(os.environ.get("A3", "2"))
AUN = int(os.environ.get("AUN", "1"))
KVC = int(os.environ.get("KVC", "1"))
HINT = int(os.environ.get("HINT", "2"))
RSL = int(os.environ.get("RSL", "4"))

S_W = 3
SX, SWS, SDBG, SA, SB2, SC, SD = 40, 44, 48, 52, 56, 60, 88
S_TH, S_CG, S_IDX, S_WQ, S_ISH, S_TB, S_G, S_TOK = 64, 65, 66, 67, 68, 69, 70, 71
T0, T1, T2, T3, T4, T5 = 72, 73, 74, 75, 76, 77
S_I, S_DB, S_RB, S_OX, S_OW, S_O2, S_O3, S_ST2 = 78, 79, 80, 81, 82, 83, 84, 85
S_EARLY, S_COL = 86, 87
S_UP = 92
S_MBX, S_ROT, S_MH, S_DL = 99, 100, 101, 98
S_NON = 79
S_OO = 56
S_OFL, S_KV, S_H0, S_K2 = 52, 53, 54, 55
VL, VT, VH, VL16, VL8, VF, VFL = 250, 251, 252, 253, 254, 249, 248
VLV = 0
VZ = 244
FBASE = [32, 48, 128, 144]
CSA = 26

def gen(name, force_fallback=False):
    a = Asm()
    kernel_begin(a, name)
    uid = [0]
    def lab(s):
        uid[0] += 1
        return f"L{uid[0]}_{s}"
    def emit(ch):
        for c in ch:
            for l in c: a(l)
    def lds_set(idx):
        a(f"v_mov_b32 v2, {FL_OFF + 4*idx}")
        a(f"v_mov_b32 v3, 1")
        a(f"ds_write_b32 v2, v3")
    def lds_wait(idx, n=1, sleep=1):
        L = lab("lw")
        a(f"v_mov_b32 v2, {FL_OFF + 4*idx}")
        a(f"{L}:")
        if n == 1:
            a("ds_read_b32 v4, v2")
            a("s_waitcnt lgkmcnt(0)")
        else:
            a("ds_read_b128 v[4:7], v2")
            if n == 8: a("ds_read_b128 v[8:11], v2 offset:16")
            a("s_waitcnt lgkmcnt(0)")
            a("v_bitop3_b32 v4, v4, v5, v6 bitop3:0x80")
            if n == 8:
                a("v_bitop3_b32 v8, v8, v9, v10 bitop3:0x80")
                a("v_bitop3_b32 v4, v4, v8, v11 bitop3:0x80")
            a("v_and_b32 v4, v4, v7")
            a("s_nop 0")
        a(f"v_readfirstlane_b32 s{T4}, v4")
        a("s_nop 0")
        a(f"s_cmp_eq_u32 s{T4}, 1")
        a(f"s_cbranch_scc1 {L}_d")
        a(f"s_sleep {sleep}")
        a(f"s_branch {L}")
        a(f"{L}_d:")
    def mbx_load(line):
        if line == 0:
            a(f"s_lshr_b32 s{T1}, s{S_TB}, 2")
            a(f"s_lshl_b32 s{T1}, s{T1}, 9")
            a(f"v_and_b32 v2, 3, v{VL}")
            a(f"v_lshl_add_u32 v2, v2, 7, s{T1}")
            a(f"v_and_b32 v3, 15, v{VL}")
            a(f"v_lshlrev_b32 v3, 9, v3")
            a(f"v_add_u32 v3, 384, v3")
            a(f"s_mov_b32 s{T0}, {QFL_OFF}")
            a(f"v_cndmask_b32 v2, v3, v2, s[{S_UP}:{S_UP+1}]")
        else:
            a(f"s_and_b32 s{T0}, s2, 7")
            a(f"s_lshl_b32 s{T0}, s{T0}, 12")
            a(f"s_add_u32 s{T0}, s{T0}, {HFL_OFF}")
            a(f"s_lshl_b32 s{T1}, s{S_TB}, 7")
            a(f"s_add_u32 s{T1}, s{T1}, {OFL_OFF}")
            a(f"s_sub_u32 s{T1}, s{T1}, s{T0}")
            a(f"v_and_b32 v2, 15, v{VL}")
            a(f"v_lshl_add_u32 v2, v2, 2, s{T1}")
            a(f"v_min_u32 v3, 23, v{VL}")
            a(f"v_lshlrev_b32 v3, 7, v3")
            a(f"v_cndmask_b32 v2, v3, v2, s[{S_UP}:{S_UP+1}]")
        a(f"buffer_load_dword v{VF}, v2, s[{SWS}:{SWS+3}], s{T0} offen sc1")
    def mbx_test():
        a(f"v_cmp_ne_u32 vcc, s{S_NON}, v{VF}")
        a("s_cmp_eq_u64 vcc, 0")
    def mbx_wait(line, sleep):
        L, D = lab("spin"), lab("done")
        a(f"s_mov_b32 s{T5}, 0")
        mbx_load(line)
        a(f"{L}:")
        a(f"s_add_u32 s{T5}, s{T5}, 1")
        a("s_waitcnt vmcnt(0)")
        mbx_test()
        a(f"s_cbranch_scc1 {D}")
        a(f"s_sleep {sleep}")
        a(f"buffer_load_dword v{VF}, v2, s[{SWS}:{SWS+3}], s{T0} offen sc1")
        a(f"s_cmp_lt_u32 s{T5}, {SPIN_MAX}")
        a(f"s_cbranch_scc1 {L}")
        a(f"{D}:")
    def zero_mfma(dst, z):
        a(f"v_mfma_f32_32x32x16_bf16 {vr(dst,16)}, {vr(z,4)}, {vr(z,4)}, 0")

    O = lambda q: [32, 48, 128, 144][q]
    S = lambda p: 64 + 16*p
    P0, P1 = 96, 100
    Q1 = lambda q: 168 + 4*q
    Q2 = lambda q: 184 + 2*q
    KVB = lambda r: 192 + 14*r
    K1 = lambda r: KVB(r); V1 = lambda r: KVB(r)+4; V2 = lambda r: KVB(r)+8; K2 = lambda r: KVB(r)+12
    VCW, VCR, VCW4, VCR4, VFR = 22, 23, 24, 25, 255
    VD = [168, 169, 170, 171, 172]
    VAR, VAR2, VR0, VR1, VXO, VRW = 173, 174, 175, 176, 177, 178
    VX = [22, 23]; VW, VW2, VW3 = 24, 25, 190

    KQ = S_WQ
    S_OA, S_OB, S_M, S_IT, S_RT = 78, 82, 80, 81, 83
    VARB, VAR2B = 164, 165
    def l_prelude():
        return [f"s_mov_b32 s{SA}, s{P_WD}", f"s_mov_b32 s{SA+1}, s{P_WD+1}", f"s_mov_b32 s{SA+2}, {1536*1280}", f"s_mov_b32 s{SA+3}, 0x00020000",
                f"s_mul_i32 s{S_OA}, s{KQ}, {24*16*1280}", f"s_mul_i32 s{S_M}, s{KQ}, 5120", f"s_and_b32 s{S_RT}, s{S_TB}, 3",
                f"s_mul_i32 s{T2}, s{S_RT}, {6*16*1280}", f"s_add_u32 s{S_OA}, s{S_OA}, s{T2}"]
    def dma_a_list(slot):
        o = [[f"s_add_u32 m0, s{S_M}, {slot*20480}", f"s_add_u32 s{T2}, s{S_M}, {slot*20480+4096}",
              f"buffer_load_dwordx4 v{VD[0]}, s[{SA}:{SA+3}], s{S_OA} offen lds"]]
        for j in range(1, 4):
            o.append([f"buffer_load_dwordx4 v{VD[j]}, s[{SA}:{SA+3}], s{S_OA} offen offset:{1024*j} lds"])
        o.append([f"s_mov_b32 m0, s{T2}", "s_nop 0", f"buffer_load_dwordx4 v{VD[4]}, s[{SA}:{SA+3}], s{S_OA} offen lds", f"s_add_u32 s{S_OA}, s{S_OA}, {16*1280}"])
        return o
    def dma_a(slot): emit(dma_a_list(slot))
    a("s_cmp_ge_u32 s2, 256")
    a("s_cbranch_scc1 L_end")
    load_kernargs(a)
    a(f"s_getpc_b64 s[{T0}:{T1}]")
    a("L_pc:")
    if CPF == 0:
        a(f"v_lshlrev_b32 v1, 7, v0")
    else:
        a(f"s_lshr_b32 s{T2}, s2, 3")
        a(f"s_and_b32 s{T2}, s{T2}, {CPF-1}")
        a(f"s_mul_i32 s{T2}, s{T2}, {49152//CPF}")
        a(f"v_subrev_u32 v1, {512 - 384//CPF}, v0")
        a(f"v_cmp_gt_u32 vcc, {384//CPF}, v1")
        a(f"v_lshl_add_u32 v1, v1, 7, s{T2}")
        a("s_nop 0")
        a(f"v_cndmask_b32 v1, 0, v1, vcc")
    a(f"v_min_u32 v1, L_end-L_pc, v1")
    a(f"global_load_dword v{VF}, v1, s[{T0}:{T1}]")
    a("v_lshrrev_b32 v1, 6, v0")
    a(f"v_and_b32 v{VL}, 63, v0")
    a(f"v_readfirstlane_b32 s{S_W}, v1")
    a(f"s_and_b32 s{T0}, s2, 7")
    a(f"s_lshr_b32 s{S_IDX}, s2, 3")
    if QF1:
        a(f"s_add_u32 s{S_IDX}, s{S_IDX}, 24")
        a(f"s_and_b32 s{S_IDX}, s{S_IDX}, 31")
    a(f"s_and_b32 s{S_TH}, s{T0}, 1")
    a(f"s_lshr_b32 s{S_CG}, s{T0}, 1")
    a(f"s_and_b32 s{S_WQ}, s{S_W}, 3")
    a(f"s_lshr_b32 s{S_ISH}, s{S_W}, 2")
    a(f"s_lshl_b32 s{S_TOK}, s{S_TH}, 2")
    a(f"s_and_b32 s{T1}, s{S_IDX}, 3")
    a(f"s_add_u32 s{S_TOK}, s{S_TOK}, s{T1}")
    a(f"s_lshl_b32 s{S_TOK}, s{S_TOK}, 8")
    a(f"s_mul_i32 s{S_COL}, s{S_CG}, 6")
    a(f"s_lshr_b32 s{T1}, s{S_IDX}, 2")
    a(f"s_add_u32 s{S_COL}, s{S_COL}, s{T1}")
    a(f"s_lshl_b32 s{T1}, s{S_TH}, 3")
    a(f"s_add_u32 s{T1}, s{T1}, s{S_IDX}")
    a(f"s_sub_u32 s{T1}, s{T1}, 24")
    a(f"s_lshl_b32 s{T1}, s{T1}, 7")
    a(f"s_cmp_lt_u32 s{S_IDX}, 24")
    a(f"s_cselect_b32 s{S_TOK}, s{S_TOK}, s{T1}")
    a(f"s_cselect_b32 s{S_COL}, s{S_COL}, s{S_CG}")
    a(f"s_cselect_b32 s{T1}, 6, 5")
    a(f"v_and_b32 v{VT}, 31, v0")
    a(f"v_bfe_u32 v{VH}, v0, 5, 1")
    if not S0H:
        a(f"s_cmp_lg_u32 s{S_ISH}, 0")
        a(f"s_cbranch_scc1 L_p0_h")
    a(f"v_lshrrev_b32 v1, 3, v{VL}")
    a(f"v_lshrrev_b32 v2, 4, v{VL}")
    a(f"v_and_b32 v4, 7, v{VL}")
    a(f"v_xor_b32 v3, v2, v4")
    a(f"s_lshl_b32 s{T2}, s{S_WQ}, s{T1}")
    a(f"s_add_u32 s{T2}, s{T2}, s{S_TOK}")
    a(f"v_add_u32 v5, s{T2}, v1")
    a(f"v_mul_u32_u24 v5, 1280, v5")
    a(f"v_lshl_add_u32 v{VX[0]}, v3, 4, v5")
    a(f"v_xor_b32 v3, 4, v3")
    a(f"v_lshl_add_u32 v{VX[1]}, v3, 4, v5")
    S_MX, S_MW = S_OX, S_RB
    S_RX, S_RW = 86, 99
    a(f"s_mul_i32 s{T2}, s{S_IDX}, 3")
    a(f"s_mul_i32 s{T3}, s{T2}, 205")
    a(f"s_lshr_b32 s{T3}, s{T3}, 11")
    a(f"s_mul_i32 s{T3}, s{T3}, 10")
    a(f"s_sub_u32 s{S_RW}, s{T2}, s{T3}")
    if "0" not in ABL: a(f"s_mov_b32 s{S_RW}, 0")
    if "1" not in ABL and "0" not in ABL:
        a(f"s_lshr_b32 s{T2}, s{S_IDX}, 2")
        a(f"s_xor_b32 s{T2}, s{T2}, s{S_IDX}")
        a(f"s_and_b32 s{T2}, s{T2}, 1")
        a(f"s_mul_i32 s{S_RW}, s{T2}, 5")
    S_RX = 82
    a(f"s_lshl_b32 s{S_RX}, s{S_RW}, 7")
    a(f"s_cmp_lt_u32 s{S_IDX}, 24")
    a(f"s_cbranch_scc0 L_q_l")
    a(f"v_and_b32 v2, 1, v2")
    a(f"v_lshlrev_b32 v2, 1, v2")
    a(f"v_xor_b32 v4, v4, v2")
    a(f"s_lshl_b32 s{T2}, s{S_WQ}, 4")
    a(f"v_add_u32 v1, s{T2}, v1")
    a(f"v_mul_u32_u24 v1, 3072, v1")
    a(f"v_lshl_add_u32 v1, v4, 4, v1")
    a(f"s_lshl_b32 s{T2}, s{S_COL}, 7")
    a(f"v_add_u32 v{VW}, s{T2}, v1")
    a(f"s_lshl_b32 s{S_MX}, s{S_WQ}, 13")
    a(f"s_lshl_b32 s{S_MW}, s{S_WQ}, 11")
    a(f"s_mul_i32 s{S_RW}, s{S_RW}, {64*3072}")
    a("s_waitcnt lgkmcnt(0)")
    make_srd(a, SX, P_X, 2048*1280)
    make_srd(a, SA, P_WG, 640*3072)
    make_srd(a, SB2, P_WU, 640*3072)
    if TW:
        make_srd(a, SC, P_WO, 640*1280)
        a(f"v_lshlrev_b32 v190, 7, v{VL}")
    def dma_gu(st):
        db = ((st + 2) % 3) * STG
        ch = []
        for j in (0, 1, 2, 3, 8, 9, 4, 5, 6, 7, 10, 11):
            c = []
            if j < 8:
                if j in (0, 4):
                    c += [f"s_add_u32 m0, s{S_MX}, {db + 4096*(j>>2)}"]
                c += [f"s_add_u32 s{T3}, s{S_RX}, {j*10240 - 1024*(j&3)}",
                      f"buffer_load_dwordx4 v{VX[j&1]}, s[{SX}:{SX+3}], s{T3} offen offset:{1024*(j&3)} lds"]
            else:
                srd = SA if j < 10 else SB2
                if j in (8, 10):
                    c += [f"s_add_u32 m0, s{S_MW}, {db + G_OFF + (U_REL if j == 10 else 0)}"]
                c += [f"s_add_u32 s{T3}, s{S_RW}, {(j&1)*(8*3072-1024)}",
                      f"buffer_load_dwordx4 v{VW}, s[{srd}:{srd+3}], s{T3} offen offset:{1024*(j&1)} lds"]
                if j == 11:
                    c += [f"s_add_u32 s{S_RX}, s{S_RX}, 128", f"s_add_u32 s{S_RW}, s{S_RW}, {64*3072}", f"s_cmp_eq_u32 s{S_RX}, 1280",
                          f"s_cselect_b32 s{S_RX}, 0, s{S_RX}", f"s_cselect_b32 s{S_RW}, 0, s{S_RW}"]
            ch.append(c)
        return ch
    if SP: stamp(a, 1)
    if S0H:
        ch0 = dma_gu(0)
        upd0, ch0[-1] = ch0[-1][-5:], ch0[-1][:-5]
        a(f"s_cmp_lg_u32 s{S_ISH}, 0")
        a(f"s_cbranch_scc1 L_s0h_g")
        emit(ch0[:6] + [upd0])
        a("s_branch L_common")
        a("L_s0h_g:")
        emit(ch0[6:])
        a("s_branch L_p0_h")
    else:
        emit(dma_gu(0))
    if SP: stamp(a, 2)
    a("s_branch L_common")
    a("L_q_l:")
    EX1, EX2, S_M2 = 60, 62, 79
    a(f"s_cmp_eq_u32 s{S_COL}, 3")
    a(f"s_cselect_b32 s{T0}, 40, 1280")
    a(f"s_lshl_b32 s{S_ST2}, s{T0}, 6")
    a(f"v_and_b32 v2, 1, v2")
    a(f"v_lshlrev_b32 v2, 2, v2")
    a(f"v_xor_b32 v4, v4, v2")
    a(f"s_lshl_b32 s{T1}, s{S_WQ}, 4")
    a(f"v_add_u32 v1, s{T1}, v1")
    a(f"v_mul_u32_u24 v3, 1280, v1")
    a(f"v_lshl_add_u32 v3, v4, 4, v3")
    a(f"s_mul_i32 s{T2}, s{S_COL}, 384")
    a(f"v_add_u32 v{VW}, s{T2}, v3")
    a(f"v_add_u32 v{VW2}, 128, v{VW}")
    a(f"v_add_u32 v{VW3}, 256, v{VW}")
    a(f"s_lshl_b32 s{S_MX}, s{S_WQ}, 12")
    a(f"s_lshl_b32 s{S_MW}, s{S_WQ}, 11")
    a(f"s_add_u32 s{S_M2}, s{S_MW}, 8192")
    a(f"s_mov_b64 s[{EX1}:{EX1+1}], -1")
    a(f"s_mov_b64 s[{EX2}:{EX2+1}], -1")
    a(f"s_mul_i32 s{S_O2}, s{S_RW}, s{S_ST2}")
    a(f"s_mul_i32 s{S_RW}, s{S_RW}, {64*1280}")
    a(f"s_lshr_b32 s{S_O3}, s{S_ST2}, 3")
    a(f"s_sub_u32 s{S_O3}, s{S_O3}, 1024")
    a("s_waitcnt lgkmcnt(0)")
    make_srd(a, SX, P_X, 2048*1280)
    for r in (SA, SB2, SD):
        make_srd(a, r, P_WQ, 640*1280)
    a(f"s_cmp_eq_u32 s{S_COL}, 3")
    a(f"s_cbranch_scc0 L_q_l1")
    a(f"s_mov_b64 s[{SB2}:{SB2+1}], s[{P_WK}:{P_WK+1}]")
    a(f"s_mov_b64 s[{SD}:{SD+1}], s[{P_WV}:{P_WV+1}]")
    a(f"s_mov_b32 s{SB2+2}, {640*40}")
    a(f"s_mov_b32 s{SD+2}, {640*40}")
    a(f"s_mov_b32 s{S_M2}, s{S_MW}")
    a(f"v_mul_u32_u24 v3, 40, v1")
    a(f"v_and_b32 v2, 3, v4")
    a(f"v_lshl_add_u32 v{VW2}, v2, 4, v3")
    a(f"v_mov_b32 v{VW3}, v{VW2}")
    a(f"v_cmp_gt_u32 s[{EX1}:{EX1+1}], 4, v4")
    a(f"v_cmp_le_u32 s[{EX2}:{EX2+1}], 4, v4")
    a("L_q_l1:")
    def dma_q(st):
        db = (st % 3) * STG
        ch = []
        for j in range(4):
            c = []
            if j == 0:
                c += [f"s_add_u32 m0, s{S_MX}, {db}"]
            c += [f"s_add_u32 s{T3}, s{S_RX}, {j*(10240-1024)}",
                  f"buffer_load_dwordx4 v{VX[j&1]}, s[{SX}:{SX+3}], s{T3} offen offset:{1024*j} lds"]
            ch.append(c)
        ch.append([f"s_add_u32 m0, s{S_MW}, {db + 16384}", f"s_add_u32 s{T3}, s{S_RW}, {8*1280-1024}",
                   f"buffer_load_dwordx4 v{VW}, s[{SA}:{SA+3}], s{S_RW} offen lds"])
        ch.append([f"buffer_load_dwordx4 v{VW}, s[{SA}:{SA+3}], s{T3} offen offset:1024 lds"])
        for sm, srd, vo, ex in ((S_MW, SB2, VW2, EX1), (S_M2, SD, VW3, EX2)):
            ch.append([f"s_add_u32 m0, s{sm}, {db + 16384 + 8192}", f"s_mov_b64 exec, s[{ex}:{ex+1}]",
                       f"buffer_load_dwordx4 v{vo}, s[{srd}:{srd+3}], s{S_O2} offen lds", "s_mov_b64 exec, -1"])
            ch.append([f"s_add_u32 m0, s{sm}, {db + 16384 + 8192 + 1024}", f"s_add_u32 s{T3}, s{S_O2}, s{S_O3}", f"s_add_u32 s{T3}, s{T3}, 1024", f"s_mov_b64 exec, s[{ex}:{ex+1}]",
                       f"buffer_load_dwordx4 v{vo}, s[{srd}:{srd+3}], s{T3} offen lds", "s_mov_b64 exec, -1"])
        ch[-1] += [f"s_add_u32 s{S_RX}, s{S_RX}, 128", f"s_add_u32 s{S_RW}, s{S_RW}, {64*1280}", f"s_add_u32 s{S_O2}, s{S_O2}, s{S_ST2}", f"s_cmp_eq_u32 s{S_RX}, 1280",
                   f"s_cselect_b32 s{S_RX}, 0, s{S_RX}", f"s_cselect_b32 s{S_RW}, 0, s{S_RW}", f"s_cselect_b32 s{S_O2}, 0, s{S_O2}"]
        return ch
    if SP: stamp(a, 1)
    if S0H:
        ch0 = dma_q(0)
        upd0, ch0[-1] = ch0[-1][-7:], ch0[-1][:-7]
        a(f"s_cmp_lg_u32 s{S_ISH}, 0")
        a(f"s_cbranch_scc1 L_s0h_q")
        emit(ch0[:6] + [upd0])
        a("s_branch L_common")
        a("L_s0h_q:")
        emit(ch0[6:])
        a("s_branch L_p0_h")
    else:
        emit(dma_q(0))
    if SP: stamp(a, 2)
    a("s_branch L_common")

    a("L_p0_h:")
    a(f"s_lshl_b32 s{T0}, s2, 3")
    a(f"s_lshl_b32 s{T1}, s{S_WQ}, 1")
    a(f"s_add_u32 s{T0}, s{T0}, s{T1}")
    a(f"v_add_u32 v4, s{T0}, v{VH}")
    a(f"v_mul_u32_u24 v5, 1280, v4")
    a(f"v_lshl_add_u32 v5, v{VT}, 3, v5")
    a(f"v_lshlrev_b32 v255, 3, v4")
    a(f"v_mov_b32 v242, 0")
    a(f"s_mov_b32 s{T1}, {EPOCH_OFF}")
    a("s_waitcnt lgkmcnt(0)")
    make_srd(a, SX, P_X, 2048*1280)
    make_srd(a, SWS, P_WS, WS_SIZE)
    a(f"buffer_load_dword v203, v242, s[{SWS}:{SWS+3}], s{T1} offen sc1")
    for j in range(5):
        a(f"buffer_load_dwordx2 {vr(192+2*j,2)}, v5, s[{SX}:{SX+3}], 0 offen offset:{256*j}")

    if PGT:
        make_srd(a, SD, P_OUT, 2048*1280)
        a(f"s_cmp_eq_u32 s{S_WQ}, 1")
        a(f"s_cselect_b64 s[{SD}:{SD+1}], s[{P_WD}:{P_WD+1}], s[{SD}:{SD+1}]")
        a(f"s_cselect_b32 s{SD+2}, {1536*1280}, s{SD+2}")
        a(f"s_cmp_eq_u32 s{S_WQ}, 2")
        a(f"s_cselect_b64 s[{SD}:{SD+1}], s[{P_WO}:{P_WO+1}], s[{SD}:{SD+1}]")
        a(f"s_cselect_b32 s{SD+2}, {640*1280}, s{SD+2}")
        a(f"s_cmp_eq_u32 s{S_WQ}, 3")
        a(f"s_cselect_b64 s[{SD}:{SD+1}], s[{P_WS}:{P_WS+1}], s[{SD}:{SD+1}]")
        a(f"s_cselect_b32 s{SD+2}, {0xC00000}, s{SD+2}")
        a(f"v_lshlrev_b32 v1, 19, v{VL}")
        a(f"s_lshl_b32 s{T0}, s2, 7")
        a(f"buffer_load_dword v246, v1, s[{SD}:{SD+3}], s{T0} offen")

    a("L_common:")
    make_srd(a, SWS, P_WS, WS_SIZE)
    make_srd(a, SDBG, P_DBG, 256)
    a(f"s_and_b32 s{S_MH}, s{S_W}, 1")
    a(f"s_lshr_b32 s{S_ROT}, s{S_W}, 1")
    a(f"s_mov_b32 s{S_UP}, 0")
    a(f"s_mov_b32 s{S_UP+1}, -1")
    a(f"v_lshlrev_b32 v{VL16}, 4, v{VL}")
    a(f"v_bfe_u32 v1, v{VT}, 1, 3")
    a(f"v_xor_b32 v1, v1, v{VH}")
    a(f"s_lshl_b32 s{T1}, s{S_ROT}, 1")
    a(f"v_xor_b32 v1, s{T1}, v1")
    a(f"v_lshlrev_b32 v2, 7, v{VT}")
    a(f"s_cmp_lt_u32 s{S_IDX}, 24")
    a(f"s_cselect_b32 s{T0}, 13, 12")
    a(f"s_lshl_b32 s{T0}, s{S_ROT}, s{T0}")
    a(f"v_add_u32 v2, s{T0}, v2")
    VB = lambda sg: 18 + sg
    for sg in range(4):
        a(f"v_xor_b32 v3, {2*sg}, v1")
        a(f"v_lshl_add_u32 v{VB(sg)}, v3, 4, v2")
    for r in range(CSA, CSA+6):
        a(f"v_mov_b32 v{r}, 0")
    a(f"s_and_b32 s{T0}, s2, 7")
    a(f"s_lshl_b32 s{S_TB}, s{T0}, 3")
    a(f"s_and_b32 s{T1}, s{S_IDX}, 7")
    a(f"s_add_u32 s{S_TB}, s{S_TB}, s{T1}")
    a(f"s_lshr_b32 s{S_G}, s{S_IDX}, 3")
    a(f"s_mov_b32 s{S_EARLY}, 0")
    a(f"s_mov_b32 s{S_DL}, {STG}")
    a(f"s_mov_b32 s{S_I}, {-2*STG & 0xffffffff}")
    a(f"v_bfe_u32 v1, v{VL}, 2, 2")
    a(f"v_lshl_add_u32 v2, v{VH}, 3, v1")
    a(f"v_bfe_u32 v3, v{VL}, 4, 1")
    a(f"s_cmp_lt_u32 s{S_IDX}, 24")
    a(f"s_cbranch_scc0 L_q_rd")
    VAg = lambda sg, aa: 10 + 2*sg + aa
    a(f"v_lshlrev_b32 v2, 7, v2")
    a(f"v_mul_u32_u24 v3, {U_REL}, v3")
    a(f"v_add_u32 v2, v2, v3")
    a(f"v_and_b32 v1, 2, v1")
    a(f"v_bfe_u32 v3, v{VL}, 1, 1")
    a(f"v_add_u32 v1, v1, v3")
    a(f"v_lshl_add_u32 v2, v1, 4, v2")
    a(f"v_and_b32 v3, 1, v{VL}")
    a(f"v_lshl_add_u32 v2, v3, 3, v2")
    a(f"s_lshl_b32 s{T0}, s{S_MH}, 6")
    a(f"s_add_u32 s{T0}, s{T0}, {G_OFF}")
    for sg in range(4):
        a(f"s_xor_b32 s{T1}, s{S_ROT}, {sg}")
        a(f"s_lshl_b32 s{T1}, s{T1}, 11")
        a(f"s_add_u32 s{T1}, s{T1}, s{T0}")
        a(f"v_add_u32 v{VAg(sg,0)}, s{T1}, v2")
        a(f"v_xor_b32 v{VAg(sg,1)}, 32, v{VAg(sg,0)}")

    def one(lst): return [[x] for x in lst]
    def bg_common():
        o = [f"v_lshlrev_b32 v{VL8}, 3, v{VL}", "v_mov_b32 v4, 0x80000000", f"v_cndmask_b32 v{VL8}, v{VL8}, v4, s[{S_UP}:{S_UP+1}]",
             f"v_mul_u32_u24 v5, 21, v{VH}", f"v_add_lshl_u32 v5, v5, v{VT}, 4", f"v_cmp_gt_u32 vcc, 21, v{VT}", "s_nop 1", f"v_cndmask_b32 v{VLV}, v4, v5, vcc", f"s_lshl_b32 s{T0}, s{S_W}, 2", f"s_add_u32 s{T0}, s{T0}, {FL_OFF}", f"v_mov_b32 v{VFL}, s{T0}"]
        o += [f"v_mov_b32 v{r}, 0" for r in (243, 244, 245)]
        return one(o)
    def bg_L():
        o = [f"v_mov_b32 v246, 0", f"v_mov_b32 v247, 0", f"s_mul_i32 s{T0}, s{S_G}, 320"]
        for j in range(5):
            o += [f"v_add_u32 v6, {64*j}, v{VL}", f"v_mul_u32_u24 v4, 3277, v6", f"v_lshrrev_b32 v4, 16, v4", f"v_mul_u32_u24 v5, 20, v4",
                  f"v_sub_u32 v5, v6, v5", f"v_mul_u32_u24 v4, 1280, v4", f"v_lshl_add_u32 v4, v5, 4, v4", f"v_add_u32 v{VD[j]}, s{T0}, v4"]
            if 0 < j < 4: o += [f"v_subrev_u32 v{VD[j]}, {1024*j}, v{VD[j]}"]
        o += [
              f"s_mul_i32 s{T0}, s{S_WQ}, 5120", f"v_bfe_u32 v6, v{VL}, 2, 2", f"v_bfe_u32 v4, v{VL}, 4, 1", f"v_and_b32 v5, 3, v{VL}",
              f"v_lshl_add_u32 v4, v4, 2, v5", f"s_lshl_b32 s{T1}, s{S_WQ}, 1", f"v_xor_b32 v4, s{T1}, v4", f"v_lshl_add_u32 v4, v4, 3, s{T0}",
              f"v_lshl_add_u32 v5, v{VH}, 2, v6", f"v_mul_u32_u24 v5, 320, v5", f"v_add_u32 v{VAR}, v4, v5",
              f"v_lshl_add_u32 v5, v{VH}, 3, v6", f"v_mul_u32_u24 v5, 320, v5", f"v_add_u32 v{VAR2}, v4, v5", f"v_add_u32 v{VRW}, s{T0}, v{VL16}"]
        for i, vv in ((1, VR0), (2, VR1), (3, VRW+1)):
            o += [f"s_xor_b32 s{T1}, s{S_WQ}, {i}", f"s_mul_i32 s{T1}, s{T1}, 5120", f"v_add_u32 v{vv}, s{T1}, v{VL16}"]
        return one(o)
    VRD = {1: VR0, 2: VR1, 3: VRW+1}
    def touches():
        a(f"s_lshl_b32 s{T0}, s{S_TH}, 10")
        a(f"s_lshl_b32 s{T1}, s{S_IDX}, 5")
        a(f"s_add_u32 s{T0}, s{T0}, s{T1}")
        a(f"v_add_u32 v1, s{T0}, v{VT}")
        a(f"v_mul_u32_u24 v1, 1280, v1")
        a(f"v_mov_b32 v2, 128")
        a(f"v_mov_b32 v3, s{P_X}")
        a(f"v_mov_b32 v4, s{P_X+1}")
        a(f"v_min_u32 v5, 29, v{VT}")
        a(f"v_cmp_le_u32 vcc, 15, v5")
        a(f"s_lshl_b32 s{T0}, s{S_IDX}, 1")
        a(f"v_mov_b32 v6, s{T0}")
        a(f"v_subrev_u32 v7, 15, v5")
        a(f"v_addc_co_u32 v6, s[{T2}:{T3}], 0, v6, vcc")
        a(f"v_cndmask_b32 v5, v5, v7, vcc")
        a(f"v_cmp_le_u32 vcc, 6, v5")
        a(f"v_subrev_u32 v7, 6, v5")
        a(f"v_mov_b32 v8, s{P_WG}")
        a(f"v_cndmask_b32 v7, v5, v7, vcc")
        a(f"v_mov_b32 v9, s{P_WU}")
        a(f"v_cndmask_b32 v8, v8, v9, vcc")
        a(f"v_mov_b32 v9, s{P_WG+1}")
        a(f"v_mov_b32 v32, s{P_WU+1}")
        a(f"v_cndmask_b32 v9, v9, v32, vcc")
        a(f"s_mul_i32 s{T0}, s{S_CG}, 768")
        a(f"v_mul_u32_u24 v32, 3072, v6")
        a(f"v_lshl_add_u32 v32, v7, 7, v32")
        a(f"v_add_u32 v32, s{T0}, v32")
        a(f"v_mov_b32 v33, {64*3072}")
        a(f"v_cmp_le_u32 vcc, 12, v5")
        a(f"s_mul_i32 s{T0}, s{S_CG}, 384")
        a(f"s_sub_u32 s{T0}, s{T0}, {12*128}")
        a(f"v_lshl_add_u32 v7, v5, 7, s{T0}")
        a(f"v_min_u32 v7, 1152, v7")
        a(f"v_mul_u32_u24 v6, 1280, v6")
        a(f"v_add_u32 v7, v7, v6")
        a(f"v_cndmask_b32 v32, v32, v7, vcc")
        a(f"v_mov_b32 v7, {64*1280}")
        a(f"v_cndmask_b32 v33, v33, v7, vcc")
        a(f"v_mov_b32 v7, s{P_WQ}")
        a(f"v_cndmask_b32 v8, v8, v7, vcc")
        a(f"v_mov_b32 v7, s{P_WQ+1}")
        a(f"v_cndmask_b32 v9, v9, v7, vcc")
        for d, s_ in ((1, 32), (2, 33), (3, 8), (4, 9)):
            a(f"v_cndmask_b32 v{d}, v{d}, v{s_}, s[{S_UP}:{S_UP+1}]")
        a(f"s_add_u32 s{T0}, s{S_WQ}, 3")
        a(f"v_mul_lo_u32 v5, v2, s{T0}")
        a(f"v_add_u32 v1, v1, v5")
        a(f"v_add_co_u32 v6, vcc, v3, v1")
        a(f"s_cmp_eq_u32 s{S_WQ}, 3")
        a(f"s_cselect_b32 s{T0}, 3, 4")
        a(f"v_addc_co_u32 v7, vcc, 0, v4, vcc")
        a(f"global_load_dword v246, v[6:7], off")
        a(f"v_mul_lo_u32 v2, v2, s{T0}")
        a(f"v_add_co_u32 v8, vcc, v6, v2")
        a(f"s_nop 1")
        a(f"v_addc_co_u32 v9, vcc, 0, v7, vcc")
        a(f"global_load_dword v247, v[8:9], off")
    NT_ = 2 if "T" in ABL else PGT
    def bg_H(full=True, late=False):
        d = {i: [] for i in range(10)}
        d[0].append([f"s_waitcnt vmcnt({NT_})"])
        st = ["v_mov_b32 v8, 0", "v_mov_b32 v9, 0"]
        for j in range(10):
            st += [f"v_lshlrev_b32 v4, 16, v{192+j}", f"v_and_b32 v5, 0xffff0000, v{192+j}", "v_add_f32 v8, v8, v4", "v_fmac_f32 v9, v4, v4",
                   "v_add_f32 v8, v8, v5", "v_fmac_f32 v9, v5, v5"]
        for rr in (8, 4, 2, 1):
            st += ["s_nop 0", f"v_add_f32_dpp v8, v8, v8 row_ror:{rr} row_mask:0xf bank_mask:0xf", f"v_add_f32_dpp v9, v9, v9 row_ror:{rr} row_mask:0xf bank_mask:0xf"]
        st += ["v_mov_b32 v4, v8", "v_mov_b32 v5, v9", "s_nop 1", "v_permlane16_swap_b32 v4, v8", "v_permlane16_swap_b32 v5, v9", "s_nop 1",
               "v_add_f32 v4, v4, v8", "v_add_f32 v5, v5, v9", f"v_mul_f32 v4, {f32bits(-1.0/640)}, v4", f"v_mul_f32 v5, {f32bits(1.0/640)}, v5",
               "v_fma_f32 v5, -v4, v4, v5", "v_max_f32 v5, 0, v5", "v_cvt_pk_bf16_f32 v5, v5, v5", "v_lshlrev_b32 v5, 16, v5",
               f"v_add_f32 v5, {f32bits(1e-5)}, v5", "v_cvt_pk_bf16_f32 v5, v5, v5", "v_lshlrev_b32 v5, 16, v5", "v_sqrt_f32 v5, v5", "s_nop 0",
               "v_cvt_pk_bf16_f32 v202, v4, v5"]
        h = len(st)//2
        d[0] += one(st[:24]); d[1] += one(st[24:])
        d[0].insert(1, ["v_add_u32 v203, 1, v203"]); d[0].insert(2, ["v_or_b32 v203, 0x80000000, v203"])
        d[0].insert(3, [f"v_mov_b32 v4, {FL_OFF + 128}", "ds_write_b32 v4, v203", f"v_readfirstlane_b32 s{S_NON}, v203"])
        d[1] += [["s_mov_b32 exec_lo, 1", "s_mov_b32 exec_hi, 1", f"s_mov_b32 s{T0}, {STF_OFF}",
                  f"buffer_store_dwordx2 v[202:203], v255, s[{SWS}:{SWS+3}], s{T0} offen sc1", "s_mov_b64 exec, -1"]]
        o = [f"s_lshl_b32 s{T0}, s{S_TB}, 5", f"s_lshl_b32 s{T1}, s{S_G}, 2", f"s_add_u32 s{T0}, s{T0}, s{T1}", f"s_add_u32 s{T0}, s{T0}, s{S_WQ}",
             f"s_lshl_b32 s{T0}, s{T0}, 2", f"s_add_u32 s{S_OFL}, s{T0}, {OFL_OFF}",
             f"s_and_b32 s{S_K2}, s{S_WQ}, 2", f"s_mul_i32 s{S_KV}, s{S_K2}, {16*KVS}", f"s_add_u32 s{S_KV}, s{S_KV}, {KVF_OFF}",
             f"s_lshl_b32 s{S_H0}, s{S_G}, 3", f"s_and_b32 s{T0}, s{S_WQ}, 1", f"s_lshl_b32 s{T0}, s{T0}, 2", f"s_add_u32 s{S_H0}, s{S_H0}, s{T0}",
             f"v_lshlrev_b32 v7, 4, v{VT}", f"v_mov_b32 v8, 0x80000000"]
        for q in range(4):
            o += [f"s_xor_b32 s{T0}, s{S_K2}, {q}", f"s_add_u32 s{T0}, s{T0}, s{S_H0}", f"s_mul_i32 s{T0}, s{T0}, 5"]
            for j, dst in enumerate((Q1(q), Q1(q)+2, Q2(q))):
                o += [f"v_add_u32 v4, s{T0}, v{VH}"]
                if j: o += [f"v_add_u32 v4, {2*j}, v4"]
                o += [f"v_lshrrev_b32 v5, 2, v4", f"v_lshl_add_u32 v5, v5, 10, v7", f"v_and_b32 v6, 1, v4", f"v_lshl_add_u32 v5, v6, 9, v5",
                      f"v_and_b32 v6, 2, v4", f"v_lshl_add_u32 v{dst}, v6, 2, v5"]
                if j == 2: o += [f"v_cndmask_b32 v{dst}, v{dst}, v8, s[{S_UP}:{S_UP+1}]"]
        o += [f"s_lshl_b32 s{T0}, s{S_WQ}, 13", f"s_add_u32 s{T0}, s{T0}, {CB_OFF}", f"s_xor_b32 s{T1}, s{S_WQ}, 2", f"s_lshl_b32 s{T1}, s{T1}, 13",
              f"s_add_u32 s{T1}, s{T1}, {CB_OFF}", f"v_add_u32 v{VCW}, s{T0}, v{VL16}", f"v_add_u32 v{VCR}, s{T1}, v{VL16}",
              ]
        n3 = (len(o) + 2)//3
        pois = [f"s_add_u32 s{T1}, s{S_H0}, s{S_K2}", f"s_mul_i32 s{T1}, s{T1}, 5", f"s_mul_i32 s{S_OO}, s{S_TB}, 160", f"s_add_u32 s{S_OO}, s{S_OO}, s{T1}",
                f"s_lshl_b32 s{S_OO}, s{S_OO}, 8", f"s_add_u32 s{S_OO}, s{S_OO}, {OF_OFF}"] + [f"v_mov_b32 v{r}, -1" for r in range(204, 208)] + \
               [f"buffer_store_dwordx4 v[204:207], v{VL16}, s[{SWS}:{SWS+3}], s{S_OO} offen sc1",
                f"buffer_store_dwordx4 v[204:207], v{VL16}, s[{SWS}:{SWS+3}], s{S_OO} offen offset:1024 sc1",
                f"buffer_store_dwordx4 v[204:207], v{VL16}, s[{SWS}:{SWS+3}], s{S_OO} offen offset:1536 sc1"]
        if late == 2: return one(pois)
        if late: return one(o)
        if full: d[5] += one(o[:n3]); d[6] += one(o[n3:2*n3]); d[7] += one(o[2*n3:])

        if full: d[6].insert(0, pois)
        d[2] += bg_common()
        return d

    def p1_phase(tag, nA, nB, ND, dma, reads, FA, FB, ACC, addr_regs, early):
        nR = 2*nA + nB
        nm = nA*nB
        dw = [(aa, i) for aa in range(nA) for i in range(4)]
        hd = len(dw)//2; qd = hd//2
        def cs_ops(p, lst):
            o = []
            if "c" in ABL: return o
            for aa, i in lst:
                o += [f"v_lshlrev_b32 v2, 16, v{FA(p,aa)+i}", f"v_and_b32 v3, 0xffff0000, v{FA(p,aa)+i}",
                      f"v_add_f32 v{CSA+2*aa}, v{CSA+2*aa}, v2", f"v_add_f32 v{CSA+2*aa+1}, v{CSA+2*aa+1}, v3"]
            return o
        sets3 = A3 == 2 or (A3 and not early)
        cur = [0]
        def group(p, rd_sg, extra=(), dma_ch=(), bg=(), first=False, skip=False):
            extra = list(extra); bg = list(bg)
            rd = reads(rd_sg) if (rd_sg is not None and "r" not in ABL) else []
            if sets3 and cur[0] % 3:
                for r in addr_regs(rd_sg) if rd_sg is not None else []:
                    rd = [x.replace(f", v{r} ", f", v{196 + 12*(cur[0] % 3) + r - 10} ") if f", v{r} " in x + " " else x for x in [y + " " for y in rd]]
                    rd = [x.strip() for x in rd]
            per = (len(extra) + nm - 1)//nm
            bper = (len(bg) + nm - 1)//nm
            rper = (len(rd) + 1)//2
            dch = list(dma_ch)
            k = 0
            for aa in range(nA):
                for b in range(nB):
                    if "m" not in ABL and not skip:
                        a(f"v_mfma_f32_32x32x16_bf16 {vr(ACC(aa,b),16)}, {vr(FA(p,aa),4)}, {vr(FB(p,b),4)}, {'0' if first else vr(ACC(aa,b),16)}")
                    for e in rd[rper*k:rper*(k+1)]: a(e)
                    ndc = (len(dch) + (nm - k) - 1)//(nm - k)
                    emit(dch[:ndc]); dch = dch[ndc:]
                    for e in extra[per*k:per*(k+1)]: a(e)
                    emit(bg[bper*k:bper*(k+1)])
                    k += 1
        def upd(sg, st):
            if sets3: return []
            sreg = S_I if st % 3 == 2 else S_DL
            return [f"v_add_u32 v{r}, s{sreg}, v{r}" for r in addr_regs(sg)] if st < 9 else []
        def run(role):
            bgd = bg_H(early) if role == "H" else {i: [] for i in range(10)}
            if role == "L":
                o = bg_common() + (bg_L() if early else []); n = (len(o) + 4)//5
                for i in range(5): bgd[1+i] = o[n*i:n*(i+1)]
            for it in range(10):
                cur[0] = it + (2 if early else 0)
                if it == 0 and sets3:
                    for k3 in (1, 2):
                        for r in range(10, 22):
                            a(f"v_add_u32 v{196 + 12*k3 + r - 10}, {k3*STG}, v{r}")
                if role == "L":
                    if it == 0: emit(dma(1))
                    a(f"s_waitcnt vmcnt({ND if it < 9 else (10 if (early and 8 in ERS) else 0)})")
                if role == "H" and it == 0 and S0H: a(f"s_waitcnt vmcnt({6 + NT_})")
                if SP and it == 0: stamp(a, 3)
                a("s_barrier")
                if SP and it == 0: stamp(a, 4)
                if "I" in ABL:
                    a(f"v_writelane_b32 v241, s12, {it}"); a("s_memtime s[12:13]")
                pre = []
                if role == "H":
                    if it == 4:
                        pre = [[f"v_xor_b32 v{VFR}, 8, v{VFL}"]]
                    if it == 8 and early:
                        a("s_waitcnt vmcnt(0)")
                        a("s_mov_b64 exec, 1")
                        a(f"buffer_store_dword v203, v242, s[{SWS}:{SWS+3}], s{S_OFL} offen sc1")
                        a("s_mov_b64 exec, -1")
                    if it == 8 or it == 9:
                        Lx = lab("hk")
                        a(f"s_cmp_lg_u32 s{S_W}, 4")
                        a(f"s_cbranch_scc1 {Lx}")
                        if it == 8:
                            a(f"s_lshl_b32 s{T0}, s{S_TOK}, 3")
                            a(f"s_add_u32 s{S_O2}, s{T0}, {STF_OFF}")
                            a(f"buffer_load_dwordx4 v[160:163], v{VL16}, s[{SWS}:{SWS+3}], s{S_O2} offen sc1")
                            a(f"buffer_load_dwordx4 v[164:167], v{VL16}, s[{SWS}:{SWS+3}], s{S_O2} offen offset:{1024 if nB == 2 else 0} sc1")
                        if it == 9:
                            a(f"s_call_b64 s[{T4}:{T5}], L_stats")
                            if early: mbx_load(0)
                        a(f"{Lx}:")
                elif it == 9:
                    a(f"v_mov_b32 v4, {FL_OFF + 128}"); a("ds_read_b32 v5, v4")
                    pre = [[f"v_readfirstlane_b32 s{S_NON}, v5"]]
                xl = 1 if ((role == "H" and it == 3) or (role == "L" and it == 9)) else 0
                ch = dma(it + 2) if (role == "L" and it < 8 and "g" not in ABL) else []
                if role == "L" and early and it in ERS:
                    e_ = ERS.index(it)
                    ch = dma_a_list(2*e_) + dma_a_list(2*e_+1)
                    if e_ == 0: ch[0] = l_prelude() + ch[0]
                if role == "L" and early and it in TW:
                    t_ = TW.index(it); per = 4 // len(TW) if len(TW) <= 4 else 1
                    tl = []
                    for u in range(per):
                        tl += [f"s_lshl_b32 s{T3}, s{S_IDX}, 2", f"s_add_u32 s{T3}, s{T3}, s{S_WQ}", f"s_lshl_b32 s{T3}, s{T3}, 2", f"s_add_u32 s{T3}, s{T3}, {t_*per+u}",
                               f"s_cmp_lt_u32 s{T3}, 240", f"s_cselect_b64 s[{SC}:{SC+1}], s[{P_WD}:{P_WD+1}], s[{P_WO}:{P_WO+1}]",
                               f"s_cselect_b32 s{SC+2}, {1536*1280}, s{SC+2}", f"s_cselect_b32 s{T2}, 0, 240", f"s_sub_u32 s{T3}, s{T3}, s{T2}", f"s_lshl_b32 s{T3}, s{T3}, 13",
                               f"buffer_load_dword v191, v190, s[{SC}:{SC+3}], s{T3} offen", f"s_mov_b32 s{SC+2}, {640*1280}"]
                    ch = [tl] + ch
                q = (len(ch) + 3)//4
                bg = bgd[it]; bq = (len(bg) + 3)//4
                if it == 0: bq = (len(bg) + 1)//2; b0, b1, b2, b3 = [], [], bg[:bq], bg[bq:]
                else: b0, b1, b2, b3 = bg[:bq], bg[bq:2*bq], bg[2*bq:3*bq], bg[3*bq:]
                group(2, 0, extra=(upd(3, it-1) + cs_ops(2, dw[hd:hd+qd])) if it else [], dma_ch=ch[0:q], bg=b0, skip=(it == 0))
                group(3, 1, extra=upd(0, it) + (cs_ops(2, dw[hd+qd:]) if it else []), dma_ch=ch[q:2*q], bg=b1, skip=(it == 0))
                a(f"s_waitcnt lgkmcnt({nR})")
                group(0, 2, extra=upd(1, it) + cs_ops(0, dw[:qd]), dma_ch=ch[2*q:3*q], bg=pre + b2, first=(it == 0))
                a(f"s_waitcnt lgkmcnt({nR})")
                group(1, 3, extra=upd(2, it) + cs_ops(0, dw[qd:hd]), dma_ch=ch[3*q:], bg=b3)
                a("s_waitcnt lgkmcnt(0)")
        if not SP: stamp(a, 1)
        a(f"s_cmp_lg_u32 s{S_ISH}, 0")
        a(f"s_cbranch_scc1 L_{tag}_h")
        run("L")
        a(f"s_branch L_{tag}_fin")
        a(f"L_{tag}_h:")
        if "T" in ABL: touches()
        a(f"v_lshlrev_b32 v1, 2, v{VL}")
        a(f"v_add_u32 v1, {FL_OFF}, v1")
        a(f"ds_write_b32 v1, v242")
        a("s_waitcnt lgkmcnt(0)")
        run("H")
        a(f"L_{tag}_fin:")
        group(2, None, extra=cs_ops(2, dw[hd:]))
        group(3, None)
        if not SP: stamp(a, 2)
        if "I" in ABL:
            a(f"v_writelane_b32 v241, s12, 10")
            a("s_waitcnt lgkmcnt(0)")
            a(f"v_writelane_b32 v241, s4, 0")
            a(f"v_writelane_b32 v241, s8, 11")
            a(f"s_lshl_b32 s{T0}, s2, 3"); a(f"s_add_u32 s{T0}, s{T0}, s3"); a(f"s_lshl_b32 s{T0}, s{T0}, 8"); a(f"s_add_u32 s{T0}, s{T0}, 0x1000000")
            a(f"v_lshlrev_b32 v2, 2, v{VL}")
            a(f"buffer_store_dword v241, v2, s[{SWS}:{SWS+3}], s{T0} offen")
        if "X" in ABL: endpgm(a, 0)
        a(f"s_mul_i32 s{T2}, s{S_MH}, {nA}")
        a(f"s_lshl_b32 s{T0}, s{T2}, 10")
        a(f"s_add_u32 s{T0}, s{T0}, {ST_OFF + 2048 if early else CS_OFF}")
        a(f"v_add_u32 v1, s{T0}, v{VL16}")
        a(f"s_lshl_b32 s{T1}, s{S_ROT}, 2")
        a(f"v_add_u32 v9, s{T1}, v1")
        for aa in range(nA):
            a(f"v_add_f32 v{2+aa}, v{CSA+2*aa}, v{CSA+2*aa+1}")
        for aa in range(nA):
            a(f"v_cvt_pk_bf16_f32 v{5+aa}, v{2+aa}, v{2+aa}")
        for aa in range(nA):
            a(f"v_lshlrev_b32 v{5+aa}, 16, v{5+aa}")
        for aa in range(nA):
            a(f"v_sub_f32 v{5+aa}, v{2+aa}, v{5+aa}")
        for aa in range(nA):
            a(f"v_cvt_pk_bf16_f32 v{5+aa}, v{2+aa}, v{5+aa}")
            a(f"ds_write_b32 v9, v{5+aa} offset:{1024*aa}")
        if early:
            Lx = lab("nost")
            a(f"s_cmp_lg_u32 s{S_W}, 4")
            a(f"s_cbranch_scc1 {Lx}")
            a("s_waitcnt vmcnt(0)")
            mbx_test()
            a(f"s_cbranch_scc0 {Lx}")
            lds_set(16)
            a(f"{Lx}:")
        a(f"s_lshl_b32 s{T1}, s{S_ROT}, {8 + (nB-1)}")
        a(f"s_add_u32 s{T1}, s{T1}, {ST_OFF}")
        a(f"v_lshl_add_u32 v5, v{VT}, 3, s{T1}")
        a(f"v_mov_b32 v6, {FL_OFF + 64}")
        a("s_waitcnt lgkmcnt(0)")
        a("s_barrier")
        for b in range(nB):
            a(f"ds_read_b64 {vr(160+4*b,2)}, v5 offset:{256*b}")
        for aa in range(nA):
            a(f"ds_read_b128 {vr(10+4*aa,4)}, v1 offset:{1024*aa}")
        if early:
            a("ds_read_b32 v4, v6")
        a(f"s_cmp_eq_u32 s{S_ISH}, 0")
        a(f"s_cbranch_scc1 L_{tag}_np")
        a("s_setprio 2")
        a(f"L_{tag}_np:")
        a(f"s_waitcnt lgkmcnt({nA + (1 if early else 0)})")
        for b in range(nB):
            a(f"v_mov_b32 v{26+b}, v{161+4*b}")
            for j in (1, 2, 3):
                a(f"v_mov_b32 v{160+4*b+j}, v{160+4*b}")
        a("s_waitcnt lgkmcnt(0)")
        a("s_nop 0")
        for b in range(nB):
            for aa in range(nA):
                a(f"v_mfma_f32_32x32x16_bf16 {vr(ACC(aa,b),16)}, {vr(10+4*aa,4)}, {vr(160+4*b,4)}, {vr(ACC(aa,b),16)}")

    FA = lambda p, aa: FBASE[p] + 4*aa
    FB = lambda p, b: FBASE[p] + 8 + 4*b
    ACC = lambda aa, b: 64 + 16*(2*aa + b)
    def reads_gu(sg):
        o = []
        for aa in range(2):
            for n in range(2):
                o.append(f"ds_read_b64_tr_b16 {vr(FA(sg,aa)+2*n,2)}, v{VAg(sg,aa)} offset:{512*n}")
            o.append(f"ds_read_b128 {vr(FB(sg,aa),4)}, v{VB(sg)} offset:{4096*aa}")
        return o
    p1_phase("gu", 2, 2, 12, dma_gu, reads_gu, FA, FB, ACC, lambda sg: [VAg(sg,0), VAg(sg,1), VB(sg)], True)
    a(f"v_readfirstlane_b32 s{S_EARLY}, v4")
    a(f"v_mul_f32 v26, v26, v26")
    a(f"v_mul_f32 v28, v27, v27")
    a(f"s_and_b32 s{S_EARLY}, s{S_EARLY}, s{S_ISH}")
    a(f"s_cmp_eq_u32 s{S_EARLY}, 1")
    a(f"s_cbranch_scc0 L_gu_ne")
    a(f"s_call_b64 s[{T4}:{T5}], L_attn_loads")
    a("L_gu_ne:")
    a(f"s_lshr_b32 s{T0}, s{S_TOK}, 5")
    a(f"s_lshl_b32 s{T1}, s{S_ROT}, 1")
    a(f"s_add_u32 s{T0}, s{T0}, s{T1}")
    a(f"s_mul_i32 s{T0}, s{T0}, 96")
    a(f"s_lshl_b32 s{T1}, s{S_COL}, 2")
    a(f"s_add_u32 s{T0}, s{T0}, s{T1}")
    a(f"s_add_u32 s{T0}, s{T0}, s{T2}")
    a(f"s_lshl_b32 s{T0}, s{T0}, 10")
    a(f"s_add_u32 s{T0}, s{T0}, {HF_OFF}")
    a(f"s_add_u32 s{T1}, s{T0}, {96*1024}")
    a(f"s_mov_b64 s[88:89], s[{T0}:{T1}]")
    a("s_nop 0")
    for b in range(2):
        for aa in range(2):
            A = ACC(aa, b)
            for j in range(0, 8, 2):
                a(f"v_pk_mul_f32 {vr(A+j,2)}, {vr(A+j,2)}, {vr(26+2*b,2)} op_sel_hi:[1,0]")
            for j in range(0, 8, 2):
                a(f"v_pk_mul_f32 {vr(A+j,2)}, {vr(A+j,2)}, {vr(A+8+j,2)}")
            for q in range(4):
                a(f"v_cvt_pk_bf16_f32 v{A+q}, v{A+2*q}, v{A+2*q+1}")
            if not LATEH: a(f"buffer_store_dwordx4 {vr(A,4)}, v{VL16}, s[{SWS}:{SWS+3}], s{T0 if b == 0 else T1} offen offset:{1024*aa} sc1")
    a("s_branch L_p2")

    a("L_stats:")
    a(f"s_mov_b32 s{T1}, 0")
    a("L_stats_l:")
    a("s_waitcnt vmcnt(0)")
    a(f"v_xor_b32 v4, s{S_NON}, v161")
    a(f"v_xor_b32 v5, s{S_NON}, v163")
    a(f"v_xor_b32 v6, s{S_NON}, v165")
    a(f"v_xor_b32 v7, s{S_NON}, v167")
    a("v_or3_b32 v4, v4, v5, v6")
    a("v_or_b32 v4, v4, v7")
    a("v_cmp_ne_u32 vcc, 0, v4")
    a(f"s_add_u32 s{T1}, s{T1}, 1")
    a("s_cmp_eq_u64 vcc, 0")
    a("s_cbranch_scc1 L_stats_d")
    a("s_sleep 8")
    a(f"s_cmp_lt_u32 s{S_IDX}, 24")
    a(f"s_cselect_b32 s{T0}, 1024, 0")
    a(f"s_add_u32 s{T0}, s{T0}, s{S_O2}")
    a(f"buffer_load_dwordx4 v[160:163], v{VL16}, s[{SWS}:{SWS+3}], s{S_O2} offen sc1")
    a(f"buffer_load_dwordx4 v[164:167], v{VL16}, s[{SWS}:{SWS+3}], s{T0} offen sc1")
    a(f"s_cmp_lt_u32 s{T1}, {SPIN_MAX}")
    a("s_cbranch_scc1 L_stats_l")
    a("L_stats_d:")
    a(f"s_mov_b32 s{T0}, 0x01000100")
    for r in (160, 162, 164, 166):
        a(f"v_and_b32 v{r+1}, 0xffff0000, v{r}")
        a(f"v_rcp_f32 v{r+1}, v{r+1}")
        a(f"v_perm_b32 v{r}, v{r}, v{r}, s{T0}")
    a(f"v_add_u32 v4, {ST_OFF}, v{VL16}")
    a(f"ds_write_b128 v4, v[160:163]")
    a(f"ds_write_b128 v4, v[164:167] offset:1024")
    a(f"s_setpc_b64 s[{T4}:{T5}]")

    a("L_q_rd:")
    VAq = lambda sg, par: 10 + 2*sg + par
    a(f"v_lshlrev_b32 v2, 7, v2")
    a(f"v_lshl_add_u32 v2, v3, 5, v2")
    a(f"v_and_b32 v3, 3, v{VL}")
    a(f"v_lshl_add_u32 v2, v3, 3, v2")
    a(f"v_and_b32 v1, 2, v1")
    a(f"v_lshl_add_u32 v2, v1, 5, v2")
    a(f"s_lshl_b32 s{T0}, s{S_MH}, 6")
    a(f"v_xor_b32 v2, s{T0}, v2")
    a(f"s_lshl_b32 s{T0}, s{S_MH}, 13")
    a(f"s_add_u32 s{T2}, s{T0}, 16384")
    for sg in range(4):
        a(f"s_xor_b32 s{T1}, s{S_ROT}, {sg}")
        a(f"s_lshl_b32 s{T1}, s{T1}, 11")
        a(f"s_add_u32 s{T1}, s{T1}, s{T2}")
        a(f"v_add_u32 v{VAq(sg,0)}, s{T1}, v2")
        a(f"v_xor_b32 v{VAq(sg,1)}, 64, v{VAq(sg,0)}")
        a(f"v_add_u32 v{VAq(sg,1)}, s{T0}, v{VAq(sg,1)}")
    FA = lambda p, aa: FBASE[p] + 4*aa
    FB = lambda p, b: FBASE[p] + 12
    ACC = lambda aa, b: 64 + 16*aa
    def reads_q(sg):
        o = [f"ds_read_b128 {vr(FB(sg,0),4)}, v{VB(sg)}"]
        for aa in range(3):
            for n in range(2):
                o.append(f"ds_read_b64_tr_b16 {vr(FA(sg,aa)+2*n,2)}, v{VAq(sg, aa & 1)} offset:{8192*(aa >> 1)+512*n}")
        return o
    p1_phase("q", 3, 1, 10, dma_q, reads_q, FA, FB, ACC, lambda sg: [VAq(sg,0), VAq(sg,1), VB(sg)], False)
    a(f"s_lshr_b32 s{T0}, s{S_TOK}, 5")
    a(f"s_add_u32 s{T0}, s{T0}, s{S_ROT}")
    a(f"s_mul_i32 s{T1}, s{T0}, {KVS}")
    a(f"s_add_u32 s{T1}, s{T1}, {KVF_OFF}")
    a(f"s_mul_i32 s{T0}, s{T0}, 40960")
    a(f"s_mul_i32 s{T3}, s{S_COL}, 6")
    a(f"s_add_u32 s{T2}, s{T2}, s{T3}")
    a(f"s_lshl_b32 s{T3}, s{T2}, 11")
    a(f"s_add_u32 s{T0}, s{T0}, s{T3}")
    a(f"v_mul_f32 v28, {f32bits(QSCALE)}, v26")
    a("s_nop 1")
    for aa in range(3):
        A = ACC(aa, 0)
        Lk, Ld = lab("kv"), lab("sd")
        a(f"s_cmp_lt_u32 s{T2}, {20-aa}")
        a(f"s_cbranch_scc0 {Lk}")
        for j in range(0, 16, 2):
            a(f"v_pk_mul_f32 {vr(A+j,2)}, {vr(A+j,2)}, v[28:29] op_sel_hi:[1,0]")
        for q in range(8):
            a(f"v_cvt_pk_bf16_f32 v{A+q}, v{A+2*q}, v{A+2*q+1}")
        for i in range(2):
            a(f"buffer_store_dwordx4 {vr(A+4*i,4)}, v{VL16}, s[{SWS}:{SWS+3}], s{T0} offen offset:{(2048*aa+1024*i) & 4095} sc1")
        if aa == 1:
            a(f"s_add_u32 s{T0}, s{T0}, 4096")
        a(f"s_branch {Ld}")
        a(f"{Lk}:")
        if aa == 2:
            a(f"s_cmp_eq_u32 s{T2}, 18")
            a(f"s_cbranch_scc0 {Ld}")
            for j in range(0, 12, 2):
                a(f"v_pk_mul_f32 {vr(A+j,2)}, {vr(A+j,2)}, v[26:27] op_sel_hi:[1,0]")
            for q in range(6):
                a(f"v_cvt_pk_bf16_f32 v{A+q}, v{A+2*q}, v{A+2*q+1}")
            a(f"buffer_store_dwordx4 {vr(A,4)}, v{VL16}, s[{SWS}:{SWS+3}], s{T1} offen sc1")
            a(f"buffer_store_dwordx2 {vr(A+4,2)}, v{VL8}, s[{SWS}:{SWS+3}], s{T1} offen offset:1024 sc1")
        elif aa == 0:
            for j in range(0, 12, 2):
                a(f"v_pk_mul_f32 {vr(A+j,2)}, {vr(A+j,2)}, v[26:27] op_sel_hi:[1,0]")
            a(f"s_mul_i32 s{T3}, s{S_ROT}, 2304")
            a(f"s_add_u32 s{T3}, s{T3}, {VT_OFF}")
            a(f"v_mul_u32_u24 v1, {4*72}, v{VH}")
            a(f"v_lshl_add_u32 v1, v{VT}, 1, v1")
            a(f"v_add_u32 v1, s{T3}, v1")
            a(f"v_mul_u32_u24 v2, 72, v{VT}")
            a(f"v_lshl_add_u32 v2, v{VH}, 3, v2")
            a(f"v_add_u32 v2, s{T3}, v2")
            a(f"v_cndmask_b32 v{A+8}, v{A+8}, 1.0, s[{S_UP}:{S_UP+1}]")
            for j in (9, 10, 11):
                a(f"v_cndmask_b32 v{A+j}, v{A+j}, 0, s[{S_UP}:{S_UP+1}]")
            for q in range(6):
                a(f"v_cvt_pk_bf16_f32 v{A+q}, v{A+2*q}, v{A+2*q+1}")
            for j in range(12):
                row = 8*(j >> 2) + (j & 3)
                op = "ds_write_b16_d16_hi" if j & 1 else "ds_write_b16"
                a(f"{op} v1, v{A+(j>>1)} offset:{row*72}")
            for f in range(2):
                a(f"ds_read2_b64 {vr(A+8+4*f,4)}, v2 offset0:{4*f} offset1:{4*f+2}")
            a("s_waitcnt lgkmcnt(0)")
            for f in range(2):
                a(f"buffer_store_dwordx4 {vr(A+8+4*f,4)}, v{VLV}, s[{SWS}:{SWS+3}], s{T1} offen offset:{1280+672*f} sc1")
        a(f"{Ld}:")

    a(f"s_cmp_lg_u32 s{S_ISH}, 0")
    a(f"s_cbranch_scc1 L_q_lh")
    emit(bg_L())
    a("s_branch L_q_lx")
    a("L_q_lh:")
    emit(bg_H(late=True))
    a("L_q_lx:")
    a("s_waitcnt vmcnt(0)")
    a("s_barrier")
    a(f"s_cmp_eq_u32 s{S_ISH}, 0")
    a(f"s_cbranch_scc1 L_p2")
    a(f"s_cmp_lg_u32 s{S_W}, 4")
    a(f"s_cbranch_scc1 L_q_po")
    a(f"s_lshl_b32 s{T0}, s{S_TOK}, 2")
    a(f"s_lshl_b32 s{T1}, s{S_COL}, 7")
    a(f"s_add_u32 s{T0}, s{T0}, s{T1}")
    a(f"s_add_u32 s{T0}, s{T0}, {QFL_OFF}")
    a("s_mov_b64 exec, 1")
    a(f"v_mov_b32 v2, s{S_NON}")
    a(f"buffer_store_dword v2, v244, s[{SWS}:{SWS+3}], s{T0} offen sc1")
    a("s_mov_b64 exec, -1")
    a("L_q_po:")
    emit(bg_H(late=2))
    a(f"v_mov_b32 v2, s{S_NON}")
    a("s_waitcnt vmcnt(0)")
    a("s_mov_b64 exec, 1")
    a(f"buffer_store_dword v2, v244, s[{SWS}:{SWS+3}], s{S_OFL} offen sc1")
    a("s_mov_b64 exec, -1")
    def h_stores():
        Lx = lab("hs")
        a(f"s_cmp_ge_u32 s{S_IDX}, 24")
        a(f"s_cbranch_scc1 {Lx}")
        for b in range(2):
            for aa in range(2):
                a(f"buffer_store_dwordx4 {vr(64 + 16*(2*aa+b),4)}, v{VL16}, s[{SWS}:{SWS+3}], s{88+b} offen offset:{1024*aa} sc1")
        a(f"{Lx}:")
    a("L_p2:")
    if not SP: stamp(a, 3)
    a(f"v_mov_b32 v15, 1")
    a(f"v_mov_b32 v14, s{S_NON}")
    a(f"s_cmp_lg_u32 s{S_ISH}, 0")
    a(f"s_cbranch_scc1 L_attn")
    VXR = 180
    VXL, S_XO = 191, 84
    ACC = lambda m: 64 + 16*m
    FA0 = 144
    FB = lambda s: 192 + 4*s
    make_srd(a, SB2, P_WS, WS_SIZE)
    make_srd(a, SC, P_OUT, 2048*1280)
    if ER:
        a(f"s_cmp_lt_u32 s{S_IDX}, 24")
        a(f"s_cbranch_scc1 L_l_pre")
    for l in l_prelude(): a(l)
    a("L_l_pre:")
    a(f"s_mul_i32 s{S_OB}, s{S_TB}, 96")
    a(f"s_mul_i32 s{T0}, s{KQ}, 24")
    a(f"s_add_u32 s{S_OB}, s{S_OB}, s{T0}")
    a(f"s_lshl_b32 s{S_OB}, s{S_OB}, 10")
    a(f"s_add_u32 s{S_OB}, s{S_OB}, {HF_OFF}")
    a(f"s_mul_i32 s{T0}, s{S_RT}, {6*1024}")
    a(f"s_add_u32 s{S_OB}, s{S_OB}, s{T0}")
    a(f"v_add_u32 v{VARB}, 61440, v{VAR}")
    a(f"v_add_u32 v{VAR2B}, 61440, v{VAR2}")
    def load_b(reg):
        a(f"buffer_load_dwordx4 {vr(reg,4)}, v{VL16}, s[{SB2}:{SB2+3}], s{S_OB} offen sc1")
        a(f"s_add_u32 s{S_OB}, s{S_OB}, 1024")
    def h_flag():
        lds_wait(0, 8, sleep=1)
        if SB: stamp(a, 2)
        a(f"s_lshl_b32 s{T0}, s{S_TOK}, 4")
        a(f"s_lshl_b32 s{T1}, s{S_COL}, 7")
        a(f"s_add_u32 s{T0}, s{T0}, s{T1}")
        a(f"s_add_u32 s{T0}, s{T0}, {HFL_OFF}")
        a("s_mov_b64 exec, 1")
        a(f"buffer_store_dword v14, v{VZ}, s[{SWS}:{SWS+3}], s{T0} offen sc1")
        a("s_mov_b64 exec, -1")
    if "G" in ABL: endpgm(a, 0)
    XP = 320
    lds_wait(28, 4, sleep=2)
    h_stores()
    a(f"s_lshl_b32 s{T0}, s{S_TB}, 5")
    a(f"s_lshl_b32 s{T1}, s{KQ}, 3")
    a(f"s_add_u32 s{T0}, s{T0}, s{T1}")
    a(f"s_mul_i32 s{S_XO}, s{T0}, 1280")
    a(f"s_mul_i32 s{T0}, s{KQ}, {8*XP}")
    a(f"s_add_u32 m0, s{T0}, {CB_OFF}")
    a(f"v_add_u32 v{VXL}, s{T0}, v{VL16}")
    a(f"v_add_u32 v{VXL}, {CB_OFF}, v{VXL}")
    for j in range(3):
        if j == 2: a("s_mov_b32 exec_hi, 0")
        a(f"buffer_load_dwordx4 v{VD[j]}, s[{SX}:{SX+3}], s{S_XO} offen offset:{1024*j} lds")
    a("s_mov_b32 exec_hi, -1")
    for m in range(5):
        zero_mfma(ACC(m), VZ)
    a(f"v_mul_u32_u24 v{VXO}, {XP}, v{VT}")
    a(f"v_lshl_add_u32 v{VXO}, v{VH}, 3, v{VXO}")
    a(f"s_lshl_b32 s{T0}, s{KQ}, 4")
    a(f"s_add_u32 s{T0}, s{T0}, {CB_OFF}")
    a(f"v_add_u32 v{VXO}, s{T0}, v{VXO}")
    a("s_waitcnt vmcnt(0)")
    a(f"ds_write_b32 v{VFL}, v15")
    if SB: stamp(a, 1)
    a(f"s_cmp_lg_u32 s{S_W}, 0")
    a(f"s_cbranch_scc1 L_l_ring")
    a(f"s_cmp_ge_u32 s{S_IDX}, 24")
    a(f"s_cbranch_scc1 L_l_ring")
    h_flag()
    a("L_l_ring:")
    if ER:
        a(f"s_cmp_lt_u32 s{S_IDX}, 24")
        a(f"s_cbranch_scc1 L_l_r4")
    for s_ in range(PD):
        if ER and s_ == 2*ER: a("L_l_r4:")
        dma_a(s_)
        a(f"s_waitcnt vmcnt({PW1})")
    lds_wait(0, 4, sleep=1)
    for m in range(5):
        a(f"ds_read_b64 {vr(VXR+2*m,2)}, v{VXO} offset:{64*m}")
    a("s_waitcnt lgkmcnt(0)")
    for m in range(5):
        for q in range(2):
            a(f"v_lshlrev_b32 v{ACC(m)+2*q}, 16, v{VXR+2*m+q}")
            a(f"v_and_b32 v{ACC(m)+2*q+1}, 0xffff0000, v{VXR+2*m+q}")
    if SB: stamp(a, 3)
    a(f"s_cmp_lg_u32 s{S_W}, 0")
    a(f"s_cbranch_scc1 L_l_pub")
    mbx_wait(1, 6)
    if SB: stamp(a, 0)
    lds_set(18)
    a("L_l_pub:")
    lds_wait(18, sleep=4)
    for s in range(PD):
        load_b(FB(s))
    a(f"s_mov_b32 s{S_IT}, 0")
    a("s_waitcnt vmcnt(0)")
    if not SP: stamp(a, 4)
    def rd_a(dst, slot, va, nrow):
        for m in range(5):
            for n in range(2):
                a(f"ds_read_b64_tr_b16 {vr(dst+4*m+2*n,2)}, v{va if slot < 3 else {VAR: VARB, VAR2: VAR2B}[va]} offset:{(slot % 3)*20480 + n*nrow + m*64}")
    if LPRIO: a(f"s_setprio {LPRIO}")
    if DBA: rd_a(144, 0, VAR, 2560)
    a(".p2align 6")
    a("L_gloop:")
    def switch():
        a(f"s_add_u32 s{S_RT}, s{S_RT}, 1")
        a(f"s_cmp_eq_u32 s{S_RT}, 4")
        a(f"s_cselect_b32 s{T0}, {24*16*1280}, 0")
        a(f"s_cselect_b32 s{T1}, {24*1024}, 0")
        a(f"s_sub_u32 s{S_OA}, s{S_OA}, s{T0}")
        a(f"s_sub_u32 s{S_OB}, s{S_OB}, s{T1}")
        a(f"s_cmp_lt_u32 s{S_IT}, 3")
        a(f"s_cbranch_scc1 L_gl1")
        a(f"s_mov_b64 s[{SA}:{SA+1}], s[{P_WO}:{P_WO+1}]")
        a(f"s_mov_b32 s{SA+2}, {640*1280}")
        a(f"s_mov_b32 s{SB2+2}, 0")
        a(f"s_mul_i32 s{S_OA}, s{KQ}, {160*1280}")
        a("L_gl1:")
    def rd_a(dst, slot, va, nrow):
        for m in range(5):
            for n in range(2):
                a(f"ds_read_b64_tr_b16 {vr(dst+4*m+2*n,2)}, v{va if slot < 3 else {VAR: VARB, VAR2: VAR2B}[va]} offset:{(slot % 3)*20480 + n*nrow + m*64}")
    def mm(fa, fb):
        for m in range(5):
            a(f"v_mfma_f32_32x32x16_bf16 {vr(ACC(m),16)}, {vr(fa+4*m,4)}, {vr(fb,4)}, {vr(ACC(m),16)}")
    for s in range(RING):
        if DBA:
            FAD = [144, 2]
            if s == RING - PD: switch()
            a(f"s_waitcnt vmcnt({6*(PD-2)}) lgkmcnt(0)")
            rd_a(FAD[(s+1) & 1], (s+1) % RING, VAR, 2560)
            dl = dma_a_list((s + PD) % RING)
            for m in range(5):
                a(f"v_mfma_f32_32x32x16_bf16 {vr(ACC(m),16)}, {vr(FAD[s & 1]+4*m,4)}, {vr(FB(s),4)}, {vr(ACC(m),16)}")
                emit([dl[m]])
            if "b" in ABL: a(f"buffer_load_dword v{FB((s + PD) % RING)}, v{VZ}, s[{SX}:{SX+3}], 0 offen")
            else: load_b(FB((s + PD) % RING))
            continue
        if s == RING - PD: switch()
        a(f"s_waitcnt vmcnt({6*(PD-1)})")
        if "R" not in ABL: rd_a(FA0, s, VAR, 2560)
        a("s_waitcnt lgkmcnt(0)")
        if PACE:
            dl = dma_a_list((s + PD) % RING)
            for m in range(5):
                a(f"v_mfma_f32_32x32x16_bf16 {vr(ACC(m),16)}, {vr(FA0+4*m,4)}, {vr(FB(s),4)}, {vr(ACC(m),16)}")
                emit([dl[m]])
            load_b(FB((s + PD) % RING))
            continue
        if "D" not in ABL: dma_a(s)
        if "M" not in ABL: mm(FA0, FB(s))
        if "D" not in ABL: load_b(FB(s))
    a(f"s_add_u32 s{S_IT}, s{S_IT}, 1")
    a(f"s_cmp_lt_u32 s{S_IT}, 4")
    a(f"s_cbranch_scc1 L_gloop")
    PRE = [144, 2, 22, 42]
    OB = lambda k: 192 + 4*k
    a(f"s_mov_b32 s{SB2+2}, {WS_SIZE}")
    a(f"s_mul_i32 s{S_OB}, s{S_TB}, 40")
    a(f"s_mul_i32 s{T0}, s{KQ}, 10")
    a(f"s_add_u32 s{S_OB}, s{S_OB}, s{T0}")
    a(f"s_lshl_b32 s{S_OB}, s{S_OB}, 10")
    a(f"s_add_u32 s{S_OB}, s{S_OB}, {OF_OFF}")
    a(f"s_add_u32 s{T0}, s{S_OB}, 4096")
    a(f"s_add_u32 s{T1}, s{S_OB}, 8192")
    for k in range(PD, RING):
        a("s_waitcnt vmcnt(2)")
        dma_a(k)
    a(f"s_waitcnt vmcnt({12 if PD == 6 else 0})")
    for k in range(4):
        rd_a(PRE[k], k, VAR2, 1280)
    a("s_waitcnt lgkmcnt(0)")
    for k in range(4):
        dma_a(k)
        if PW2 < 20: a(f"s_waitcnt vmcnt({PW2})")
    a(f"v_mov_b32 v232, {FL_OFF + 80}")
    if STAMPS and not SB and not SP: stamp(a, 3)
    a("L_ow:")
    a("ds_read_b128 v[236:239], v232")
    a("s_waitcnt lgkmcnt(0)")
    a(f"v_bitop3_b32 v236, v236, v237, v238 bitop3:{'0x80' if HINT == 2 else '0xfe'}")
    a(f"{'v_and_b32' if HINT == 2 else 'v_or_b32'} v236, v236, v239")
    a("s_nop 0")
    a(f"v_readfirstlane_b32 s{T4}, v236")
    a("s_nop 0")
    a(f"s_cmp_eq_u32 s{T4}, 1")
    a(f"s_cbranch_scc1 L_owd")
    a("s_sleep 4")
    a(f"s_branch L_ow")
    a("L_owd:")
    a(f"s_mov_b32 s{T5}, 0")
    def ld_o(k):
        a(f"buffer_load_dwordx4 {vr(OB(k),4)}, v{VL16}, s[{SB2}:{SB2+3}], s{[S_OB, T0, T1][k >> 2]} offen offset:{1024*(k & 3)} sc1")
    for k in range(10):
        ld_o(k)
    for k in range(10):
        a(f"s_waitcnt vmcnt({9-k})")
        a(f"L_oc{k}:")
        a(f"v_max3_u32 v232, v{OB(k)}, v{OB(k)+1}, v{OB(k)+2}")
        a(f"v_max_u32 v232, v232, v{OB(k)+3}")
        a(f"v_cmp_eq_u32 vcc, -1, v232")
        if k >= 4:
            a(f"s_waitcnt lgkmcnt({min(15, 10*min(3, 9-k))})")
        a("s_cmp_lg_u64 vcc, 0")
        a(f"s_cbranch_scc1 L_or{k}")
        a(f"L_og{k}:")
        if k == 0 and STAMPS and not SB and not SP: a("s_memtime s[6:7]")
        mm(PRE[k & 3], OB(k))
        if k + 4 < 10:
            kk = k + 4
            rd_a(PRE[k & 3], kk if kk < 6 else kk - 6, VAR2, 1280)
    if STAMPS and not SB and not SP: a("s_memtime s[8:9]")
    a(f"v_mov_b32 v15, 1")
    a(f"v_mov_b32 v12, {FL_OFF+48}")
    a("s_nop 5")
    for m in range(5):
        for i in range(1, 4):
            a(f"ds_write_b128 v{VRW}, {vr(ACC(m)+4*i,4)} offset:{(i-1)*20480+m*1024}")
    a("s_waitcnt lgkmcnt(0)")
    a(f"ds_write_b32 v{VFL}, v15 offset:48")
    a("L_gpoll:")
    a(f"ds_read_b128 v[4:7], v12")
    a("s_waitcnt lgkmcnt(0)")
    a("v_bitop3_b32 v4, v4, v5, v6 bitop3:0x80")
    a("v_and_b32 v4, v4, v7")
    a("s_nop 0")
    a(f"v_readfirstlane_b32 s{T0}, v4")
    a("s_nop 0")
    a(f"s_cmp_eq_u32 s{T0}, 1")
    a(f"s_cbranch_scc0 L_gpoll")
    for m in range(5):
        for i in range(1, 4):
            a(f"ds_read_b128 {vr(ACC(m)+4*i,4)}, v{VRD[i]} offset:{(i-1)*20480+m*1024}")
    for m in range(5):
        A = ACC(m)
        a(f"s_waitcnt lgkmcnt({12-3*m})")
        for h2 in range(2):
            a(f"v_pk_add_f32 {vr(A+2*h2,2)}, {vr(A+2*h2,2)}, {vr(A+4+2*h2,2)}")
            a(f"v_pk_add_f32 {vr(A+8+2*h2,2)}, {vr(A+8+2*h2,2)}, {vr(A+12+2*h2,2)}")
        for h2 in range(2):
            a(f"v_pk_add_f32 {vr(A+2*h2,2)}, {vr(A+2*h2,2)}, {vr(A+8+2*h2,2)}")
        a(f"v_cvt_pk_bf16_f32 v{A}, v{A}, v{A+1}")
        a(f"v_cvt_pk_bf16_f32 v{A+1}, v{A+2}, v{A+3}")
        a(f"ds_write_b64 v{VXO}, {vr(A,2)} offset:{64*m}")
    a("s_waitcnt lgkmcnt(0)")
    a(f"ds_write_b32 v{VFL}, v15 offset:144")
    a("L_gpoll2:")
    a(f"ds_read_b128 v[4:7], v12 offset:96")
    a("s_waitcnt lgkmcnt(0)")
    a("v_bitop3_b32 v4, v4, v5, v6 bitop3:0x80")
    a("v_and_b32 v4, v4, v7")
    a("s_nop 0")
    a(f"v_readfirstlane_b32 s{T0}, v4")
    a("s_nop 0")
    a(f"s_cmp_eq_u32 s{T0}, 1")
    a(f"s_cbranch_scc0 L_gpoll2")
    for j in range(3):
        a(f"ds_read_b128 {vr(64+4*j,4)}, v{VXL} offset:{1024*j}")
    for j in range(3):
        a(f"s_waitcnt lgkmcnt({2-j})")
        if j == 2: a("s_mov_b32 exec_hi, 0")
        a(f"buffer_store_dwordx4 {vr(64+4*j,4)}, v{VD[j]}, s[{SC}:{SC+3}], s{S_XO} offen offset:{1024*j}")
    a("s_mov_b32 exec_hi, -1")
    endpgm(a, 0)

    for k in range(10):
        a(f"L_or{k}:")
        a("s_waitcnt vmcnt(0)")
        if RSL: a(f"s_sleep {RSL}")
        for j in range(k, 10): ld_o(j)
        a(f"s_add_u32 s{T5}, s{T5}, 1")
        a(f"s_cmp_lt_u32 s{T5}, {SPIN_MAX}")
        a(f"s_waitcnt vmcnt({9-k})")
        a(f"s_cbranch_scc1 L_oc{k}")
        a(f"s_branch L_og{k}")

    S_IT = 78
    def load_kv(r):
        a(f"buffer_load_dwordx4 {vr(K1(r),4)}, v{VL16}, s[{SWS}:{SWS+3}], s{S_KV} offen sc1")
        a(f"buffer_load_dwordx2 {vr(K2(r),2)}, v{VL8}, s[{SWS}:{SWS+3}], s{S_KV} offen offset:1024 sc1")
        a(f"buffer_load_dwordx4 {vr(V1(r),4)}, v{VLV}, s[{SWS}:{SWS+3}], s{S_KV} offen offset:1280 sc1")
        a(f"buffer_load_dwordx4 {vr(V2(r),4)}, v{VLV}, s[{SWS}:{SWS+3}], s{S_KV} offen offset:1952 sc1")
        a(f"s_add_u32 s{S_KV}, s{S_KV}, {KVS}")
    a("L_attn_loads:")
    a(f"s_mul_i32 s{T0}, s{S_TB}, 40960")
    for d in (Q1(0), Q1(0)+2, Q2(0)):
        a(f"buffer_load_dwordx2 {vr(d,2)}, v{d}, s[{SWS}:{SWS+3}], s{T0} offen sc1")
    load_kv(0)
    for q in range(1, 4):
        for d in (Q1(q), Q1(q)+2, Q2(q)):
            a(f"buffer_load_dwordx2 {vr(d,2)}, v{d}, s[{SWS}:{SWS+3}], s{T0} offen sc1")
    for r in range(1, 3):
        load_kv(r)
    a(f"s_setpc_b64 s[{T4}:{T5}]")

    a("L_attn:")
    for q in range(4):
        zero_mfma(O(q), V2(3))
    a(f"s_cmp_eq_u32 s{S_EARLY}, 1")
    a(f"s_cbranch_scc1 L_attn_go")
    if not LATEH:
        a("s_waitcnt vmcnt(0)")
        a(f"ds_write_b32 v{VFL}, v15")
    if SB: stamp(a, 1)
    a(f"s_cmp_lg_u32 s{S_W}, 4")
    a(f"s_cbranch_scc1 L_attn_w")
    mbx_wait(0, 1)
    lds_set(17)
    a("L_attn_w:")
    lds_wait(17, sleep=1)
    if SB: stamp(a, 2)
    a(f"s_call_b64 s[{T4}:{T5}], L_attn_loads")
    a("L_attn_go:")
    h_stores()
    a(f"s_lshl_b32 s{T0}, s2, 3")
    a(f"s_add_u32 s{T0}, s{T0}, s{S_WQ}")
    a(f"s_cmp_lg_u32 s{T0}, 0")
    a(f"s_cbranch_scc1 L_attn_g2")
    a(f"s_mov_b32 s{T0}, {EPOCH_OFF}")
    a("v_mov_b32 v2, 0")
    a("s_mov_b64 exec, 1")
    a(f"buffer_store_dword v14, v2, s[{SWS}:{SWS+3}], s{T0} offen sc1")
    a("s_mov_b64 exec, -1")
    a("L_attn_g2:")
    for r in range(P1, P1+4):
        a(f"v_mov_b32 v{r}, 0")
    a(f"s_mov_b32 s{S_IT}, 0")
    a("s_waitcnt vmcnt(17)")
    a(f"ds_write_b32 v{VFL}, v15 offset:96")
    if "Z" in ABL: a("s_memrealtime s[8:9]")
    if not SP: stamp(a, 4)
    def qk1(buf, r, q): a(f"v_mfma_f32_32x32x16_bf16 {vr(S(buf),16)}, {vr(K1(r),4)}, {vr(Q1(q),4)}, 0")
    def qk2(buf, r, q): a(f"v_mfma_f32_32x32x8_bf16 {vr(S(buf),16)}, {vr(K2(r),2)}, {vr(Q2(q),2)}, {vr(S(buf),16)}")
    def pv(q, vreg, preg): a(f"v_mfma_f32_32x32x16_bf16 {vr(O(q),16)}, {vr(vreg,4)}, {vr(preg,4)}, {vr(O(q),16)}")
    def E(buf, i0):
        for i in range(i0, i0+4): a(f"v_exp_f32 v{S(buf)+i}, v{S(buf)+i}")
    def C(dst, buf, i): a(f"v_cvt_pk_bf16_f32 v{dst}, v{S(buf)+i}, v{S(buf)+i+1}")
    qk1(0, 0, 0); qk2(0, 0, 0)
    a("s_nop 10")
    a(".p2align 6")
    a("L_aloop:")
    for r in [x & 3 for x in range(4*AUN)]:
        for q in range(4):
            buf = q & 1; nb = buf ^ 1
            nr, nq = (r, q+1) if q < 3 else ((r+1) & 3, 0)
            pr, pq = (r, q-1) if q > 0 else ((r-1) & 3, 3)
            if r == 0 and q < 3:
                a(f"s_waitcnt vmcnt({[14, 15, 12][q]})")
            if q == 3:
                a(f"s_waitcnt vmcnt({KVW})")
                if r == 1:
                    a(f"ds_write_b32 v{VFL}, v15")
            qk1(nb, nr, nq); E(buf, 0)
            pv(pq, V2(pr), P1); C(P0, buf, 0); C(P0+1, buf, 2)
            if q == 0:
                load_kv((r+3) & 3)
            E(buf, 4)
            qk2(nb, nr, nq); C(P0+2, buf, 4); C(P0+3, buf, 6); E(buf, 8)
            pv(q, V1(r), P0); C(P1, buf, 8); C(P1+1, buf, 10); E(buf, 12); C(P1+2, buf, 12); C(P1+3, buf, 14)
    a(f"s_add_u32 s{S_IT}, s{S_IT}, 1")
    a(f"s_cmp_lt_u32 s{S_IT}, {1 if 'H' in ABL else 8//AUN}")
    a(f"s_cbranch_scc1 L_aloop")
    if HINT == 0: a(f"ds_write_b32 v{VFL}, v15 offset:64")
    else: a("s_nop 0")
    pv(3, V2(3), P1)
    if "Z" in ABL: a("s_memrealtime s[10:11]")
    if STAMPS and not SB and not SP: a("s_memtime s[6:7]")
    for i in range(3):
        a(f"ds_write_b128 v{VCW}, {vr(O(2)+4*i,4)} offset:{1024*i}")
    a("s_nop 9")
    for i in range(3):
        a(f"ds_write_b128 v{VCW}, {vr(O(3)+4*i,4)} offset:{4096+1024*i}")
    a("s_waitcnt lgkmcnt(0)")
    a(f"ds_write_b32 v{VFL}, v15 offset:16")
    a("L_apoll:")
    a(f"ds_read_b32 v2, v{VFR} offset:16")
    a("s_waitcnt lgkmcnt(0)")
    a(f"v_readfirstlane_b32 s{T0}, v2")
    a("s_nop 0")
    a(f"s_cmp_eq_u32 s{T0}, 1")
    a(f"s_cbranch_scc0 L_apoll")
    for q in range(2):
        for i in range(3):
            a(f"ds_read_b128 {vr(O(2+q)+4*i,4)}, v{VCR} offset:{4096*q+1024*i}")
    for q in range(2):
        a(f"s_waitcnt lgkmcnt({3-3*q})")
        for j in range(0, 12, 2):
            a(f"v_pk_add_f32 {vr(O(q)+j,2)}, {vr(O(q)+j,2)}, {vr(O(2+q)+j,2)}")
    def get_l():
        for q in range(2):
            a(f"v_mov_b32 v{4+2*q}, v{O(q)+8}")
            a(f"v_mov_b32 v{5+2*q}, v{O(q)+8}")
        a("s_nop 0")
        for q in range(2):
            a(f"v_permlane32_swap_b32 v{5+2*q}, v{4+2*q}")
    get_l()
    a(f"v_mov_b32 v2, 0")
    a(f"v_mov_b32 v3, 0")
    a(f"v_mov_b32 v8, 0")
    for q in range(2):
        for j in range(0, 12, 2):
            a(f"v_pk_fma_f32 v[2:3], {vr(O(q)+j,2)}, v[8:9], v[2:3] op_sel_hi:[1,0,1]")
    a(f"v_min_f32 v10, v4, v6")
    a(f"v_max_f32 v11, v4, v6")
    a(f"v_fmac_f32 v2, 0, v4")
    a(f"v_fmac_f32 v3, 0, v6")
    a(f"v_cmp_le_f32 vcc, 0x1f800000, v10")
    a(f"s_mov_b64 s[{T0}:{T1}], vcc")
    a(f"v_cmp_ge_f32 vcc, 0x5f800000, v11")
    a(f"s_and_b64 s[{T0}:{T1}], s[{T0}:{T1}], vcc")
    a(f"v_cmp_o_f32 vcc, v2, v3")
    a(f"s_and_b64 s[{T0}:{T1}], s[{T0}:{T1}], vcc")
    a(f"s_cmp_eq_u64 s[{T0}:{T1}], exec")
    a("s_branch L_fb" if force_fallback else "s_cbranch_scc0 L_fb")
    a("L_norm:")
    for q in range(2):
        a(f"v_rcp_f32 v{4+2*q}, v{4+2*q}")
    a("s_nop 0")
    for q in range(2):
        for j in range(0, 12, 2):
            a(f"v_pk_mul_f32 {vr(O(q)+j,2)}, {vr(O(q)+j,2)}, {vr(4+2*q,2)} op_sel_hi:[1,0]")
    A_, B_ = O(0), O(1)
    def cvs(d, x):
        a(f"v_cvt_pk_bf16_f32 v{d}, v{x}, v{x+1}")
    for k in range(4): cvs(A_+k, A_+2*k)
    for k in range(4): a(f"v_min_u32 v{A_+k}, -2, v{A_+k}")
    for k in (4, 5): cvs(A_+k, A_+2*k)
    a(f"v_permlane32_swap_b32 v{A_}, v{A_+2}")
    a(f"v_permlane32_swap_b32 v{A_+1}, v{A_+3}")
    cvs(A_+6, B_); cvs(A_+7, B_+2)
    a(f"buffer_store_dwordx4 {vr(A_,4)}, v{VL16}, s[{SWS}:{SWS+3}], s{S_OO} offen sc1")
    cvs(B_, B_+4); cvs(B_+1, B_+6); cvs(B_+4, B_+8); cvs(B_+5, B_+10)
    for r in (A_+4, A_+5, A_+6, A_+7, B_, B_+1, B_+4, B_+5):
        a(f"v_min_u32 v{r}, -2, v{r}")
    a(f"v_cndmask_b32 v{A_+4}, v{A_+4}, v{A_+6}, s[{S_UP}:{S_UP+1}]")
    a(f"v_cndmask_b32 v{A_+5}, v{A_+5}, v{A_+7}, s[{S_UP}:{S_UP+1}]")
    a(f"v_permlane32_swap_b32 v{A_+6}, v{B_}")
    a(f"v_permlane32_swap_b32 v{A_+7}, v{B_+1}")
    a(f"v_permlane32_swap_b32 v{B_+2}, v{B_+4}")
    a(f"v_permlane32_swap_b32 v{B_+3}, v{B_+5}")
    a(f"buffer_store_dwordx4 {vr(A_+4,4)}, v{VL16}, s[{SWS}:{SWS+3}], s{S_OO} offen offset:1024 sc1")
    a("s_mov_b32 exec_lo, 0")
    a(f"buffer_store_dwordx4 {vr(B_,4)}, v{VL16}, s[{SWS}:{SWS+3}], s{S_OO} offen offset:1536 sc1")
    a("s_mov_b64 exec, -1")
    if HINT: a(f"ds_write_b32 v{VFL}, v15 offset:64")
    endpgm(a, 0)
    a("L_fb:")
    a("s_waitcnt vmcnt(0)")
    a(f"v_mov_b32 v4, 0xff800000")
    a(f"v_mov_b32 v5, 0xff800000")
    a(f"s_mov_b32 s{S_KV}, {KVF_OFF}")
    a(f"s_mov_b32 s{S_IT}, 0")
    a("L_fb1:")
    load_kv(0)
    a("s_waitcnt vmcnt(0)")
    for q in range(2):
        qk1(q, 0, q); qk2(q, 0, q)
    a("s_nop 15")
    for q in range(2):
        for j in range(0, 16, 2):
            a(f"v_max3_f32 v{4+q}, v{S(q)+j}, v{S(q)+j+1}, v{4+q}")
    a(f"s_add_u32 s{S_IT}, s{S_IT}, 1")
    a(f"s_cmp_lt_u32 s{S_IT}, 64")
    a(f"s_cbranch_scc1 L_fb1")
    for q in range(2):
        a(f"v_mov_b32 v6, v{4+q}")
        a("s_nop 1")
        a(f"v_permlane32_swap_b32 v6, v{4+q}")
        a("s_nop 1")
        a(f"v_max_f32 v6, v6, v{4+q}")
        a(f"v_sub_f32 v6, 0, v6")
        a(f"v_cvt_pk_bf16_f32 v7, v6, v6")
        a(f"v_lshlrev_b32 v7, 16, v7")
        a(f"v_sub_f32 v8, v6, v7")
        a(f"v_cvt_pk_bf16_f32 v7, v7, v8")
        a(f"v_cndmask_b32 v{Q2(q)}, v{Q2(q)}, v7, s[{S_UP}:{S_UP+1}]")
        for j in range(16):
            a(f"v_mov_b32 v{O(q)+j}, 0")
    a(f"s_mov_b32 s{S_KV}, {KVF_OFF}")
    a(f"s_mov_b32 s{S_IT}, 0")
    a("v_mov_b32 v9, 0x3f803f80")
    a("L_fb2:")
    load_kv(0)
    a("s_waitcnt vmcnt(0)")
    a(f"v_cndmask_b32 v{K2(0)}, v{K2(0)}, v9, s[{S_UP}:{S_UP+1}]")
    a("s_nop 1")
    for q in range(2):
        qk1(q, 0, q); qk2(q, 0, q)
    a("s_nop 15")
    for q in range(2):
        for i0 in range(0, 16, 4): E(q, i0)
        a("s_nop 0")
        for k in range(4): C(P0+k, q, 2*k)
        for k in range(4): C(P1+k, q, 8+2*k)
        a("s_nop 1")
        pv(q, V1(0), P0); pv(q, V2(0), P1)
    a(f"s_add_u32 s{S_IT}, s{S_IT}, 1")
    a(f"s_cmp_lt_u32 s{S_IT}, 64")
    a(f"s_cbranch_scc1 L_fb2")
    a("s_nop 15")
    get_l()
    a("s_nop 1")
    a("s_branch L_norm")
    a("L_end:")
    a("s_endpgm")
    if QORD:
        L = a.lines
        ix = lambda t: [i for i, l in enumerate(L) if l.strip() == t][0]
        b0 = ix("s_cbranch_scc0 L_q_l") + 1; c0 = ix("L_q_l:"); d0 = ix("L_p0_h:"); e0 = ix("s_cbranch_scc0 L_q_rd") + 1
        f0 = ix("L_stats:"); g0 = ix("L_q_rd:"); h0 = ix("L_p2:")
        A, B, C, D, E, F, G, H = L[:b0], L[b0:c0], L[c0:d0], L[d0:e0], L[e0:f0], L[f0:g0], L[g0:h0], L[h0:]
        A[-1] = "    s_cbranch_scc1 L_g_l"; D[-1] = "    s_cbranch_scc1 L_g_rd"
        a.lines = A + C + D + G + ["    s_branch L_p2"] + F + ["L_g_l:"] + B + ["L_g_rd:"] + E + H
    return a, kernel_desc(name, 256)

DOC = """; ---------------------------------------------------------------------------------------------
;         with the true row maximum subtracted (L_fb).
; ---------------------------------------------------------------------------------------------
"""

def build(force_fallback=False):
    hdr = open("cdna_kernels/%s.s.ref" % NAME).read().split("\n")
    hdr = [l for l in hdr if l.startswith(";") and "@launch" not in l and "Override" not in l and "grid=ceil" not in l]
    body, desc = gen(NAME + "_kernel", force_fallback)
    out = "\n".join(hdr) + "\n"
    out += f"; @launch grid=(256,1,1) block=(512,1,1) lds={LDS_BYTES}\n"
    out += '.amdgcn_target "amdgcn-amd-amdhsa--gfx950"\n'
    out += DOC
    out += '.text\n'
    out += body.text()
    out += '.section .rodata,"a"\n' + desc
    return out

if __name__ == "__main__":
    out = sys.argv[1] if len(sys.argv) > 1 else "cdna_kernels/%s.s" % NAME
    open(out, "w").write(build("fb" in sys.argv[2:]))
    print("wrote", out)
```
